```python
import torch

def _softmax(x, axis=-1):
    return torch.softmax(x, dim=axis)
def _gelu(x):
    return torch.nn.functional.gelu(x, approximate="tanh")
def _silu(x):
    return torch.nn.functional.silu(x)
def _sigmoid(x):
    return torch.sigmoid(x)
def _layernorm(x, axis=-1, eps=1e-5):
    m = x.mean(dim=axis, keepdim=True)
    v = x.var(dim=axis, keepdim=True, unbiased=False)
    return (x - m) / torch.sqrt(v + eps)
def _scatter_add(tgt, idx, src, axis=0):
    return tgt.clone().index_add_(axis, idx, src)
def _segment_sum(src, seg, n):
    out = torch.zeros((n,) + src.shape[1:], dtype=src.dtype)
    return out.index_add_(0, seg, src)
def _pad(x, pw):
    flat = tuple(v for pair in reversed(pw) for v in pair)
    return torch.nn.functional.pad(x, flat)

kernel_name = 'standalone__molecular_angular_gemnet__graph'

def setup_inputs():

    _w = (lambda a: (lambda t: t.to(torch.bfloat16) if t.is_floating_point() else t)(torch.as_tensor(a)))
    N, deg, De, L = 25000, 16, 4, 3
    E = N * deg
    T = E * deg
    NR = 8
    dist = torch.rand(E).to(float)
    angle = (torch.rand(T) * torch.pi).to(float)
    centers = torch.linspace(0.0, 1.0, NR).to(float)
    ang_freq = torch.arange(1, L + 1).to(float)
    return {
        "m": _w((lambda *s: torch.randn(*s, dtype=torch.bfloat16) * 0.05)(E, De)),
        "idx_in": _w((lambda lo, hi, *s: torch.randint(lo, hi, s))(0, E, T).to(torch.int64)),
        "idx_out": _w((lambda lo, hi, *s: torch.randint(lo, hi, s))(0, E, T).to(torch.int64)),
        "dist": _w(dist),
        "angle": _w(angle),
        "centers": _w(centers),
        "ang_freq": _w(ang_freq),
        "w_rbf": _w((lambda *s: torch.randn(*s, dtype=torch.bfloat16) * 0.4)(NR, De)),
        "w_sbf": _w((lambda *s: torch.randn(*s, dtype=torch.bfloat16) * 0.4)(NR * L, De)),
        "w_down": _w((lambda *s: torch.randn(*s, dtype=torch.bfloat16) * 0.4)(De, De)),
        "w_up": _w((lambda *s: torch.randn(*s, dtype=torch.bfloat16) * 0.4)(De, De)),
    }

def reference(m, idx_in, idx_out, dist, angle, centers, ang_freq, w_rbf, w_sbf, w_down, w_up):
    E, De = m.shape[0], m.shape[1]
    NR = centers.shape[0]
    L = ang_freq.shape[0]
    rbf = torch.exp(-10.0 * (dist[:, None] - centers[None, :]) ** 2)
    cbf = torch.cos(ang_freq[None, :] * angle[:, None])
    rbf_t = rbf[idx_out]
    sbf = torch.reshape(rbf_t[:, :, None] * cbf[:, None, :], (-1, NR * L))
    x = (m[idx_in] @ w_down) * (sbf @ w_sbf)
    agg = _segment_sum(x, idx_out, E)
    return m + (agg @ w_up) * (rbf @ w_rbf)
```

```python
import re

TRANS = {"v_exp_f32", "v_log_f32", "v_rcp_f32", "v_rsq_f32", "v_sqrt_f32", "v_sin_f32", "v_cos_f32",
         "v_rcp_iflag_f32"}

_reg_re = re.compile(r"^(-?\|?)([vs])(\d+)\|?$")
_rng_re = re.compile(r"^([vs])\[(\d+):(\d+)\]$")


def parse_regs(tok):
    tok = tok.strip()
    m = _reg_re.match(tok)
    if m:
        return {(m.group(2), int(m.group(3)))}
    m = _rng_re.match(tok)
    if m:
        return {(m.group(1), i) for i in range(int(m.group(2)), int(m.group(3)) + 1)}
    if tok == "vcc":
        return {("s", 106), ("s", 107)}
    if tok == "exec":
        return {("s", 126), ("s", 127)}
    return set()


class Ins:
    def __init__(self, text):
        self.text = text
        t = text.split(";")[0].strip()
        parts = t.split(None, 1)
        self.op = parts[0]
        rest = parts[1] if len(parts) > 1 else ""
        ops = [o.strip() for o in rest.split(",")] if rest else []
        self.mods = ""
        if ops:
            last = ops[-1].split(None, 1)
            ops[-1] = last[0]
            if len(last) > 1:
                self.mods = last[1]
        self.ops = ops
        op = self.op
        base = op
        for suf in ("_dpp", "_sdwa", "_e32", "_e64"):
            if base.endswith(suf):
                base = base[: -len(suf)]
        self.base = base
        self.is_valu = op.startswith("v_")
        self.is_dpp = op.endswith("_dpp")
        self.is_ds = op.startswith("ds_")
        self.is_vmem = op.startswith("buffer_") or op.startswith("global_")
        self.is_salu = op.startswith("s_")
        self.is_trans = base in TRANS
        self.is_dot = base.startswith("v_dot")
        self.dst = set()
        self.src = set()
        self.srcs = []
        if self.is_valu:
            self.dst = parse_regs(ops[0])
            self.srcs = [parse_regs(o) for o in ops[1:]]
            if base in ("v_fmac_f32", "v_dot2c_f32_bf16"):
                self.srcs.append(set(self.dst))
            if self.is_dpp:
                self.srcs.append(set(self.dst))
            if base.startswith("v_cndmask") and len(ops) == 3:
                self.srcs.append(parse_regs("vcc"))
        elif self.is_ds:
            if "read" in op or "_rtn" in op or "permute" in op or "swizzle" in op:
                self.dst = parse_regs(ops[0])
                self.srcs = [parse_regs(o) for o in ops[1:]]
            else:
                self.srcs = [parse_regs(o) for o in ops]
        elif self.is_vmem:
            if "load" in op:
                self.dst = parse_regs(ops[0])
                self.srcs = [parse_regs(o) for o in ops[1:]]
            else:
                self.srcs = [parse_regs(o) for o in ops]
        elif self.is_salu:
            if op.startswith("s_cmp") or op.startswith("s_cbranch") or op in (
                    "s_branch", "s_waitcnt", "s_barrier", "s_nop", "s_endpgm", "s_setprio", "s_sleep"):
                self.srcs = [parse_regs(o) for o in ops]
            else:
                self.dst = parse_regs(ops[0]) if ops else set()
                self.srcs = [parse_regs(o) for o in ops[1:]]
        for s in self.srcs:
            self.src |= s
        self.wide_store = self.is_vmem and "store" in op and (op.endswith("x4") or op.endswith("x3"))
        self.states = 1
        if op == "s_nop":
            self.states = int(ops[0], 0) + 1

    @property
    def is_branch(self):
        return self.op.startswith("s_cbranch") or self.op == "s_branch"


def required(p, c):
    need = 0
    pv = {r for r in p.dst if r[0] == "v"}
    ps = {r for r in p.dst if r[0] == "s"}
    if p.is_valu:
        if p.is_trans and c.is_valu and not c.is_trans and (pv & c.src):
            need = max(need, 1)
        if p.is_dot:
            if c.is_valu or c.is_ds or c.is_vmem:
                if c.base == p.base:
                    ab = set()
                    for s in c.srcs[:2]:
                        ab |= s
                    if pv & ab:
                        need = max(need, 3)
                else:
                    if (pv & c.src) or (pv & c.dst):
                        need = max(need, 3)
        if c.is_dpp and (pv & c.src):
            need = max(need, 2)
        if c.base in ("v_readlane_b32", "v_readfirstlane_b32") and c.srcs and (pv & c.srcs[0]):
            need = max(need, 1)
        if ps:
            if c.is_valu and (ps & c.src):
                need = max(need, 2)
                if c.base in ("v_readlane_b32", "v_writelane_b32") and len(c.srcs) > 1 and (ps & c.srcs[1]):
                    need = max(need, 4)
            if c.is_vmem and (ps & c.src):
                need = max(need, 5)
    if p.wide_store:
        data = p.srcs[0]
        if data & c.dst:
            need = max(need, 2 if c.is_valu else 1)
    return need


class Asm:
    def __init__(self):
        self.items = []
        self.vm = []

    def I(self, text):
        for line in text.strip().split("\n"):
            line = line.strip()
            if not line or line.startswith(";"):
                continue
            self.items.append(Ins(line))

    def L(self, name):
        self.items.append(("label", name))

    def raw(self, text):
        self.items.append(("raw", text))

    def C(self, text):
        self.items.append(("raw", "    ; " + text))

    def vmem(self, text, tag=None):
        self.I(text)
        self.vm.append(tag)

    def vwait(self, tag):
        idx = max(i for i, t in enumerate(self.vm) if t == tag)
        n = len(self.vm) - 1 - idx
        assert n <= 63
        self.I(f"s_waitcnt vmcnt({n})")
        self.vm = self.vm[idx + 1:]

    def vwait_all(self):
        self.I("s_waitcnt vmcnt(0)")
        self.vm = []

    def fix_hazards(self):
        items = self.items
        out = []
        label_pos = {}
        for i, it in enumerate(items):
            if isinstance(it, tuple) and it[0] == "label":
                label_pos[it[1]] = i
        branch_to = {}
        for i, it in enumerate(items):
            if isinstance(it, Ins) and it.is_branch:
                branch_to.setdefault(it.ops[0], []).append(i)
        extra = {}

        def preds(i):
            res = []
            j = i - 1
            while j >= 0:
                it = items[j]
                if isinstance(it, tuple):
                    if it[0] == "label":
                        for b in branch_to.get(it[1], []):
                            res.append(b)
                    j -= 1
                    continue
                if it.op in ("s_branch", "s_endpgm"):
                    break
                res.append(j)
                break
            return res

        ninserted = 0
        for i, it in enumerate(items):
            if not isinstance(it, Ins):
                continue
            need = 0
            stack = [(p, 0) for p in preds(i)]
            seen = {}
            while stack:
                p, d = stack.pop()
                if d >= 5:
                    continue
                if p in seen and seen[p] <= d:
                    continue
                seen[p] = d
                pi = items[p]
                r = required(pi, it)
                if r - d > need:
                    need = r - d
                nd = d + pi.states + extra.get(p, 0)
                for q in preds(p):
                    stack.append((q, nd))
            if need > 0:
                extra[i] = need
                ninserted += 1
        for i, it in enumerate(items):
            if i in extra:
                out.append(Ins(f"s_nop {extra[i] - 1}"))
            out.append(it)
        self.items = out
        return ninserted

    def text(self):
        lines = []
        for it in self.items:
            if isinstance(it, Ins):
                lines.append("    " + it.text)
            elif it[0] == "label":
                lines.append(it[1] + ":")
            else:
                lines.append(it[1])
        return "\n".join(lines) + "\n"

    def max_regs(self):
        mv, ms = -1, -1
        for it in self.items:
            if isinstance(it, Ins):
                for k, n in it.dst | it.src:
                    if k == "v":
                        mv = max(mv, n)
                    elif n < 104:
                        ms = max(ms, n)
        return mv + 1, ms + 1


class Alloc:
    def __init__(self, kind, start, limit):
        self.kind, self.next, self.limit = kind, start, limit

    def get(self, n=1, align=1):
        self.next = (self.next + align - 1) // align * align
        r = self.next
        self.next += n
        assert self.next <= self.limit, f"out of {self.kind} regs"
        return r


def v(i, n=1):
    return f"v{i}" if n == 1 else f"v[{i}:{i + n - 1}]"


def s(i, n=1):
    return f"s{i}" if n == 1 else f"s[{i}:{i + n - 1}]"
```

```python
import sys, os
sys.path.insert(0, os.path.dirname(__file__))
from asmlib import Asm, Alloc, v, s

E = 400000
T = 6400000
NB = 256
S = 1568
MAGIC = 2739138

WS_OFFS = 0x6000000
WS_MDT = 0x7000000


class Cfg:
    def __init__(self, **kw):
        self.FG = 2
        self.GPT = 4
        self.TPB1 = 256
        self.ld_in = "nt"
        self.st_rec = ""
        self.ld_rec = ""
        self.nbG = 4
        self.nbR = 4
        self.__dict__.update(kw)
        self.C = self.TPB1 * self.GPT * 4
        self.NC = (T + self.C - 1) // self.C
        rem = T - (self.NC - 1) * self.C
        assert rem % (self.TPB1 * 4) == 0
        self.LASTG = rem // (self.TPB1 * 4)
        self.CB = self.C // 4 * (12 * self.FG + 8 * (4 - self.FG))
        assert self.CB % (self.TPB1 * 16) == 0
        assert self.NC * self.CB <= WS_OFFS
        self.CPW = (self.NC + 15) // 16
        self.EPL = (self.CPW + 63) // 64
        self.CPW = (self.CPW + self.EPL - 1) // self.EPL * self.EPL


def srd(a, d, base_lo, base_hi, nbytes, add=0):
    if add:
        a.I(f"s_add_u32 s{d}, s{base_lo}, {hex(add)}")
        a.I(f"s_addc_u32 s{d + 1}, s{base_hi}, 0")
    else:
        a.I(f"s_mov_b32 s{d}, s{base_lo}")
        a.I(f"s_mov_b32 s{d + 1}, s{base_hi}")
    a.I(f"s_mov_b32 s{d + 2}, {hex(nbytes)}")
    a.I(f"s_mov_b32 s{d + 3}, 0x20000")


def scan_add(a, regs):
    for sh in (1, 2, 4, 8):
        for r in regs:
            a.I(f"v_add_u32_dpp v{r}, v{r}, v{r} row_shr:{sh} row_mask:0xf bank_mask:0xf bound_ctrl:0")
    for r in regs:
        a.I(f"v_add_u32_dpp v{r}, v{r}, v{r} row_bcast:15 row_mask:0xa bank_mask:0xf")
    for r in regs:
        a.I(f"v_add_u32_dpp v{r}, v{r}, v{r} row_bcast:31 row_mask:0xc bank_mask:0xf")


def scan_max(a, regs, op="v_max_u32"):
    for sh in (1, 2, 4, 8):
        for r in regs:
            a.I(f"{op}_dpp v{r}, v{r}, v{r} row_shr:{sh} row_mask:0xf bank_mask:0xf bound_ctrl:0")
    for r in regs:
        a.I(f"{op}_dpp v{r}, v{r}, v{r} row_bcast:15 row_mask:0xa bank_mask:0xf")
    for r in regs:
        a.I(f"{op}_dpp v{r}, v{r}, v{r} row_bcast:31 row_mask:0xc bank_mask:0xf")


def md_from_m(a, m01, m23, W, t, out01, out23):
    for d in range(4):
        a.I(f"v_dot2_f32_bf16 v{t + d}, v{m23}, s{W + 2 * d + 1}, 0")
    for d in range(4):
        a.I(f"v_dot2_f32_bf16 v{t + d}, v{m01}, s{W + 2 * d}, v{t + d}")
    return [f"v_cvt_pk_bf16_f32 v{out01}, v{t}, v{t + 1}", f"v_cvt_pk_bf16_f32 v{out23}, v{t + 2}, v{t + 3}"]


def gen_p1(c):
    a = Asm()
    FG, GPT, TPB, C, NC, CB = c.FG, c.GPT, c.TPB1, c.C, c.NC, c.CB
    assert TPB == 256
    CNT = CB
    WT = CB + 2048
    lds = CB + 2048 + 16
    va = Alloc("v", 1, 256)
    vT8 = va.get(); vT16 = va.get(); vOne = va.get()
    vZ = va.get(2, 2)
    vII = va.get(4 * GPT, 4)
    vIO = va.get(4 * GPT, 4)
    vAN = va.get(2 * GPT, 2)
    vMD = va.get(max(2 * GPT * FG, 2), 2)
    vKA = va.get(4 * GPT, 4)
    vRK = va.get(4 * GPT, 4)
    vMR = va.get(2, 2)
    vT = va.get(8, 4)
    vE = va.get(2, 2)
    sM, sIN, sOUT, sANG, sREC, sOFF, sMDT = 16, 20, 24, 28, 32, 36, 40
    sWraw = 44
    sW = 52
    sG = 60
    sGA = 68
    sMagic, sNegS, sMaskHi, sWid, sTmp, sPre, sRecOff = 76, 77, 78, 79, 80, 84, 85

    a.I(f"s_cmp_ge_u32 s2, {NC}")
    a.I("s_cbranch_scc1 P1_END")
    a.I("s_load_dwordx4 s[4:7], s[0:1], 0")
    a.I("s_load_dwordx2 s[8:9], s[0:1], 16")
    a.I("s_load_dwordx2 s[10:11], s[0:1], 32")
    a.I("s_load_dwordx2 s[12:13], s[0:1], 72")
    a.I("s_load_dwordx2 s[14:15], s[0:1], 104")
    a.I(f"v_lshlrev_b32 v{vT8}, 3, v0")
    a.I(f"v_lshlrev_b32 v{vT16}, 4, v0")
    a.I(f"v_mov_b32 v{vZ}, 0")
    a.I(f"v_mov_b32 v{vZ + 1}, 0")
    a.I(f"v_mov_b32 v{vOne}, 1")
    a.I(f"ds_write_b64 v{vT8}, {v(vZ, 2)} offset:{CNT}")
    a.I(f"s_mul_i32 s{sG}, s2, {C * 4}")
    for g in range(1, GPT):
        a.I(f"s_add_u32 s{sG + g}, s{sG}, {g * TPB * 16}")
    a.I(f"s_mul_i32 s{sGA}, s2, {C * 2}")
    for g in range(1, GPT):
        a.I(f"s_add_u32 s{sGA + g}, s{sGA}, {g * TPB * 8}")
    a.I(f"s_mov_b32 s{sMagic}, {MAGIC}")
    a.I(f"s_mov_b32 s{sNegS}, {-S}")
    a.I(f"s_mov_b32 s{sMaskHi}, 0xffff0000")
    a.I(f"v_lshrrev_b32 v{vT}, 6, v0")
    a.I(f"v_readfirstlane_b32 s{sWid}, v{vT}")
    a.I("s_waitcnt lgkmcnt(0)")
    a.I(f"s_load_dwordx8 s[{sWraw}:{sWraw + 7}], s[12:13], 0")
    srd(a, sIN, 6, 7, T * 4)
    pol = (" " + c.ld_in) if c.ld_in else ""
    for g in range(GPT):
        a.vmem(f"buffer_load_dwordx4 {v(vII + 4 * g, 4)}, v{vT16}, {s(sIN, 4)}, s{sG + g} offen{pol}", f"ii{g}")
    srd(a, sOUT, 8, 9, T * 4)
    srd(a, sANG, 10, 11, T * 2)
    for g in range(GPT):
        a.vmem(f"buffer_load_dwordx4 {v(vIO + 4 * g, 4)}, v{vT16}, {s(sOUT, 4)}, s{sG + g} offen{pol}", f"io{g}")
        a.vmem(f"buffer_load_dwordx2 {v(vAN + 2 * g, 2)}, v{vT8}, {s(sANG, 4)}, s{sGA + g} offen{pol}", f"an{g}")
    srd(a, sM, 4, 5, E * 8)
    RPW = (E + NC - 1) // NC
    assert RPW <= TPB
    need_mdt = True
    a.I(f"s_mul_i32 s{sTmp}, s2, {RPW * 8}")
    if RPW < TPB:
        a.I(f"v_cmp_gt_u32 vcc, {RPW}, v0")
        a.I(f"v_mov_b32 v{vT}, 0x7ffffff0")
        a.I(f"v_cndmask_b32 v{vE}, v{vT}, v{vT8}, vcc")
    else:
        a.I(f"v_mov_b32 v{vE}, v{vT8}")
    a.vmem(f"buffer_load_dwordx2 {v(vMR, 2)}, v{vE}, {s(sM, 4)}, s{sTmp} offen", "mr")
    srd(a, sREC, 14, 15, NC * CB)
    srd(a, sOFF, 14, 15, 64 * NC * 32, WS_OFFS)
    srd(a, sMDT, 14, 15, E * 8, WS_MDT)
    for g in range(GPT):
        a.vwait(f"ii{g}")
        for k in range(4):
            a.I(f"v_lshlrev_b32 v{vII + 4 * g + k}, 3, v{vII + 4 * g + k}")
        for k in range(FG):
            a.vmem(f"buffer_load_dwordx2 {v(vMD + 2 * (g * FG + k), 2)}, v{vII + 4 * g + k}, {s(sM, 4)}, 0 offen",
                   f"md{g}_{k}")
    a.vm = []
    for g in range(GPT):
        a.vm += [f"io{g}", f"an{g}"]
    a.vm += ["mr"]
    for g in range(GPT):
        a.vm += [f"md{g}_{k}" for k in range(FG)]
    a.I("s_waitcnt lgkmcnt(0)")
    r = sWraw
    for d in range(4):
        pk = "s_pack_ll_b32_b16" if d % 2 == 0 else "s_pack_hh_b32_b16"
        a.I(f"{pk} s{sW + 2 * d}, s{r + d // 2}, s{r + 2 + d // 2}")
        a.I(f"{pk} s{sW + 2 * d + 1}, s{r + 4 + d // 2}, s{r + 6 + d // 2}")
    a.I("s_barrier")
    for g in range(GPT):
        if g == c.LASTG and c.LASTG < GPT:
            a.I(f"s_cmp_eq_u32 s2, {NC - 1}")
            a.I("s_cbranch_scc1 P1_HIST_DONE")
        a.vwait(f"an{g}")
        for k in range(4):
            i = 4 * g + k
            a.I(f"v_mul_hi_u32_u24 v{vT + k}, s{sMagic}, v{vIO + i}")
        for k in range(4):
            i = 4 * g + k
            a.I(f"v_lshlrev_b32 v{vKA + i}, 3, v{vT + k}")
            a.I(f"ds_add_rtn_u32 v{vRK + i}, v{vKA + i}, v{vOne} offset:{CNT + (0 if k < FG else 4)}")
        for k in range(4):
            i = 4 * g + k
            a.I(f"v_mad_i32_i24 v{vIO + i}, v{vT + k}, s{sNegS}, v{vIO + i}")
            an = vAN + 2 * g + k // 2
            if k % 2 == 0:
                a.I(f"v_lshl_or_b32 v{vIO + i}, v{an}, 16, v{vIO + i}")
            else:
                a.I(f"v_and_or_b32 v{vIO + i}, v{an}, s{sMaskHi}, v{vIO + i}")
    a.L("P1_HIST_DONE")
    a.vwait("mr")
    fin = md_from_m(a, vMR, vMR + 1, sW, vT, vMR, vMR + 1)
    for f in fin:
        a.I(f)
    a.vmem(f"buffer_store_dwordx2 {v(vMR, 2)}, v{vE}, {s(sMDT, 4)}, s{sTmp} offen", "mdst")
    a.I("s_waitcnt lgkmcnt(0)")
    a.I("s_barrier")
    nG, nR, sz, inc = vT, vT + 1, vT + 2, vT + 3
    a.I(f"ds_read_b64 {v(nG, 2)}, v{vT8} offset:{CNT}")
    a.I("s_waitcnt lgkmcnt(0)")
    a.I(f"v_lshlrev_b32 v{sz}, 1, v{nR}")
    a.I(f"v_mad_u32_u24 v{sz}, v{nG}, 3, v{sz}")
    a.I(f"v_mov_b32 v{inc}, v{sz}")
    scan_add(a, [inc])
    a.I(f"v_readlane_b32 s{sPre}, v{inc}, 63")
    a.I(f"s_lshl_b32 s{sTmp + 1}, s{sWid}, 2")
    a.I(f"v_mov_b32 v{vT + 4}, s{sTmp + 1}")
    a.I(f"v_mov_b32 v{vT + 5}, s{sPre}")
    a.I(f"ds_write_b32 v{vT + 4}, v{vT + 5} offset:{WT}")
    a.I("s_waitcnt lgkmcnt(0)")
    a.I("s_barrier")
    a.I(f"ds_read_b128 {v(vT + 4, 4)}, v{vZ} offset:{WT}")
    a.I("s_waitcnt lgkmcnt(0)")
    a.I(f"v_readfirstlane_b32 s{sTmp + 1}, v{vT + 4}")
    a.I(f"v_readfirstlane_b32 s{sTmp + 2}, v{vT + 5}")
    a.I(f"v_readfirstlane_b32 s{sTmp + 3}, v{vT + 6}")
    a.I(f"s_mov_b32 s{sPre}, 0")
    for w in range(3):
        a.I(f"s_cmp_gt_u32 s{sWid}, {w}")
        a.I(f"s_cselect_b32 s{sTmp + 1 + w}, s{sTmp + 1 + w}, 0")
        a.I(f"s_add_u32 s{sPre}, s{sPre}, s{sTmp + 1 + w}")
    st = vT + 4
    a.I(f"v_sub_u32 v{st}, v{inc}, v{sz}")
    a.I(f"v_add_u32 v{st}, s{sPre}, v{st}")
    a.I(f"v_lshlrev_b32 v{vT + 6}, 2, v{st}")
    a.I(f"v_mad_u32_u24 v{vT + 7}, v{nG}, 12, v{vT + 6}")
    a.I(f"ds_write_b64 v{vT8}, {v(vT + 6, 2)} offset:{CNT}")
    a.I(f"v_lshl_or_b32 v{nG}, v{nG}, 16, v{st}")
    a.I(f"v_lshrrev_b32 v{vT + 4}, 2, v0")
    a.I(f"s_mov_b32 s{sTmp + 1}, {NC * 32}")
    a.I(f"v_mul_lo_u32 v{vT + 4}, v{vT + 4}, s{sTmp + 1}")
    a.I(f"v_and_b32 v{vT + 5}, 3, v0")
    a.I(f"v_lshl_add_u32 v{vT + 4}, v{vT + 5}, 3, v{vT + 4}")
    a.I(f"s_lshl_b32 s{sTmp + 1}, s2, 5")
    a.vmem(f"buffer_store_dwordx2 {v(nG, 2)}, v{vT + 4}, {s(sOFF, 4)}, s{sTmp + 1} offen", "offst")
    a.I("s_waitcnt lgkmcnt(0)")
    a.I("s_barrier")
    for g in range(GPT):
        if g == c.LASTG and c.LASTG < GPT:
            a.I(f"s_cmp_eq_u32 s2, {NC - 1}")
            a.I("s_cbranch_scc1 P1_SCAT_DONE")
        for k in range(4):
            i = 4 * g + k
            a.I(f"ds_read_b32 v{vKA + i}, v{vKA + i} offset:{CNT + (0 if k < FG else 4)}")
        for k in range(FG):
            j = vMD + 2 * (g * FG + k)
            a.vwait(f"md{g}_{k}")
            tt = vT + 4 * (k % 2)
            fin = md_from_m(a, j, j + 1, sW, tt, j, j + 1)
            for f in fin:
                a.I(f)
        a.I("s_waitcnt lgkmcnt(0)")
        for k in range(4):
            i = 4 * g + k
            R = 12 if k < FG else 8
            a.I(f"v_mad_u32_u24 v{vKA + i}, v{vRK + i}, {R}, v{vKA + i}")
            if k < FG:
                j = vMD + 2 * (g * FG + k)
                a.I(f"ds_write2_b32 v{vKA + i}, v{j}, v{j + 1} offset0:0 offset1:1")
                a.I(f"ds_write_b32 v{vKA + i}, v{vIO + i} offset:8")
            else:
                a.I(f"ds_write2_b32 v{vKA + i}, v{vII + i}, v{vIO + i} offset0:0 offset1:1")
    a.L("P1_SCAT_DONE")
    a.I("s_waitcnt lgkmcnt(0)")
    a.I("s_barrier")
    n = CB // (TPB * 16)
    a.I(f"s_mul_i32 s{sRecOff}, s2, {CB}")
    bufs = [b + 4 * i for b in (vII, vIO, vKA, vRK) for i in range(GPT)]
    nb = len(bufs)
    pol = (" " + c.st_rec) if c.st_rec else ""
    done = 0
    while done < n:
        m = min(nb, n - done)
        for i in range(m):
            a.I(f"ds_read_b128 {v(bufs[i], 4)}, v{vT16} offset:{(done + i) * 4096}")
        for i in range(m):
            a.I(f"s_waitcnt lgkmcnt({m - 1 - i})")
            a.I(f"buffer_store_dwordx4 {v(bufs[i], 4)}, v{vT16}, {s(sREC, 4)}, s{sRecOff} offen{pol}")
            a.I(f"s_add_u32 s{sRecOff}, s{sRecOff}, 4096")
        done += m
        if done < n:
            a.I("s_waitcnt vmcnt(0)")
    a.L("P1_END")
    a.I("s_endpgm")
    return a, lds


def gen_p2(c):
    a = Asm()
    FG, NC, CB, EPL, CPW = c.FG, c.NC, c.CB, c.EPL, c.CPW
    nbG = c.nbG if FG > 0 else 0
    nbR = c.nbR if FG < 4 else 0
    nbmax = max(nbG, nbR)
    ACC = 0
    ACCF = 4 * S * 4
    GB = 2 * 4 * S * 4
    GA = GB + S * 8
    MISC = GA + S * 16
    MARKS = MISC + 16
    MW = ((nbmax * 256 + 1023) // 1024) * 1024
    lds = MARKS + 16 * MW
    assert GA < 65536 and lds <= 163840
    va = Alloc("v", 1, 128)
    vLane = va.get()
    vZ = va.get(4, 4)
    vRBF = va.get(8)
    vU = va.get(8)
    vMrow = va.get(4, 2)
    vMk4 = va.get(); vMk16 = va.get();
    vLaneG = va.get(); vLaneR = va.get()
    vPG = va.get(EPL); vDG = va.get(EPL); vPR = va.get(EPL); vDR = va.get(EPL)
    vGd = [va.get(max(4 * nbG, 1), 4) for _ in range(2)]
    vRd = [va.get(max(2 * nbR, 1), 2) for _ in range(2)]
    vRg = va.get(max(2 * nbR, 1), 2)
    vA = va.get(max(nbmax, 2), 2)
    vT = va.get(28, 4)
    sREC, sMDT, sX, sY = 16, 20, 24, 28
    sB, sWid, sNG, sNR, sP0G, sP0R, sCG, sCR, sLim, sIter, sT, sMaskHi = 4, 5, 6, 7, 8, 9, 10, 11, 12, 13, 14, 3
    sPtr = 32
    sWt = 48
    sCen = 32
    sMask = 48
    assert sMask + 2 * 2 * (nbG + nbR) <= 96

    a.I(f"s_cmp_ge_u32 s2, {NB}")
    a.I("s_cbranch_scc1 P2_END")
    a.I(f"s_load_dwordx2 s[{sPtr}:{sPtr + 1}], s[0:1], 0")
    a.I(f"s_load_dwordx2 s[{sPtr + 2}:{sPtr + 3}], s[0:1], 24")
    a.I(f"s_load_dwordx2 s[{sPtr + 4}:{sPtr + 5}], s[0:1], 40")
    a.I(f"s_load_dwordx2 s[{sPtr + 6}:{sPtr + 7}], s[0:1], 64")
    a.I(f"s_load_dwordx2 s[{sPtr + 8}:{sPtr + 9}], s[0:1], 104")
    a.I(f"s_and_b32 s{sB}, s2, 7")
    a.I(f"s_lshl_b32 s{sB}, s{sB}, 5")
    a.I(f"s_lshr_b32 s{sT}, s2, 3")
    a.I(f"s_add_u32 s{sB}, s{sB}, s{sT}")
    a.I(f"s_mov_b32 s{sMaskHi}, 0xffff0000")
    a.I(f"v_and_b32 v{vLane}, 63, v0")
    a.I(f"v_lshrrev_b32 v{vT}, 6, v0")
    a.I(f"v_readfirstlane_b32 s{sWid}, v{vT}")
    for i in range(4):
        a.I(f"v_mov_b32 v{vZ + i}, 0")
    a.I(f"v_lshlrev_b32 v{vT}, 4, v0")
    nz = (2 * 4 * S * 4) // 16
    for i in range(nz // 1024):
        a.I(f"ds_write_b128 v{vT}, {v(vZ, 4)} offset:{i * 16384}")
    rem = nz % 1024
    assert rem == 64
    a.I(f"s_cmp_lg_u32 s{sWid}, 0")
    a.I("s_cbranch_scc1 P2_Z1")
    a.I(f"ds_write_b128 v{vT}, {v(vZ, 4)} offset:{(nz // 1024) * 16384}")
    a.I(f"v_mov_b32 v{vT + 1}, {MISC}")
    a.I(f"ds_write_b128 v{vT + 1}, {v(vZ, 4)}")
    a.L("P2_Z1")
    vC = vT + 2
    a.I(f"s_mul_i32 s{sT}, s{sWid}, {CPW}")
    a.I(f"v_mul_u32_u24 v{vC}, {EPL}, v{vLane}")
    a.I(f"v_add_u32 v{vC}, s{sT}, v{vC}")
    a.I(f"s_lshr_b32 s{sT}, s{sB}, 2")
    a.I(f"s_mul_i32 s{sT}, s{sT}, {NC * 32}")
    a.I(f"s_and_b32 s{sT + 1}, s{sB}, 3")
    a.I(f"s_lshl_b32 s{sT + 1}, s{sT + 1}, 3")
    a.I(f"s_add_u32 s{sT}, s{sT}, s{sT + 1}")
    a.I(f"v_lshlrev_b32 v{vT + 3}, 5, v{vC}")
    a.I("s_waitcnt lgkmcnt(0)")
    a.I(f"s_load_dwordx16 s[{sWt}:{sWt + 15}], s[{sPtr + 6}:{sPtr + 7}], 0")
    a.I(f"s_load_dwordx16 s[{sWt + 16}:{sWt + 31}], s[{sPtr + 6}:{sPtr + 7}], 64")
    a.I(f"s_load_dwordx16 s[{sWt + 32}:{sWt + 47}], s[{sPtr + 6}:{sPtr + 7}], 128")
    a.I(f"s_load_dwordx4 s[96:99], s[{sPtr + 4}:{sPtr + 5}], 0")
    srd(a, sX, sPtr + 8, sPtr + 9, 64 * NC * 32, WS_OFFS)
    vEnt = vT + 4
    for e in range(EPL):
        a.vmem(f"buffer_load_dwordx2 {v(vEnt + 2 * e, 2)}, v{vT + 3}, {s(sX, 4)}, s{sT} offen offset:{32 * e}", f"ent{e}")
    srd(a, sMDT, sPtr + 8, sPtr + 9, E * 8, WS_MDT)
    srd(a, sY, sPtr + 2, sPtr + 3, E * 2)
    a.I(f"s_mul_i32 s{sT}, s{sB}, {S}")
    vE0 = vT + 8
    a.I(f"v_add_u32 v{vE0}, s{sT}, v0")
    a.I(f"v_add_u32 v{vE0 + 1}, 0x400, v{vE0}")
    a.I(f"v_cmp_gt_u32 vcc, {S - 1024}, v0")
    a.I(f"v_mov_b32 v{vT + 10}, 0x0ffffff0")
    a.I(f"v_cndmask_b32 v{vE0 + 1}, v{vT + 10}, v{vE0 + 1}, vcc")
    vD = vT + 10
    vMDo = vT + 12
    a.I(f"v_lshlrev_b32 v{vT + 16}, 1, v{vE0}")
    a.I(f"v_lshlrev_b32 v{vT + 17}, 1, v{vE0 + 1}")
    a.I(f"v_lshlrev_b32 v{vE0}, 3, v{vE0}")
    a.I(f"v_lshlrev_b32 v{vE0 + 1}, 3, v{vE0 + 1}")
    a.vmem(f"buffer_load_dwordx2 {v(vMDo, 2)}, v{vE0}, {s(sMDT, 4)}, 0 offen", "mdo0")
    a.vmem(f"buffer_load_dwordx2 {v(vMDo + 2, 2)}, v{vE0 + 1}, {s(sMDT, 4)}, 0 offen", "mdo1")
    a.vmem(f"buffer_load_ushort v{vD}, v{vT + 16}, {s(sY, 4)}, 0 offen", "d0")
    a.vmem(f"buffer_load_ushort v{vD + 1}, v{vT + 17}, {s(sY, 4)}, 0 offen", "d1")
    srd(a, sY, sPtr, sPtr + 1, E * 8)
    a.vmem(f"buffer_load_dwordx2 {v(vMrow, 2)}, v{vE0}, {s(sY, 4)}, 0 offen", "m0")
    a.vmem(f"buffer_load_dwordx2 {v(vMrow + 2, 2)}, v{vE0 + 1}, {s(sY, 4)}, 0 offen", "m1")
    srd(a, sREC, sPtr + 8, sPtr + 9, NC * CB)
    a.I(f"s_mul_i32 s{sT}, s{sWid}, {MW}")
    a.I(f"s_add_u32 s{sT}, s{sT}, {MARKS}")
    a.I(f"v_lshl_add_u32 v{vMk4}, v{vLane}, 2, s{sT}")
    a.I(f"v_lshl_add_u32 v{vMk16}, v{vLane}, 4, s{sT}")
    sMkBase = 100
    a.I(f"s_mov_b32 s{sMkBase}, s{sT}")
    a.I(f"v_mul_u32_u24 v{vLaneG}, 12, v{vLane}")
    a.I(f"v_lshlrev_b32 v{vLaneR}, 3, v{vLane}")
    a.I("s_waitcnt lgkmcnt(0)")
    a.I("s_barrier")
    a.vwait(f"ent{EPL - 1}")
    vnG = vT + 18; vnR = vT + 20; vsum = vT + 22
    assert EPL <= 2
    for e in range(EPL):
        d0, d1 = vEnt + 2 * e, vEnt + 2 * e + 1
        if e:
            a.I(f"v_add_u32 v{vC}, 1, v{vC}")
        a.I(f"v_cmp_gt_u32 vcc, {NC}, v{vC}")
        a.I(f"v_lshrrev_b32 v{vnG + e}, 16, v{d0}")
        a.I(f"v_cndmask_b32 v{vnG + e}, 0, v{vnG + e}, vcc")
        a.I(f"v_and_b32 v{d1}, 0xffff, v{d1}")
        a.I(f"v_cndmask_b32 v{vnR + e}, 0, v{d1}, vcc")
        a.I(f"v_cmp_gt_u32 vcc, {CPW // EPL}, v{vLane}")
        a.I(f"v_and_b32 v{d0}, 0xffff, v{d0}")
        a.I(f"v_cndmask_b32 v{vnG + e}, 0, v{vnG + e}, vcc")
        a.I(f"v_cndmask_b32 v{vnR + e}, 0, v{vnR + e}, vcc")
        a.I(f"s_mov_b32 s{sT}, {CB}")
        a.I(f"v_mul_lo_u32 v{d1}, v{vC}, s{sT}")
        a.I(f"v_lshl_add_u32 v{vDG + e}, v{d0}, 2, v{d1}")
        a.I(f"v_mad_u32_u24 v{vDR + e}, v{vnG + e}, 12, v{vDG + e}")
    if EPL == 2:
        a.I(f"v_add_u32 v{vsum}, v{vnG}, v{vnG + 1}")
        a.I(f"v_add_u32 v{vsum + 1}, v{vnR}, v{vnR + 1}")
    else:
        a.I(f"v_mov_b32 v{vsum}, v{vnG}")
        a.I(f"v_mov_b32 v{vsum + 1}, v{vnR}")
    a.I(f"v_mov_b32 v{vsum + 2}, v{vsum}")
    a.I(f"v_mov_b32 v{vsum + 3}, v{vsum + 1}")
    scan_add(a, [vsum + 2, vsum + 3])
    a.I(f"v_readlane_b32 s{sNG}, v{vsum + 2}, 63")
    a.I(f"v_readlane_b32 s{sNR}, v{vsum + 3}, 63")
    a.I(f"v_sub_u32 v{vPG}, v{vsum + 2}, v{vsum}")
    a.I(f"v_sub_u32 v{vPR}, v{vsum + 3}, v{vsum + 1}")
    if EPL == 2:
        a.I(f"v_add_u32 v{vPG + 1}, v{vPG}, v{vnG}")
        a.I(f"v_add_u32 v{vPR + 1}, v{vPR}, v{vnR}")
    for e in range(EPL):
        a.I(f"v_mul_u32_u24 v{vsum}, 12, v{vPG + e}")
        a.I(f"v_sub_u32 v{vDG + e}, v{vDG + e}, v{vsum}")
        a.I(f"v_lshlrev_b32 v{vsum}, 3, v{vPR + e}")
        a.I(f"v_sub_u32 v{vDR + e}, v{vDR + e}, v{vsum}")
        a.I(f"v_cmp_ne_u32 vcc, 0, v{vnG + e}")
        a.I(f"v_cndmask_b32 v{vPG + e}, -1, v{vPG + e}, vcc")
        a.I(f"v_cmp_ne_u32 vcc, 0, v{vnR + e}")
        a.I(f"v_cndmask_b32 v{vPR + e}, -1, v{vPR + e}, vcc")
    a.I(f"s_add_u32 s{sT}, s{sNG}, s{sNR}")
    a.I(f"v_mov_b32 v{vsum}, s{sT}")
    a.I(f"v_mov_b32 v{vsum + 1}, {MISC}")
    a.I("s_mov_b64 exec, 1")
    a.I(f"ds_add_u32 v{vsum + 1}, v{vsum} offset:4")
    a.I("s_mov_b64 exec, -1")
    WGp, WRp = nbG * 64, nbR * 64
    a.I(f"s_mov_b32 s{sP0G}, 0")
    a.I(f"s_mov_b32 s{sP0R}, 0")
    a.I(f"s_mov_b32 s{sCG}, 0")
    a.I(f"s_mov_b32 s{sCR}, 0")

    ldpol = (" " + c.ld_rec) if c.ld_rec else ""

    def mask_reg(st, typ, k):
        return sMask + 2 * (st * (nbG + nbR) + (k if typ == "G" else nbG + k))

    def stageA(st):
        for typ, nb, R, vP, vDl, sP0, sN, sCar, vLn in (
                ("R", nbR, 8, vPR, vDR, sP0R, sNR, sCR, vLaneR), ("G", nbG, 12, vPG, vDG, sP0G, sNG, sCG, vLaneG)):
            if nb == 0:
                continue
            W = nb * 64
            for i in range(MW // 1024):
                a.I(f"ds_write_b128 v{vMk16}, {v(vZ, 4)} offset:{i * 1024}")
            for e in range(EPL):
                a.I(f"v_subrev_u32 v{vA}, s{sP0}, v{vP + e}")
                a.I(f"v_cmp_gt_u32 vcc, {W}, v{vA}")
                a.I(f"v_lshl_add_u32 v{vA}, v{vA}, 2, s{sMkBase}")
                a.I("s_mov_b64 exec, vcc")
                a.I(f"ds_write_b32 v{vA}, v{vDl + e}")
                a.I("s_mov_b64 exec, -1")
            k = 0
            while k < nb:
                if k + 1 < nb:
                    a.I(f"ds_read2st64_b32 {v(vA + k, 2)}, v{vMk4} offset0:{k} offset1:{k + 1}")
                    k += 2
                else:
                    a.I(f"ds_read_b32 v{vA + k}, v{vMk4} offset:{k * 256}")
                    k += 1
            for k in range(nb):
                mr = mask_reg(st, typ, k)
                a.I(f"s_sub_i32 s{sT}, s{sN}, s{sP0}")
                if k:
                    a.I(f"s_sub_i32 s{sT}, s{sT}, {64 * k}")
                a.I(f"s_max_i32 s{sT}, s{sT}, 0")
                a.I(f"s_bfm_b64 s[{mr}:{mr + 1}], s{sT}, 0")
                a.I(f"s_cmp_ge_i32 s{sT}, 64")
                a.I(f"s_cselect_b64 s[{mr}:{mr + 1}], -1, s[{mr}:{mr + 1}]")
            a.I("s_waitcnt lgkmcnt(0)")
            scan_max(a, [vA + k for k in range(nb)])
            for k in range(nb):
                a.I(f"v_max_u32 v{vA + k}, s{sCar}, v{vA + k}")
                a.I(f"v_readlane_b32 s{sCar}, v{vA + k}, 63")
            a.I(f"s_mul_i32 s{sT}, s{sP0}, {R}")
            for k in range(nb):
                a.I(f"v_add3_u32 v{vA + k}, v{vA + k}, v{vLn}, s{sT}")
                if k + 1 < nb:
                    a.I(f"s_add_u32 s{sT}, s{sT}, {64 * R}")
            for k in range(nb):
                mr = mask_reg(st, typ, k)
                a.I(f"s_mov_b64 exec, s[{mr}:{mr + 1}]")
                if typ == "G":
                    a.I(f"buffer_load_dwordx3 {v(vGd[st] + 4 * k, 3)}, v{vA + k}, {s(sREC, 4)}, 0 offen{ldpol}")
                else:
                    a.I(f"buffer_load_dwordx2 {v(vRd[st] + 2 * k, 2)}, v{vA + k}, {s(sREC, 4)}, 0 offen{ldpol}")
            a.I("s_mov_b64 exec, -1")
            a.I(f"s_add_u32 s{sP0}, s{sP0}, {W}")

    def stageB(st, younger):
        for k in range(nbR):
            a.I(f"s_waitcnt vmcnt({nbR - 1 - k + younger + k})")
            mr = mask_reg(st, "R", k)
            a.I(f"s_mov_b64 exec, s[{mr}:{mr + 1}]")
            a.I(f"buffer_load_dwordx2 {v(vRg + 2 * k, 2)}, v{vRd[st] + 2 * k}, {s(sMDT, 4)}, 0 offen")
        a.I("s_mov_b64 exec, -1")

    lblc = [0]

    def comp(m01, m23, meta, mr):
        n = lblc[0]; lblc[0] += 1
        t = vT
        a16, a8, a4 = t, t + 1, t + 2
        af, r0, r2 = t + 3, t + 4, t + 5
        Gq = t + 8
        Gb = t + 12
        c01, c2l, c2h = t + 6, t + 7, t + 14
        md = t + 16
        g = t + 20
        sm = t + 15
        a.I(f"s_mov_b64 exec, s[{mr}:{mr + 1}]")
        a.I(f"s_cbranch_execz P2_SK{n}")
        sd = "dst_sel:DWORD dst_unused:UNUSED_PAD src0_sel:DWORD src1_sel:WORD_0"
        a.I(f"v_lshlrev_b32_sdwa v{a16}, 4, v{meta} {sd}")
        a.I(f"v_lshlrev_b32_sdwa v{a8}, 3, v{meta} {sd}")
        a.I(f"ds_read_b128 {v(Gq, 4)}, v{a16} offset:{GA}")
        a.I(f"ds_read_b64 {v(Gb, 2)}, v{a8} offset:{GB}")
        a.I(f"v_and_b32 v{af}, s{sMaskHi}, v{meta}")
        a.I(f"v_mul_f32 v{r0}, 0.15915494, v{af}")
        a.I(f"v_mul_f32 v{r2}, 0x40400000, v{af}")
        a.I(f"v_cos_f32 v{r0}, v{r0}")
        a.I(f"v_cvt_pk_bf16_f32 v{r2}, 0, v{r2}")
        a.I(f"v_lshlrev_b32_sdwa v{a4}, 2, v{meta} {sd}")
        a.I(f"v_mul_f32 v{r2}, 0.15915494, v{r2}")
        a.I(f"v_mul_f32 v{af}, v{r0}, v{r0}")
        a.I(f"v_cos_f32 v{r2}, v{r2}")
        a.I(f"v_fma_f32 v{af}, v{af}, 2.0, -1.0")
        a.I(f"v_lshlrev_b32 v{md}, 16, v{m01}")
        a.I(f"v_cvt_pk_bf16_f32 v{c01}, v{r0}, v{af}")
        a.I(f"v_cvt_pk_bf16_f32 v{c2l}, v{r2}, 0")
        a.I(f"v_and_b32 v{md + 1}, s{sMaskHi}, v{m01}")
        a.I(f"v_lshlrev_b32 v{c2h}, 16, v{c2l}")
        a.I(f"v_lshlrev_b32 v{md + 2}, 16, v{m23}")
        a.I(f"v_and_b32 v{md + 3}, s{sMaskHi}, v{m23}")
        a.I("s_waitcnt lgkmcnt(0)")
        for d in range(4):
            a.I(f"v_dot2_f32_bf16 v{g + d}, v{Gb + d // 2}, v{c2l if d % 2 == 0 else c2h}, 0")
        for d in range(4):
            a.I(f"v_dot2_f32_bf16 v{g + d}, v{Gq + d}, v{c01}, v{g + d}")
        for d in range(4):
            a.I(f"v_mul_f32 v{md + d}, v{md + d}, v{g + d}")
        a.I(f"v_add_f32 v{sm}, |v{md}|, |v{md + 1}|")
        a.I(f"v_add_f32 v{g}, |v{md + 2}|, |v{md + 3}|")
        a.I(f"v_add_f32 v{sm}, v{sm}, v{g}")
        a.I(f"v_cmp_ngt_f32 vcc, s{sLim}, v{sm}")
        for d in range(4):
            a.I(f"v_cvt_rpi_i32_f32 v{g + d}, v{md + d}")
        a.I(f"s_cbranch_vccz P2_FAST{n}")
        a.I("s_mov_b64 exec, vcc")
        for d in range(4):
            a.I(f"ds_add_f32 v{a4}, v{md + d} offset:{ACCF + d * S * 4}")
        a.I(f"s_andn2_b64 exec, s[{mr}:{mr + 1}], vcc")
        a.L(f"P2_FAST{n}")
        for d in range(4):
            a.I(f"ds_add_u32 v{a4}, v{g + d} offset:{ACC + d * S * 4}")
        a.L(f"P2_SK{n}")

    a.vwait("mdo1")
    vb = vT + 18
    for j in range(2):
        m01, m23 = vMDo + 2 * j, vMDo + 2 * j + 1
        a.I(f"v_lshlrev_b32 v{vb}, 16, v{m01}")
        a.I(f"v_and_b32 v{vb + 1}, s{sMaskHi}, v{m01}")
        a.I(f"v_lshlrev_b32 v{vb + 2}, 16, v{m23}")
        a.I(f"v_and_b32 v{vb + 3}, s{sMaskHi}, v{m23}")
        a.I(f"v_add_f32 v{vb}, |v{vb}|, |v{vb + 1}|")
        a.I(f"v_add_f32 v{vb + 2}, |v{vb + 2}|, |v{vb + 3}|")
        a.I(f"v_add_f32 v{vb + 4 + j}, v{vb}, v{vb + 2}")
    a.I(f"v_max_u32 v{vb}, v{vb + 4}, v{vb + 5}")
    scan_max(a, [vb])
    a.I(f"v_readlane_b32 s{sT}, v{vb}, 63")
    a.I(f"v_mov_b32 v{vb + 1}, {MISC}")
    a.I(f"v_mov_b32 v{vb}, s{sT}")
    a.I("s_mov_b64 exec, 1")
    a.I(f"ds_max_u32 v{vb + 1}, v{vb}")
    a.I("s_mov_b64 exec, -1")
    a.I("s_waitcnt lgkmcnt(0)")
    for j in range(4):
        base = sWt + 12 * j
        for q in range(12):
            a.I(f"s_mov_b32 s{32 + q}, s{base + q}")
        for l in range(3):
            r1 = 32 + 2 * l
            r2 = 32 + 2 * (3 + l)
            for d in range(4):
                pk = "s_pack_ll_b32_b16" if d % 2 == 0 else "s_pack_hh_b32_b16"
                a.I(f"{pk} s{base + l * 4 + d}, s{r1 + d // 2}, s{r2 + d // 2}")
    for r in range(8):
        if r % 2 == 0:
            a.I(f"s_lshl_b32 s{32 + r}, s{96 + r // 2}, 16")
        else:
            a.I(f"s_and_b32 s{32 + r}, s{96 + r // 2}, 0xffff0000")
    a.vwait("d1")
    vr = vT + 12
    for j in range(2):
        a.I(f"v_lshlrev_b32 v{vD + j}, 16, v{vD + j}")
        for r in range(8):
            a.I(f"v_subrev_f32 v{vr + r}, s{32 + r}, v{vD + j}")
        for r in range(8):
            a.I(f"v_cvt_pk_bf16_f32 v{vr + r}, 0, v{vr + r}")
        for r in range(8):
            a.I(f"v_mul_f32 v{vr + r}, v{vr + r}, v{vr + r}")
        for r in range(8):
            a.I(f"v_cvt_pk_bf16_f32 v{vr + r}, 0, v{vr + r}")
        for r in range(8):
            a.I(f"v_mul_f32 v{vr + r}, 0xc1200000, v{vr + r}")
        for r in range(8):
            a.I(f"v_cvt_pk_bf16_f32 v{vr + r}, 0, v{vr + r}")
        for r in range(8):
            a.I(f"v_mul_f32 v{vr + r}, 0x3fb8aa3b, v{vr + r}")
        for r in range(8):
            a.I(f"v_exp_f32 v{vr + r}, v{vr + r}")
        for q in range(4):
            a.I(f"v_cvt_pk_bf16_f32 v{vRBF + 4 * j + q}, v{vr + 2 * q}, v{vr + 2 * q + 1}")
    a.I("s_waitcnt lgkmcnt(0)")
    a.I("s_barrier")
    a.I(f"v_mov_b32 v{vT}, {MISC}")
    a.I(f"ds_read_b64 {v(vT + 2, 2)}, v{vT}")
    a.I("s_waitcnt lgkmcnt(0)")
    a.I(f"v_readfirstlane_b32 s{sT}, v{vT + 2}")
    a.I(f"v_readfirstlane_b32 s{sT + 1}, v{vT + 3}")
    a.I(f"s_or_b32 s{sT + 1}, s{sT + 1}, 1")
    a.I(f"s_flbit_i32_b32 s{sT + 1}, s{sT + 1}")
    a.I(f"s_sub_u32 s{sT + 1}, s{sT + 1}, 1")
    a.I(f"s_add_u32 s{sLim}, s{sT + 1}, 127")
    a.I(f"s_lshl_b32 s{sLim}, s{sLim}, 23")
    a.I(f"s_lshr_b32 s{sT}, s{sT}, 23")
    a.I(f"s_add_u32 s{sT}, s{sT}, 1")
    a.I(f"s_max_u32 s{sT}, s{sT}, 64")
    a.I(f"s_min_u32 s{sT}, s{sT}, 190")
    sSB, sISB = 40, 41
    a.I(f"s_add_u32 s{sSB}, s{sT + 1}, 254")
    a.I(f"s_sub_u32 s{sSB}, s{sSB}, s{sT}")
    a.I(f"s_sub_u32 s{sISB}, 254, s{sSB}")
    a.I(f"s_lshl_b32 s{sSB}, s{sSB}, 23")
    a.I(f"s_lshl_b32 s{sISB}, s{sISB}, 23")
    vg = vT + 4
    vs_ = vT + 16
    vp = vT + 20
    for j in range(2):
        if j == 1:
            a.I(f"s_cmp_ge_u32 s{sWid}, {(S - 1024 + 63) // 64}")
            a.I("s_cbranch_scc1 P2_GDONE")
        for q in range(4):
            for ld in range(12):
                src2 = "0" if q == 0 else f"v{vg + ld}"
                a.I(f"v_dot2_f32_bf16 v{vg + ld}, v{vRBF + 4 * j + q}, s{sWt + 12 * q + ld}, {src2}")
        for d in range(4):
            a.I(f"v_add_f32 v{vs_ + d}, |v{vg + d}|, |v{vg + 4 + d}|")
        for d in range(4):
            a.I(f"v_add_f32 v{vs_ + d}, v{vs_ + d}, |v{vg + 8 + d}|")
        for d in range(4):
            a.I(f"v_max_f32 v{vs_ + d}, 0x0d800000, v{vs_ + d}")
        for d in range(4):
            a.I(f"v_mul_f32 v{vU + 4 * j + d}, s{sISB}, v{vs_ + d}")
        for d in range(4):
            a.I(f"v_rcp_f32 v{vs_ + d}, v{vs_ + d}")
        for l in range(3):
            for d in range(4):
                a.I(f"v_mul_f32 v{vg + 4 * l + d}, v{vg + 4 * l + d}, v{vs_ + d}")
        for ld in range(12):
            a.I(f"v_mul_f32 v{vg + ld}, s{sSB}, v{vg + ld}")
        for d in range(4):
            a.I(f"v_cvt_pk_bf16_f32 v{vp + d}, v{vg + d}, v{vg + 4 + d}")
        a.I(f"v_cvt_pk_bf16_f32 v{vp + 4}, v{vg + 8}, v{vg + 9}")
        a.I(f"v_cvt_pk_bf16_f32 v{vp + 5}, v{vg + 10}, v{vg + 11}")
        a.I(f"v_lshlrev_b32 v{vT}, 4, v0")
        a.I(f"v_lshlrev_b32 v{vT + 1}, 3, v0")
        if j == 1:
            a.I(f"v_cmp_gt_u32 vcc, {S - 1024}, v0")
            a.I("s_mov_b64 exec, vcc")
            a.I(f"v_add_u32 v{vT}, 0x4000, v{vT}")
        a.I(f"ds_write_b128 v{vT}, {v(vp, 4)} offset:{GA}")
        a.I(f"ds_write_b64 v{vT + 1}, {v(vp + 4, 2)} offset:{GB + j * 8192}")
        if j == 1:
            a.I("s_mov_b64 exec, -1")
    a.L("P2_GDONE")
    a.vwait_all()
    stageA(0)
    a.I("s_waitcnt lgkmcnt(0)")
    a.I("s_barrier")
    nA = nbG + nbR
    a.L("P2_LOOP")
    for st in range(2):
        conds = []
        a.I(f"s_mov_b32 s{sIter}, 0")
        if nbG:
            a.I(f"s_sub_u32 s{sT}, s{sP0G}, {WGp}")
            a.I(f"s_cmp_lt_u32 s{sT}, s{sNG}")
            a.I(f"s_cselect_b32 s{sIter}, 1, s{sIter}")
        if nbR:
            a.I(f"s_sub_u32 s{sT}, s{sP0R}, {WRp}")
            a.I(f"s_cmp_lt_u32 s{sT}, s{sNR}")
            a.I(f"s_cselect_b32 s{sIter}, 1, s{sIter}")
        a.I(f"s_cmp_eq_u32 s{sIter}, 0")
        a.I("s_cbranch_scc1 P2_LOOP_END")
        if nbR:
            stageB(st, nbG)
        stageA(1 - st)
        for k in range(nbG):
            a.I(f"s_waitcnt vmcnt({nbG - 1 - k + nbR + nA})")
            b = vGd[st] + 4 * k
            comp(b, b + 1, b + 2, mask_reg(st, "G", k))
        for k in range(nbR):
            a.I(f"s_waitcnt vmcnt({nbR - 1 - k + nA})")
            comp(vRg + 2 * k, vRg + 2 * k + 1, vRd[st] + 2 * k + 1, mask_reg(st, "R", k))
        a.I("s_mov_b64 exec, -1")
    a.I("s_branch P2_LOOP")
    a.L("P2_LOOP_END")
    a.I(f"s_load_dwordx2 s[32:33], s[0:1], 56")
    a.I(f"s_load_dwordx2 s[34:35], s[0:1], 80")
    a.I(f"s_load_dwordx2 s[36:37], s[0:1], 88")
    a.I("s_waitcnt vmcnt(0) lgkmcnt(0)")
    a.I(f"s_load_dwordx16 s[48:63], s[32:33], 0")
    a.I(f"s_load_dwordx8 s[64:71], s[34:35], 0")
    srd(a, sX, 36, 37, E * 8)
    a.I("s_barrier")
    a.I("s_waitcnt lgkmcnt(0)")
    for q in range(4):
        for d in range(4):
            pk = "s_pack_ll_b32_b16" if d % 2 == 0 else "s_pack_hh_b32_b16"
            a.I(f"{pk} s{72 + q * 4 + d}, s{48 + 4 * q + d // 2}, s{48 + 4 * q + 2 + d // 2}")
    for h in range(2):
        for d in range(4):
            pk = "s_pack_ll_b32_b16" if d % 2 == 0 else "s_pack_hh_b32_b16"
            a.I(f"{pk} s{88 + h * 4 + d}, s{64 + 4 * h + d // 2}, s{64 + 4 * h + 2 + d // 2}")
    a.I(f"s_mul_i32 s{sT}, s{sB}, {S * 8}")
    for j in range(2):
        if j == 1:
            a.I(f"s_cmp_ge_u32 s{sWid}, {(S - 1024 + 63) // 64}")
            a.I("s_cbranch_scc1 P2_END")
            a.I(f"v_cmp_gt_u32 vcc, {S - 1024}, v0")
            a.I("s_mov_b64 exec, vcc")
        q = vT + 4; f = vT + 8; up = vT + 12; rw = vT + 16; pk = vT + 20
        a.I(f"v_lshlrev_b32 v{vT}, 2, v0")
        for d in range(4):
            a.I(f"ds_read_b32 v{q + d}, v{vT} offset:{ACC + d * S * 4 + j * 4096}")
        for d in range(4):
            a.I(f"ds_read_b32 v{f + d}, v{vT} offset:{ACCF + d * S * 4 + j * 4096}")
        for qq in range(4):
            for d in range(4):
                src2 = "0" if qq == 0 else f"v{rw + d}"
                a.I(f"v_dot2_f32_bf16 v{rw + d}, v{vRBF + 4 * j + qq}, s{72 + qq * 4 + d}, {src2}")
        a.I("s_waitcnt lgkmcnt(0)")
        for d in range(4):
            a.I(f"v_cvt_f32_i32 v{q + d}, v{q + d}")
        for d in range(4):
            a.I(f"v_add_f32 v{q + d}, v{q + d}, v{f + d}")
        for d in range(4):
            a.I(f"v_mul_f32 v{q + d}, v{q + d}, v{vU + 4 * j + d}")
        a.I(f"v_cvt_pk_bf16_f32 v{pk}, v{q}, v{q + 1}")
        a.I(f"v_cvt_pk_bf16_f32 v{pk + 1}, v{q + 2}, v{q + 3}")
        for d in range(4):
            a.I(f"v_cvt_pk_bf16_f32 v{rw + d}, 0, v{rw + d}")
        for d in range(4):
            a.I(f"v_dot2_f32_bf16 v{up + d}, v{pk}, s{88 + d}, 0")
        for d in range(4):
            a.I(f"v_dot2_f32_bf16 v{up + d}, v{pk + 1}, s{92 + d}, v{up + d}")
        m01, m23 = vMrow + 2 * j, vMrow + 2 * j + 1
        a.I(f"v_lshlrev_b32 v{f}, 16, v{m01}")
        a.I(f"v_and_b32 v{f + 1}, s{sMaskHi}, v{m01}")
        a.I(f"v_lshlrev_b32 v{f + 2}, 16, v{m23}")
        a.I(f"v_and_b32 v{f + 3}, s{sMaskHi}, v{m23}")
        for d in range(4):
            a.I(f"v_cvt_pk_bf16_f32 v{up + d}, 0, v{up + d}")
        for d in range(4):
            a.I(f"v_mul_f32 v{up + d}, v{up + d}, v{rw + d}")
        for d in range(4):
            a.I(f"v_cvt_pk_bf16_f32 v{up + d}, 0, v{up + d}")
        for d in range(4):
            a.I(f"v_add_f32 v{up + d}, v{up + d}, v{f + d}")
        a.I(f"v_cvt_pk_bf16_f32 v{pk}, v{up}, v{up + 1}")
        a.I(f"v_cvt_pk_bf16_f32 v{pk + 1}, v{up + 2}, v{up + 3}")
        a.I(f"v_lshlrev_b32 v{vT}, 3, v0")
        if j == 1:
            a.I(f"s_add_u32 s{sT}, s{sT}, 8192")
        a.I(f"buffer_store_dwordx2 {v(pk, 2)}, v{vT}, {s(sX, 4)}, s{sT} offen")
    a.L("P2_END")
    a.I("s_endpgm")
    return a, lds


HEADER = """; gemnet triplet message passing: two launches
;  p2: one workgroup per bucket accumulates in LDS and writes the output
"""


def kd(name, nv, ns):
    acc = (nv + 3) // 4 * 4
    return f""".amdhsa_kernel {name}
  .amdhsa_next_free_vgpr {nv}
  .amdhsa_next_free_sgpr {ns}
  .amdhsa_accum_offset {acc}
  .amdhsa_group_segment_fixed_size 0
  .amdhsa_kernarg_size 112
  .amdhsa_user_sgpr_count 2
  .amdhsa_user_sgpr_kernarg_segment_ptr 1
  .amdhsa_system_sgpr_workgroup_id_x 1
  .amdhsa_float_denorm_mode_32 3
  .amdhsa_float_denorm_mode_16_64 3
.end_amdhsa_kernel
"""


def build(c):
    p1, lds1 = gen_p1(c)
    p2, lds2 = gen_p2(c)
    n1 = p1.fix_hazards()
    n2 = p2.fix_hazards()
    v1, s1 = p1.max_regs()
    v2, s2 = p2.max_regs()
    out = HEADER
    out += f"; @launch kernel=gp1_kernel grid=({c.NC},1,1) block=({c.TPB1},1,1) lds={lds1}\n"
    out += f"; @launch kernel=gp2_kernel grid=({NB},1,1) block=(1024,1,1) lds={lds2}\n"
    out += '.amdgcn_target "amdgcn-amd-amdhsa--gfx950"\n.text\n'
    for name, k in (("gp1_kernel", p1), ("gp2_kernel", p2)):
        out += f".globl {name}\n.p2align 8\n.type {name},@function\n{name}:\n" + k.text()
    out += '.section .rodata,"a"\n.p2align 6\n'
    out += kd("gp1_kernel", v1, s1)
    out += ".p2align 6\n"
    out += kd("gp2_kernel", v2, s2)
    info = f"p1: vgpr {v1} sgpr {s1} lds {lds1} nops {n1}; p2: vgpr {v2} sgpr {s2} lds {lds2} nops {n2}; NC {c.NC} CB {c.CB} CPW {c.CPW} EPL {c.EPL}"
    return out, info


if __name__ == "__main__":
    kw = {}
    outp = "standalone__molecular_angular_gemnet__graph.s"
    for arg in sys.argv[1:]:
        k, val = arg.split("=", 1)
        if k == "out":
            outp = val
            continue
        try:
            val = int(val)
        except ValueError:
            pass
        kw[k] = val
    c = Cfg(**kw)
    txt, info = build(c)
    open(outp, "w").write(txt)
    print(info)
```

```python
import re

TRANS = {"v_exp_f32", "v_log_f32", "v_rcp_f32", "v_rsq_f32", "v_sqrt_f32", "v_sin_f32", "v_cos_f32",
         "v_rcp_iflag_f32"}

_reg_re = re.compile(r"^(-?\|?)([vs])(\d+)\|?$")
_rng_re = re.compile(r"^([vs])\[(\d+):(\d+)\]$")


def parse_regs(tok):
    tok = tok.strip()
    m = _reg_re.match(tok)
    if m:
        return {(m.group(2), int(m.group(3)))}
    m = _rng_re.match(tok)
    if m:
        return {(m.group(1), i) for i in range(int(m.group(2)), int(m.group(3)) + 1)}
    if tok == "vcc":
        return {("s", 106), ("s", 107)}
    if tok == "exec":
        return {("s", 126), ("s", 127)}
    return set()


class Ins:
    def __init__(self, text):
        self.text = text
        t = text.split(";")[0].strip()
        parts = t.split(None, 1)
        self.op = parts[0]
        rest = parts[1] if len(parts) > 1 else ""
        ops = [o.strip() for o in rest.split(",")] if rest else []
        self.mods = ""
        if ops:
            last = ops[-1].split(None, 1)
            ops[-1] = last[0]
            if len(last) > 1:
                self.mods = last[1]
        self.ops = ops
        op = self.op
        base = op
        for suf in ("_dpp", "_sdwa", "_e32", "_e64"):
            if base.endswith(suf):
                base = base[: -len(suf)]
        self.base = base
        self.is_valu = op.startswith("v_")
        self.is_dpp = op.endswith("_dpp")
        self.is_ds = op.startswith("ds_")
        self.is_vmem = op.startswith("buffer_") or op.startswith("global_")
        self.is_salu = op.startswith("s_")
        self.is_trans = base in TRANS
        self.is_dot = base.startswith("v_dot")
        self.dst = set()
        self.src = set()
        self.srcs = []
        if self.is_valu:
            self.dst = parse_regs(ops[0])
            self.srcs = [parse_regs(o) for o in ops[1:]]
            if base in ("v_fmac_f32", "v_dot2c_f32_bf16"):
                self.srcs.append(set(self.dst))
            if self.is_dpp:
                self.srcs.append(set(self.dst))
            if base.startswith("v_cndmask") and len(ops) == 3:
                self.srcs.append(parse_regs("vcc"))
        elif self.is_ds:
            if "read" in op or "_rtn" in op or "permute" in op or "swizzle" in op:
                self.dst = parse_regs(ops[0])
                self.srcs = [parse_regs(o) for o in ops[1:]]
            else:
                self.srcs = [parse_regs(o) for o in ops]
        elif self.is_vmem:
            if "load" in op:
                self.dst = parse_regs(ops[0])
                self.srcs = [parse_regs(o) for o in ops[1:]]
            else:
                self.srcs = [parse_regs(o) for o in ops]
        elif self.is_salu:
            if op.startswith("s_cmp") or op.startswith("s_cbranch") or op in (
                    "s_branch", "s_waitcnt", "s_barrier", "s_nop", "s_endpgm", "s_setprio", "s_sleep"):
                self.srcs = [parse_regs(o) for o in ops]
            else:
                self.dst = parse_regs(ops[0]) if ops else set()
                self.srcs = [parse_regs(o) for o in ops[1:]]
        for s in self.srcs:
            self.src |= s
        self.wide_store = self.is_vmem and "store" in op and (op.endswith("x4") or op.endswith("x3"))
        self.states = 1
        if op == "s_nop":
            self.states = int(ops[0], 0) + 1

    @property
    def is_branch(self):
        return self.op.startswith("s_cbranch") or self.op == "s_branch"


def required(p, c):
    need = 0
    pv = {r for r in p.dst if r[0] == "v"}
    ps = {r for r in p.dst if r[0] == "s"}
    if p.is_valu:
        if p.is_trans and c.is_valu and not c.is_trans and (pv & c.src):
            need = max(need, 1)
        if p.is_dot:
            if c.is_valu or c.is_ds or c.is_vmem:
                if c.base == p.base:
                    ab = set()
                    for s in c.srcs[:2]:
                        ab |= s
                    if pv & ab:
                        need = max(need, 3)
                else:
                    if (pv & c.src) or (pv & c.dst):
                        need = max(need, 3)
        if c.is_dpp and (pv & c.src):
            need = max(need, 2)
        if c.base in ("v_readlane_b32", "v_readfirstlane_b32") and c.srcs and (pv & c.srcs[0]):
            need = max(need, 1)
        if ps:
            if c.is_valu and (ps & c.src):
                need = max(need, 2)
                if c.base in ("v_readlane_b32", "v_writelane_b32") and len(c.srcs) > 1 and (ps & c.srcs[1]):
                    need = max(need, 4)
            if c.is_vmem and (ps & c.src):
                need = max(need, 5)
    if p.wide_store:
        data = p.srcs[0]
        if data & c.dst:
            need = max(need, 2 if c.is_valu else 1)
    return need


class Asm:
    def __init__(self):
        self.items = []
        self.vm = []

    def I(self, text):
        for line in text.strip().split("\n"):
            line = line.strip()
            if not line or line.startswith(";"):
                continue
            self.items.append(Ins(line))

    def L(self, name):
        self.items.append(("label", name))

    def raw(self, text):
        self.items.append(("raw", text))

    def C(self, text):
        self.items.append(("raw", "    ; " + text))

    def vmem(self, text, tag=None):
        self.I(text)
        self.vm.append(tag)

    def vwait(self, tag, trim=True):
        if tag not in self.vm:
            return
        idx = max(i for i, t in enumerate(self.vm) if t == tag)
        n = len(self.vm) - 1 - idx
        assert n <= 63
        self.I(f"s_waitcnt vmcnt({n})")
        if trim:
            self.vm = self.vm[idx + 1:]

    def vwait_all(self):
        self.I("s_waitcnt vmcnt(0)")
        self.vm = []

    def fix_hazards(self):
        items = self.items
        out = []
        label_pos = {}
        for i, it in enumerate(items):
            if isinstance(it, tuple) and it[0] == "label":
                label_pos[it[1]] = i
        branch_to = {}
        for i, it in enumerate(items):
            if isinstance(it, Ins) and it.is_branch:
                branch_to.setdefault(it.ops[0], []).append(i)
        extra = {}

        def preds(i):
            res = []
            j = i - 1
            while j >= 0:
                it = items[j]
                if isinstance(it, tuple):
                    if it[0] == "label":
                        for b in branch_to.get(it[1], []):
                            res.append(b)
                    j -= 1
                    continue
                if it.op in ("s_branch", "s_endpgm"):
                    break
                res.append(j)
                break
            return res

        ninserted = 0
        for i, it in enumerate(items):
            if not isinstance(it, Ins):
                continue
            need = 0
            stack = [(p, 0) for p in preds(i)]
            seen = {}
            while stack:
                p, d = stack.pop()
                if d >= 5:
                    continue
                if p in seen and seen[p] <= d:
                    continue
                seen[p] = d
                pi = items[p]
                r = required(pi, it)
                if r - d > need:
                    need = r - d
                nd = d + pi.states + extra.get(p, 0)
                for q in preds(p):
                    stack.append((q, nd))
            if need > 0:
                extra[i] = need
                ninserted += 1
        for i, it in enumerate(items):
            if i in extra:
                out.append(Ins(f"s_nop {extra[i] - 1}"))
            out.append(it)
        self.items = out
        return ninserted

    def text(self):
        lines = []
        for it in self.items:
            if isinstance(it, Ins):
                lines.append("    " + it.text)
            elif it[0] == "label":
                lines.append(it[1] + ":")
            else:
                lines.append(it[1])
        return "\n".join(lines) + "\n"

    def max_regs(self):
        mv, ms = -1, -1
        for it in self.items:
            if isinstance(it, Ins):
                for k, n in it.dst | it.src:
                    if k == "v":
                        mv = max(mv, n)
                    elif n < 104:
                        ms = max(ms, n)
        return mv + 1, ms + 1


class Alloc:
    def __init__(self, kind, start, limit):
        self.kind, self.next, self.limit = kind, start, limit

    def get(self, n=1, align=1):
        self.next = (self.next + align - 1) // align * align
        r = self.next
        self.next += n
        assert self.next <= self.limit, f"out of {self.kind} regs"
        return r


def v(i, n=1):
    return f"v{i}" if n == 1 else f"v[{i}:{i + n - 1}]"


def s(i, n=1):
    return f"s{i}" if n == 1 else f"s[{i}:{i + n - 1}]"
```

```python
import sys, os
sys.path.insert(0, os.path.dirname(__file__))
from asmlib import Asm, Alloc, v, s

E = 400000
T = 6400000
NB = 256
S = 1568
MAGIC = 2739138
KFIX = 16

WS_OFFS = 0x6000000
WS_MDT = 0x7000000
WS_GT = 0x7800000
GT_BYTES = 0x240000


class Cfg:
    def __init__(self, **kw):
        self.FG = 2
        self.GPT = 5
        self.TPB1 = 320
        self.G1 = 512
        self.ld_in = "nt"
        self.st_rec = ""
        self.ld_rec = ""
        self.nbG = 14
        self.nbR = 14
        self.sub = 8
        self.lead = 3
        self.g0 = 0
        self.lag = 3
        self.cpb = 1
        self.kinds = 1
        self.kbit = 3
        self.lead2 = 4
        self.stamps = 0
        self.nogather = 0
        self.nocomp = 0
        self.__dict__.update(kw)
        self.C = self.TPB1 * self.GPT * 4
        self.NC = (T + self.C - 1) // self.C
        rem = T - (self.NC - 1) * self.C
        assert rem % (self.TPB1 * 4) == 0
        self.LASTG = rem // (self.TPB1 * 4)
        self.CB = self.C // 4 * (12 * self.FG + 8 * (4 - self.FG))
        assert self.CB % 16 == 0
        assert self.NC * self.CB <= WS_OFFS
        self.CPW = (self.NC + 15) // 16
        self.EPL = (self.CPW + 63) // 64
        self.CPW = (self.CPW + self.EPL - 1) // self.EPL * self.EPL


def srd(a, d, base_lo, base_hi, nbytes, add=0):
    if add:
        a.I(f"s_add_u32 s{d}, s{base_lo}, {hex(add)}")
        a.I(f"s_addc_u32 s{d + 1}, s{base_hi}, 0")
    else:
        a.I(f"s_mov_b32 s{d}, s{base_lo}")
        a.I(f"s_mov_b32 s{d + 1}, s{base_hi}")
    a.I(f"s_mov_b32 s{d + 2}, {hex(nbytes)}")
    a.I(f"s_mov_b32 s{d + 3}, 0x20000")


class Stamper:
    def __init__(self, a, on, vreg, sreg):
        self.a, self.on, self.v, self.s, self.n = a, on, vreg, sreg, 0
        self.names = []

    def __call__(self, name):
        if not self.on:
            return
        a = self.a
        a.I(f"s_memtime s[{self.s}:{self.s + 1}]")
        a.I("s_waitcnt lgkmcnt(0)")
        a.I(f"v_writelane_b32 v{self.v}, s{self.s}, {self.n}")
        self.names.append(name)
        self.n += 1

    def flush(self, sWid, nwaves, wsoff, ssrd, vtmp):
        if not self.on:
            return
        a = self.a
        a.I("s_mov_b64 exec, -1")
        a.I(f"s_load_dwordx2 s[{self.s}:{self.s + 1}], s[0:1], 104")
        a.I("s_waitcnt lgkmcnt(0)")
        srd(a, ssrd, self.s, self.s + 1, 0x1000000, wsoff)
        a.I(f"s_mul_i32 s{self.s}, s2, {nwaves}")
        a.I(f"s_add_u32 s{self.s}, s{self.s}, s{sWid}")
        a.I(f"s_lshl_b32 s{self.s}, s{self.s}, 8")
        a.I(f"v_and_b32 v{vtmp}, 63, v0")
        a.I(f"v_lshlrev_b32 v{vtmp}, 2, v{vtmp}")
        a.I(f"buffer_store_dword v{self.v}, v{vtmp}, s[{ssrd}:{ssrd + 3}], s{self.s} offen")
        print("stamps:", " ".join(self.names))


def scan(a, regs, op):
    for sh in (1, 2, 4, 8):
        for r in regs:
            a.I(f"{op}_dpp v{r}, v{r}, v{r} row_shr:{sh} row_mask:0xf bank_mask:0xf bound_ctrl:0")
    for r in regs:
        a.I(f"{op}_dpp v{r}, v{r}, v{r} row_bcast:15 row_mask:0xa bank_mask:0xf")
    for r in regs:
        a.I(f"{op}_dpp v{r}, v{r}, v{r} row_bcast:31 row_mask:0xc bank_mask:0xf")


def scan_add(a, regs):
    scan(a, regs, "v_add_u32")


def scan_max(a, regs):
    scan(a, regs, "v_max_u32")


def md_dots(a, m01, m23, W, t):
    for d in range(4):
        a.I(f"v_dot2_f32_bf16 v{t + d}, v{m23}, s{W + 2 * d + 1}, 0")
    for d in range(4):
        a.I(f"v_dot2_f32_bf16 v{t + d}, v{m01}, s{W + 2 * d}, v{t + d}")


def md_pack(a, t, out01, out23):
    a.I(f"v_cvt_pk_bf16_f32 v{out01}, v{t}, v{t + 1}")
    a.I(f"v_cvt_pk_bf16_f32 v{out23}, v{t + 2}, v{t + 3}")


def pack4(a, dst4, tmp):
    for t in range(4):
        a.I(f"s_mov_b32 s{tmp + t}, s{dst4[t]}")
    for d in range(4):
        pk = "s_pack_ll_b32_b16" if d % 2 == 0 else "s_pack_hh_b32_b16"
        a.I(f"{pk} s{dst4[d]}, s{tmp + d // 2}, s{tmp + 2 + d // 2}")


def gen_p1(c):
    a = Asm()
    FG, GPT, TPB, C, NC, CB, G1 = c.FG, c.GPT, c.TPB1, c.C, c.NC, c.CB, c.G1
    NWV = TPB // 64
    NGc = C * FG // 4
    CNT = CB
    WT = 2048
    lds = CB + 2048 + 16
    va = Alloc("v", 1, 256)
    vT8 = va.get(); vT16 = va.get(); vOne = va.get()
    vCnt8 = va.get()
    vOffA = va.get()
    vZ = va.get(2, 2)
    pII = va.get(4 * GPT, 2)
    pIO = va.get(4 * GPT, 2)
    pAN = va.get(2 * GPT, 2)
    vII, vME = pII, pIO
    pool0 = va.get(0, 2)
    vMD = va.get(max(2 * GPT * FG, 44 - 8 * GPT, 2), 2)
    vKA = va.get(4 * GPT, 2)
    vRK = va.get(4 * GPT, 2)
    pool1 = va.get(0, 2)
    vT = va.get(8, 2)
    tt = pool0
    assert pool1 - pool0 >= 44
    sChunk, sWid, sMaskHi, sMagic, sNegS2, sO4, sO2, sPre, sRecOff = 3, 4, 5, 6, 7, 8, 9, 10, 11
    sTmp = 14
    sIN, sOUT, sANG, sM = 16, 20, 24, 28
    sW = 32
    sREC, sOFF = 40, 44
    sWt = 48
    sCen = 96
    sPT = 8
    a.I(f"s_cmp_ge_u32 s2, {G1}")
    a.I("s_cbranch_scc1 P1_END")
    st_ = Stamper(a, c.stamps, va.get() if c.stamps else 0, 100)
    if c.stamps:
        a.I(f"v_mov_b32 v{st_.v}, 0")
    st_("start")
    a.I("s_load_dwordx4 s[48:51], s[0:1], 0")
    a.I("s_load_dwordx2 s[52:53], s[0:1], 16")
    a.I("s_load_dwordx4 s[56:59], s[0:1], 32")
    a.I("s_load_dwordx4 s[60:63], s[0:1], 56")
    a.I("s_load_dwordx2 s[64:65], s[0:1], 72")
    a.I("s_load_dwordx2 s[12:13], s[0:1], 104")
    a.I(f"v_lshlrev_b32 v{vT8}, 3, v0")
    a.I(f"v_lshlrev_b32 v{vT16}, 4, v0")
    a.I(f"v_mov_b32 v{vZ}, 0")
    a.I(f"v_mov_b32 v{vZ + 1}, 0")
    a.I(f"v_mov_b32 v{vOne}, 1")
    a.I(f"v_add_u32 v{vCnt8}, {CNT}, v{vT8}")
    a.I(f"v_lshrrev_b32 v{vT}, 6, v0")
    a.I(f"v_readfirstlane_b32 s{sWid}, v{vT}")
    a.I(f"s_mov_b32 s{sChunk}, s2")
    a.I(f"s_mov_b32 s{sMaskHi}, 0xffff0000")

    def zero_counters(lbl):
        if TPB > 256:
            a.I(f"s_cmp_ge_u32 s{sWid}, 4")
            a.I(f"s_cbranch_scc1 {lbl}")
        a.I(f"ds_write_b64 v{vCnt8}, {v(vZ, 2)}")
        a.L(lbl)
    zero_counters("P1_Z0")
    a.I(f"v_lshrrev_b32 v{vOffA}, 2, v0")
    a.I(f"s_mov_b32 s{sTmp}, {NC * 32}")
    a.I(f"v_mul_lo_u32 v{vOffA}, v{vOffA}, s{sTmp}")
    a.I(f"v_and_b32 v{vT}, 3, v0")
    a.I(f"v_lshl_add_u32 v{vOffA}, v{vT}, 3, v{vOffA}")
    a.I("s_waitcnt lgkmcnt(0)")
    srd(a, sIN, 50, 51, T * 4)
    srd(a, sOUT, 52, 53, T * 4)
    srd(a, sANG, 56, 57, T * 2)
    pol = (" " + c.ld_in) if c.ld_in else ""

    def issue_inputs(schunk):
        a.I(f"s_mul_i32 s{sO4}, s{schunk}, {C * 4}")
        a.I(f"s_mul_i32 s{sO2}, s{schunk}, {C * 2}")
        for g in range(GPT):
            a.vmem(f"buffer_load_dwordx4 {v(pII + 4 * g, 4)}, v{vT16}, {s(sIN, 4)}, s{sO4} offen{pol}", f"ii{g}")
            a.vmem(f"buffer_load_dwordx4 {v(pIO + 4 * g, 4)}, v{vT16}, {s(sOUT, 4)}, s{sO4} offen{pol}", f"io{g}")
            a.vmem(f"buffer_load_dwordx2 {v(pAN + 2 * g, 2)}, v{vT8}, {s(sANG, 4)}, s{sO2} offen{pol}", f"an{g}")
            if g + 1 < GPT:
                a.I(f"s_add_u32 s{sO4}, s{sO4}, {TPB * 16}")
                a.I(f"s_add_u32 s{sO2}, s{sO2}, {TPB * 8}")

    issue_inputs(sChunk)
    srd(a, sM, 48, 49, E * 8)
    RPW = (E + G1 - 1) // G1
    NR_ = (RPW + TPB - 1) // TPB
    assert NR_ <= 4
    vMRa = tt
    vMR = tt + 4
    vS = tt + 12
    a.I(f"s_mul_i32 s{sMagic}, s2, {RPW * 8}")
    for r in range(NR_):
        lim = RPW - r * TPB
        a.I(f"v_add_u32 v{vMRa + r}, {r * TPB * 8}, v{vT8}")
        if lim < TPB:
            a.I(f"v_cmp_gt_u32 vcc, {lim}, v0")
            a.I(f"v_mov_b32 v{vT}, 0x7ffffff0")
            a.I(f"v_cndmask_b32 v{vMRa + r}, v{vT}, v{vMRa + r}, vcc")
        a.vmem(f"buffer_load_dwordx2 {v(vMR + 2 * r, 2)}, v{vMRa + r}, {s(sM, 4)}, s{sMagic} offen", f"mr{r}")
    a.I(f"v_and_b32 v{vT}, 0x1f8, v{vT8}")
    a.vmem(f"buffer_load_dwordx2 {v(vS, 2)}, v{vT}, {s(sM, 4)}, 0 offen", "smp")
    a.I(f"s_mov_b32 s{sTmp}, s60")
    a.I(f"s_mov_b32 s{sTmp + 1}, s61")
    a.I("s_mov_b32 s10, s62")
    a.I("s_mov_b32 s11, s63")
    a.I("s_load_dwordx8 s[40:47], s[64:65], 0")
    a.I(f"s_load_dwordx4 s[{sCen}:{sCen + 3}], s[58:59], 0")
    a.I(f"s_load_dwordx16 s[{sWt}:{sWt + 15}], s[10:11], 0")
    a.I(f"s_load_dwordx16 s[{sWt + 16}:{sWt + 31}], s[10:11], 64")
    a.I(f"s_load_dwordx16 s[{sWt + 32}:{sWt + 47}], s[10:11], 128")
    a.I("s_waitcnt lgkmcnt(0)")
    r = 40
    for d in range(4):
        pk = "s_pack_ll_b32_b16" if d % 2 == 0 else "s_pack_hh_b32_b16"
        a.I(f"{pk} s{sW + 2 * d}, s{r + d // 2}, s{r + 2 + d // 2}")
        a.I(f"{pk} s{sW + 2 * d + 1}, s{r + 4 + d // 2}, s{r + 6 + d // 2}")
    sMDT, sGT = 40, 44
    srd(a, sMDT, 12, 13, E * 8, WS_MDT)
    srd(a, sGT, 12, 13, GT_BYTES, WS_GT)
    NTW = (1024 + G1 - 1) // G1
    EPW = NTW * 64
    assert NTW <= NWV and 1024 % NTW == 0
    a.I(f"s_cmp_lt_u32 s{sWid}, {NWV - NTW}")
    a.I("s_cbranch_scc1 P1_TB1")
    a.I(f"s_cmp_ge_u32 s2, {(1024 + NTW - 1) // NTW}")
    a.I("s_cbranch_scc1 P1_TB1")

    def ws_reg(j, l, d):
        base = sWt + 12 * j
        return [base + 2 * l, base + 2 * l + 1, base + 6 + 2 * l, base + 6 + 2 * l + 1][d]
    for j in range(4):
        for l in range(3):
            pack4(a, [ws_reg(j, l, t) for t in range(4)], sPT)
    vIdx = tt + 14
    vDd = tt + 15
    vr = tt + 16
    vRBF = tt + 24
    vg = tt + 28
    vs_ = tt + 40
    a.I(f"s_mul_i32 s{sPT}, s2, {EPW}")
    a.I(f"v_subrev_u32 v{vIdx}, {(NWV - NTW) * 64}, v0")
    a.I(f"v_add_u32 v{vIdx}, s{sPT}, v{vIdx}")
    a.I(f"v_lshlrev_b32 v{vDd}, 16, v{vIdx}")
    for r in range(8):
        if r % 2 == 0:
            a.I(f"s_lshl_b32 s{sPT + r % 4}, s{sCen + r // 2}, 16")
        else:
            a.I(f"s_and_b32 s{sPT + r % 4}, s{sCen + r // 2}, 0xffff0000")
        a.I(f"v_subrev_f32 v{vr + r}, s{sPT + r % 4}, v{vDd}")
    for r in range(8):
        a.I(f"v_cvt_pk_bf16_f32 v{vr + r}, 0, v{vr + r}")
    for r in range(8):
        a.I(f"v_mul_f32 v{vr + r}, v{vr + r}, v{vr + r}")
    for r in range(8):
        a.I(f"v_cvt_pk_bf16_f32 v{vr + r}, 0, v{vr + r}")
    for r in range(8):
        a.I(f"v_mul_f32 v{vr + r}, 0xc1200000, v{vr + r}")
    for r in range(8):
        a.I(f"v_cvt_pk_bf16_f32 v{vr + r}, 0, v{vr + r}")
    for r in range(8):
        a.I(f"v_mul_f32 v{vr + r}, 0x3fb8aa3b, v{vr + r}")
    for r in range(8):
        a.I(f"v_exp_f32 v{vr + r}, v{vr + r}")
    for q in range(4):
        a.I(f"v_cvt_pk_bf16_f32 v{vRBF + q}, v{vr + 2 * q}, v{vr + 2 * q + 1}")
    for q in range(4):
        for l in range(3):
            for d in range(4):
                src2 = "0" if q == 0 else f"v{vg + 4 * l + d}"
                a.I(f"v_dot2_f32_bf16 v{vg + 4 * l + d}, v{vRBF + q}, s{ws_reg(q, l, d)}, {src2}")
    a.I(f"s_load_dwordx16 s[{sWt}:{sWt + 15}], s[{sTmp}:{sTmp + 1}], 0")
    for d in range(4):
        a.I(f"v_add_f32 v{vs_ + d}, |v{vg + d}|, |v{vg + 4 + d}|")
    for d in range(4):
        a.I(f"v_add_f32 v{vs_ + d}, v{vs_ + d}, |v{vg + 8 + d}|")
    for d in range(4):
        a.I(f"v_frexp_exp_i32_f32 v{vs_ + d}, v{vs_ + d}")
    a.I(f"s_movk_i32 s{sPT}, -60")
    for d in range(4):
        a.I(f"v_med3_i32 v{vs_ + d}, v{vs_ + d}, s{sPT}, 60")
    a.vwait("smp", trim=False)
    md_dots(a, vS, vS + 1, sW, vr)
    md_pack(a, vr, vS, vS + 1)
    a.I(f"v_lshlrev_b32 v{vr}, 16, v{vS}")
    a.I(f"v_and_b32 v{vr + 1}, s{sMaskHi}, v{vS}")
    a.I(f"v_lshlrev_b32 v{vr + 2}, 16, v{vS + 1}")
    a.I(f"v_and_b32 v{vr + 3}, s{sMaskHi}, v{vS + 1}")
    a.I(f"v_add_f32 v{vr}, |v{vr}|, |v{vr + 1}|")
    a.I(f"v_add_f32 v{vr + 2}, |v{vr + 2}|, |v{vr + 3}|")
    a.I(f"v_add_f32 v{vr}, v{vr}, v{vr + 2}")
    scan_max(a, [vr])
    a.I(f"v_readlane_b32 s{sPT}, v{vr}, 63")
    a.I(f"s_lshr_b32 s{sPT}, s{sPT}, 23")
    a.I(f"s_add_u32 s{sPT}, s{sPT}, 1")
    a.I(f"s_max_u32 s{sPT}, s{sPT}, 90")
    a.I(f"s_min_u32 s{sPT}, s{sPT}, 190")
    a.I(f"s_sub_i32 s{sPT}, {KFIX + 127}, s{sPT}")
    for d in range(4):
        a.I(f"v_sub_u32 v{vs_ + d}, s{sPT}, v{vs_ + d}")
    for l in range(3):
        for d in range(4):
            a.I(f"v_ldexp_f32 v{vg + 4 * l + d}, v{vg + 4 * l + d}, v{vs_ + d}")
    vSH = vDd
    a.I(f"v_and_b32 v{vSH}, 0xff, v{vs_}")
    for d in range(1, 4):
        a.I(f"v_and_b32 v{vs_ + d}, 0xff, v{vs_ + d}")
        a.I(f"v_lshl_or_b32 v{vSH}, v{vs_ + d}, {8 * d}, v{vSH}")
    for d in range(4):
        a.I(f"v_cvt_pk_bf16_f32 v{vr + d}, v{vg + d}, v{vg + 4 + d}")
    a.I(f"v_cvt_pk_bf16_f32 v{vr + 4}, v{vg + 8}, v{vg + 9}")
    a.I(f"v_cvt_pk_bf16_f32 v{vr + 5}, v{vg + 10}, v{vg + 11}")
    a.I("s_waitcnt lgkmcnt(0)")
    for q in range(4):
        pack4(a, [sWt + 4 * q + t for t in range(4)], sPT)
    for q in range(4):
        for d in range(4):
            src2 = "0" if q == 0 else f"v{vs_ + d}"
            a.I(f"v_dot2_f32_bf16 v{vs_ + d}, v{vRBF + q}, s{sWt + q * 4 + d}, {src2}")
    a.I(f"v_lshlrev_b32 v{vg}, 4, v{vIdx}")
    a.I(f"v_lshlrev_b32 v{vg + 1}, 2, v{vIdx}")
    a.I(f"s_mov_b32 s{sPT}, 0x100000")
    a.I(f"s_mov_b32 s{sPT + 1}, 0x200000")
    a.I(f"v_cvt_pk_bf16_f32 v{vr + 6}, v{vs_}, v{vs_ + 1}")
    a.I(f"v_cvt_pk_bf16_f32 v{vr + 7}, v{vs_ + 2}, v{vs_ + 3}")
    a.I(f"buffer_store_dwordx4 {v(vr, 4)}, v{vg}, {s(sGT, 4)}, 0 offen")
    a.I(f"buffer_store_dwordx4 {v(vr + 4, 4)}, v{vg}, {s(sGT, 4)}, s{sPT} offen")
    a.I(f"buffer_store_dword v{vSH}, v{vg + 1}, {s(sGT, 4)}, s{sPT + 1} offen")
    a.L("P1_TB1")
    a.vwait_all()
    for r in range(NR_):
        md_dots(a, vMR + 2 * r, vMR + 2 * r + 1, sW, vT + 4 * (r % 2))
        md_pack(a, vT + 4 * (r % 2), vMR + 2 * r, vMR + 2 * r + 1)
        a.I(f"buffer_store_dwordx2 {v(vMR + 2 * r, 2)}, v{vMRa + r}, {s(sMDT, 4)}, s{sMagic} offen")
    a.I("s_nop 4")
    srd(a, sREC, 12, 13, NC * CB)
    srd(a, sOFF, 12, 13, 64 * NC * 32, WS_OFFS)
    sCnt = 12
    a.I(f"s_mov_b32 s{sCnt}, {CNT}")
    a.I(f"s_mov_b32 s{sMagic}, {MAGIC}")
    a.I(f"s_mov_b32 s{sNegS2}, {-(S // 2)}")
    a.I("s_waitcnt vmcnt(0) lgkmcnt(0)")
    st_("tables")
    ncopy = (CB + TPB * 16 - 1) // (TPB * 16)
    a.vm = []
    for g in range(GPT):
        a.vm += [f"ii{g}", f"io{g}", f"an{g}"]
    a.vm += ["cp"] * ncopy
    a.L("P1_LOOP")
    a.I("s_barrier")
    st_("top")
    a.I(f"s_cmp_eq_u32 s{sChunk}, {NC - 1}")
    a.I(f"s_cselect_b32 s{sPre}, {c.LASTG}, {GPT}")
    for g in range(GPT):
        a.vwait(f"an{g}")
        for k in range(4):
            a.I(f"v_lshlrev_b32 v{vII + 4 * g + k}, 3, v{pII + 4 * g + k}")
        for k in range(FG):
            a.vmem(f"buffer_load_dwordx2 {v(vMD + 2 * (g * FG + k), 2)}, v{vII + 4 * g + k}, {s(sM, 4)}, 0 offen",
                   f"md{g}_{k}")
        if g >= c.LASTG:
            a.I(f"s_cmp_le_u32 s{sPre}, {g}")
            a.I(f"s_cbranch_scc1 P1_HS{g}")
        for k in range(4):
            i = 4 * g + k
            a.I(f"v_mul_hi_u32_u24 v{vT + k}, s{sMagic}, v{pIO + i}")
        for k in range(4):
            i = 4 * g + k
            a.I(f"v_lshl_add_u32 v{vKA + i}, v{vT + k}, 3, s{sCnt}")
            a.I(f"ds_add_rtn_u32 v{vRK + i}, v{vKA + i}, v{vOne} offset:{0 if k < FG else 4}")
        for k in range(4):
            i = 4 * g + k
            a.I(f"v_lshlrev_b32 v{vT + k}, 3, v{vT + k}")
            a.I(f"v_lshlrev_b32 v{vME + i}, 2, v{pIO + i}")
            a.I(f"v_mad_i32_i24 v{vME + i}, v{vT + k}, s{sNegS2}, v{vME + i}")
            an = pAN + 2 * g + k // 2
            if k % 2 == 0:
                a.I(f"v_lshl_or_b32 v{vME + i}, v{an}, 16, v{vME + i}")
            else:
                a.I(f"v_and_or_b32 v{vME + i}, v{an}, s{sMaskHi}, v{vME + i}")
        if g >= c.LASTG:
            a.L(f"P1_HS{g}")
    st_("hist_issued")
    a.I("s_waitcnt lgkmcnt(0)")
    a.I("s_barrier")
    st_("barB")
    nG, nR, sz, inc = vT, vT + 1, vT + 2, vT + 3
    if TPB > 256:
        a.I(f"s_cmp_ge_u32 s{sWid}, 4")
        a.I("s_cbranch_scc1 P1_S1")
    a.I(f"ds_read_b64 {v(nG, 2)}, v{vCnt8}")
    a.I("s_waitcnt lgkmcnt(0)")
    a.I(f"v_lshl_or_b32 v{sz}, v{nR}, 16, v{nG}")
    a.I(f"v_mov_b32 v{inc}, v{sz}")
    scan_add(a, [inc])
    a.I(f"v_readlane_b32 s{sTmp}, v{inc}, 63")
    a.I(f"s_lshl_b32 s{sTmp + 1}, s{sWid}, 2")
    a.I(f"s_add_u32 s{sTmp + 1}, s{sTmp + 1}, s{sCnt}")
    a.I(f"v_mov_b32 v{vT + 4}, s{sTmp + 1}")
    a.I(f"v_mov_b32 v{vT + 5}, s{sTmp}")
    a.I(f"ds_write_b32 v{vT + 4}, v{vT + 5} offset:{WT}")
    a.I("s_waitcnt lgkmcnt(0)")
    a.L("P1_S1")
    a.I("s_barrier")
    if TPB > 256:
        a.I(f"s_cmp_ge_u32 s{sWid}, 4")
        a.I("s_cbranch_scc1 P1_S2")
    a.I(f"v_mov_b32 v{vT + 4}, s{sCnt}")
    a.I(f"ds_read_b128 {v(vT + 4, 4)}, v{vT + 4} offset:{WT}")
    st = vT + 4
    a.I(f"v_sub_u32 v{inc}, v{inc}, v{sz}")
    a.I("s_waitcnt lgkmcnt(0)")
    a.I(f"v_readfirstlane_b32 s{sO4}, v{vT + 4}")
    a.I(f"v_readfirstlane_b32 s{sO2}, v{vT + 5}")
    a.I(f"v_readfirstlane_b32 s{sRecOff}, v{vT + 6}")
    a.I(f"s_mov_b32 s{sTmp}, 0")
    for w, r in enumerate((sO4, sO2, sRecOff)):
        a.I(f"s_cmp_gt_u32 s{sWid}, {w}")
        a.I(f"s_cselect_b32 s{r}, s{r}, 0")
        a.I(f"s_add_u32 s{sTmp}, s{sTmp}, s{r}")
    a.I(f"v_add_u32 v{st}, s{sTmp}, v{inc}")
    a.I(f"v_and_b32 v{vT + 5}, 0xffff, v{st}")
    a.I(f"v_lshrrev_b32 v{st}, 16, v{st}")
    a.I(f"v_mul_u32_u24 v{vT + 6}, 12, v{vT + 5}")
    a.I(f"v_lshlrev_b32 v{vT + 7}, 3, v{st}")
    a.I(f"v_add_u32 v{vT + 7}, {NGc * 12}, v{vT + 7}")
    a.I(f"ds_write_b64 v{vCnt8}, {v(vT + 6, 2)}")
    a.I(f"v_lshl_or_b32 v{nG}, v{nG}, 16, v{vT + 5}")
    a.I(f"v_lshl_or_b32 v{nR}, v{nR}, 16, v{st}")
    a.I("s_waitcnt lgkmcnt(0)")
    a.L("P1_S2")
    a.I(f"s_lshl_b32 s{sTmp + 1}, s{sChunk}, 5")
    a.vmem(f"buffer_store_dwordx2 {v(nG, 2)}, v{vOffA}, {s(sOFF, 4)}, s{sTmp + 1} offen", "offst")
    a.I("s_barrier")
    st_("scan")
    for g in range(GPT):
        if g >= c.LASTG:
            a.I(f"s_cmp_le_u32 s{sPre}, {g}")
            a.I("s_cbranch_scc1 P1_SCAT_DONE")
        for k in range(4):
            i = 4 * g + k
            a.I(f"ds_read_b32 v{vKA + i}, v{vKA + i} offset:{0 if k < FG else 4}")
        for k in range(FG):
            j = vMD + 2 * (g * FG + k)
            a.vwait(f"md{g}_{k}", trim=(g < c.LASTG))
            md_dots(a, j, j + 1, sW, vT + 4 * (k % 2))
            if k % 2 == 1 or k == FG - 1:
                for kk in range(k - k % 2, k + 1):
                    jj = vMD + 2 * (g * FG + kk)
                    md_pack(a, vT + 4 * (kk % 2), jj, jj + 1)
        a.I("s_waitcnt lgkmcnt(0)")
        for k in range(4):
            i = 4 * g + k
            R = 12 if k < FG else 8
            a.I(f"v_mad_u32_u24 v{vKA + i}, v{vRK + i}, {R}, v{vKA + i}")
            if k < FG:
                j = vMD + 2 * (g * FG + k)
                a.I(f"ds_write2_b32 v{vKA + i}, v{j}, v{j + 1} offset0:0 offset1:1")
                a.I(f"ds_write_b32 v{vKA + i}, v{vME + i} offset:8")
            else:
                a.I(f"ds_write2_b32 v{vKA + i}, v{vII + i}, v{vME + i} offset0:0 offset1:1")
    a.L("P1_SCAT_DONE")
    if FG:
        a.vwait(f"md{GPT - 1}_{FG - 1}")
    a.I("s_waitcnt lgkmcnt(0)")
    st_("scat")
    a.I("s_barrier")
    st_("barE")
    a.I(f"s_add_u32 s{sTmp}, s{sChunk}, {G1}")
    issue_inputs(sTmp)
    st_("pref_issued")
    zero_counters("P1_Z1")
    a.I(f"s_mul_i32 s{sRecOff}, s{sChunk}, {CB}")
    bufs = list(range(pool0, pool1 - 3, 4))
    assert len(bufs) >= ncopy
    spol = (" " + c.st_rec) if c.st_rec else ""
    step = TPB * 16
    a.I(f"v_add_u32 v{vT}, {8 * step}, v{vT16}")
    for i in range(ncopy):
        base, off = (vT16, i * step) if i < 8 else (vT, (i - 8) * step)
        assert off < 65536
        a.I(f"ds_read_b128 {v(bufs[i], 4)}, v{base} offset:{off}")
    for i in range(ncopy):
        n_out = ncopy - 1 - i
        a.I(f"s_waitcnt lgkmcnt({min(n_out, 15)})")
        part = CB - i * step
        if part < step:
            a.I(f"v_cmp_gt_u32 vcc, {part // 16}, v0")
            a.I("s_mov_b64 exec, vcc")
        a.vmem(f"buffer_store_dwordx4 {v(bufs[i], 4)}, v{vT16}, {s(sREC, 4)}, s{sRecOff} offen{spol}", "cp")
        if part < step:
            a.I("s_mov_b64 exec, -1")
        else:
            a.I(f"s_add_u32 s{sRecOff}, s{sRecOff}, {step}")
    st_("copy")
    a.I(f"s_add_u32 s{sChunk}, s{sChunk}, {G1}")
    a.I(f"s_cmp_lt_u32 s{sChunk}, {NC}")
    a.I("s_cbranch_scc1 P1_LOOP")
    st_.flush(sWid, NWV, 0x8000000, 92, vT)
    a.L("P1_END")
    a.I("s_endpgm")
    return a, lds


def merge(A, B):
    out = []
    la, lb = len(A), len(B)
    ia = ib = 0
    while ia < la or ib < lb:
        if ib >= lb or (ia < la and ia * lb <= ib * la):
            out.append(A[ia]); ia += 1
        else:
            out.append(B[ib]); ib += 1
    return out


def gen_p2(c):
    a = Asm()
    FG, NC, CB, EPL, CPW = c.FG, c.NC, c.CB, c.EPL, c.CPW
    NGc = c.C * FG // 4
    nbG = c.nbG if FG > 0 else 0
    nbR = c.nbR if FG < 4 else 0
    SUB = c.sub
    ACC = 0
    ACCF = 4 * S * 4
    GB = 2 * 4 * S * 4
    GA = GB + S * 8
    MISC = GA + S * 16
    MARKS = MISC + 64
    MW = SUB * 256
    assert MW % 512 == 0
    lds = MARKS + 16 * MW
    assert GA < 65536 and lds <= 163840
    va = Alloc("v", 1, 128)
    vMk4 = va.get(); vMk8 = va.get()
    vLaneG = va.get(); vLaneR = va.get()
    vPG = va.get(EPL); vDG = va.get(EPL); vPR = va.get(EPL); vDR = va.get(EPL)
    vA = va.get()
    vSH = va.get(2, 2)
    vRW = va.get(4, 2)
    vZ = va.get(2, 2)
    vG = [va.get(4, 2) for _ in range(nbG)]
    vR = [va.get(2, 2) for _ in range(nbR)]
    vM = [(vG[k] + 3) if k < nbG else va.get() for k in range(nbR)]
    vT = va.get(24, 2)
    sREC, sMDT, sX, sY = 16, 20, 24, 28
    sB, sWid, sNG, sNR, sP0G, sP0R, sCG, sCR, sLim, sMkBase, sT, sOff, sMaskHi = 4, 5, 6, 7, 8, 9, 10, 11, 12, 13, 14, 15, 3
    sPtr = 32
    sRemG, sRemR, sSave = 40, 41, 42
    sOUT, sMS = 44, 48
    sWU = 56
    NW2 = (S - 1024 + 63) // 64

    a.I(f"s_cmp_ge_u32 s2, {NB}")
    a.I("s_cbranch_scc1 P2_END")
    st_ = Stamper(a, c.stamps, va.get() if c.stamps else 0, 100)
    if c.stamps:
        a.I(f"v_mov_b32 v{st_.v}, 0")
    st_("start")
    a.I(f"s_load_dwordx2 s[{sPtr}:{sPtr + 1}], s[0:1], 104")
    a.I(f"s_load_dwordx2 s[{sPtr + 2}:{sPtr + 3}], s[0:1], 24")
    a.I(f"s_load_dwordx4 s[{sPtr + 4}:{sPtr + 7}], s[0:1], 80")
    a.I(f"s_load_dwordx2 s[52:53], s[0:1], 0")
    a.I(f"s_and_b32 s{sB}, s2, 7")
    a.I(f"s_lshl_b32 s{sB}, s{sB}, 5")
    a.I(f"s_lshr_b32 s{sT}, s2, 3")
    a.I(f"s_add_u32 s{sB}, s{sB}, s{sT}")
    a.I(f"s_mov_b32 s{sMaskHi}, 0xffff0000")
    vLane = vT + 23
    a.I(f"v_and_b32 v{vLane}, 63, v0")
    a.I(f"v_lshrrev_b32 v{vT}, 6, v0")
    a.I(f"v_readfirstlane_b32 s{sWid}, v{vT}")
    vC = vT + 2
    a.I(f"v_mul_u32_u24 v{vC}, {EPL}, v{vLane}")
    a.I(f"s_mul_i32 s{sT}, s{sWid}, {CPW}")
    a.I(f"v_add_u32 v{vC}, s{sT}, v{vC}")
    a.I(f"s_lshr_b32 s{sT}, s{sB}, 2")
    a.I(f"s_mul_i32 s{sT}, s{sT}, {NC * 32}")
    a.I(f"s_and_b32 s{sOff}, s{sB}, 3")
    a.I(f"s_lshl_b32 s{sOff}, s{sOff}, 3")
    a.I(f"s_add_u32 s{sT}, s{sT}, s{sOff}")
    a.I(f"v_lshlrev_b32 v{vT + 3}, 5, v{vC}")
    a.I(f"s_mul_i32 s{sOff}, s{sB}, {S * 2}")
    vE0 = vT + 8
    a.I(f"v_lshlrev_b32 v{vE0}, 1, v0")
    a.I("s_waitcnt lgkmcnt(0)")
    srd(a, sY, sPtr + 2, sPtr + 3, E * 2)
    vD = vSH
    a.vmem(f"buffer_load_ushort v{vD}, v{vE0}, {s(sY, 4)}, s{sOff} offen", "d0")
    a.vmem(f"buffer_load_ushort v{vD + 1}, v{vE0}, {s(sY, 4)}, s{sOff} offen offset:2048", "d1")
    srd(a, sX, sPtr, sPtr + 1, 64 * NC * 32, WS_OFFS)
    vEnt = vT + 4
    for e in range(EPL):
        a.vmem(f"buffer_load_dwordx2 {v(vEnt + 2 * e, 2)}, v{vT + 3}, {s(sX, 4)}, s{sT} offen offset:{32 * e}", f"ent{e}")
    a.I(f"s_load_dwordx8 s[64:71], s[{sPtr + 4}:{sPtr + 5}], 0")
    srd(a, sMDT, sPtr, sPtr + 1, E * 8, WS_MDT)
    srd(a, sREC, sPtr, sPtr + 1, NC * CB)
    srd(a, sOUT, sPtr + 6, sPtr + 7, E * 8)
    srd(a, sMS, 52, 53, E * 8)
    for i in range(4):
        a.I(f"v_mov_b32 v{vT + 16 + i}, 0")
    a.I(f"v_mov_b32 v{vZ}, 0")
    a.I(f"v_mov_b32 v{vZ + 1}, 0")
    a.I(f"v_lshlrev_b32 v{vT}, 4, v0")
    nz = (2 * 4 * S * 4) // 16
    for i in range(nz // 1024):
        a.I(f"ds_write_b128 v{vT}, {v(vT + 16, 4)} offset:{i * 16384}")
    assert nz % 1024 == 64
    a.I(f"s_cmp_lg_u32 s{sWid}, 0")
    a.I("s_cbranch_scc1 P2_Z1")
    a.I(f"ds_write_b128 v{vT}, {v(vT + 16, 4)} offset:{(nz // 1024) * 16384}")
    a.L("P2_Z1")
    a.I(f"v_mul_u32_u24 v{vLaneG}, 12, v{vLane}")
    a.I(f"v_lshlrev_b32 v{vLaneR}, 3, v{vLane}")
    a.I(f"s_mul_i32 s{sMkBase}, s{sWid}, {MW}")
    a.I(f"s_add_u32 s{sMkBase}, s{sMkBase}, {MARKS}")
    a.I(f"v_lshl_add_u32 v{vMk4}, v{vLane}, 2, s{sMkBase}")
    a.I(f"v_lshl_add_u32 v{vMk8}, v{vLane}, 3, s{sMkBase}")
    srd(a, sY, sPtr, sPtr + 1, GT_BYTES, WS_GT)
    assert nbG >= 4 or nbR >= 8
    pool = []
    for r in (vG if nbG >= 4 else []):
        pool.append(r)
    if nbG < 4:
        pool = [vR[nbR - 8 + 2 * i] for i in range(4)]
        for i in range(4):
            assert vR[nbR - 8 + 2 * i + 1] == pool[i] + 2
    tA = [pool[0], pool[1]]
    tB = [pool[2], pool[3]]
    a.I(f"s_mov_b32 s{sRemG}, 0x100000")
    a.I(f"s_mov_b32 s{sRemR}, 0x200000")
    for j in range(2):
        a.vwait(f"d{j}")
        a.I(f"v_lshlrev_b32 v{vT + 10 + j}, 4, v{vD + j}")
        a.I(f"v_lshlrev_b32 v{vD + j}, 2, v{vD + j}")
        a.vmem(f"buffer_load_dwordx4 {v(tA[j], 4)}, v{vT + 10 + j}, {s(sY, 4)}, 0 offen", f"ta{j}")
        a.vmem(f"buffer_load_dwordx4 {v(tB[j], 4)}, v{vT + 10 + j}, {s(sY, 4)}, s{sRemG} offen", f"tb{j}")
        a.vmem(f"buffer_load_dword v{vSH + j}, v{vD + j}, {s(sY, 4)}, s{sRemR} offen", f"ts{j}")
    a.vwait(f"ent{EPL - 1}")
    st_("ent")
    vnG = vT + 10; vnR = vT + 12; vsum = vT + 14
    assert EPL <= 2
    for e in range(EPL):
        d0, d1 = vEnt + 2 * e, vEnt + 2 * e + 1
        if e:
            a.I(f"v_add_u32 v{vC}, 1, v{vC}")
        a.I(f"v_cmp_gt_u32 vcc, {NC}, v{vC}")
        a.I(f"v_lshrrev_b32 v{vnG + e}, 16, v{d0}")
        a.I(f"v_lshrrev_b32 v{vnR + e}, 16, v{d1}")
        a.I(f"v_cndmask_b32 v{vnG + e}, 0, v{vnG + e}, vcc")
        a.I(f"v_cndmask_b32 v{vnR + e}, 0, v{vnR + e}, vcc")
        a.I(f"v_cmp_gt_u32 vcc, {CPW // EPL}, v{vLane}")
        a.I(f"v_and_b32 v{d0}, 0xffff, v{d0}")
        a.I(f"v_and_b32 v{d1}, 0xffff, v{d1}")
        a.I(f"s_mov_b32 s{sT}, {CB}")
        a.I(f"v_cndmask_b32 v{vnG + e}, 0, v{vnG + e}, vcc")
        a.I(f"v_cndmask_b32 v{vnR + e}, 0, v{vnR + e}, vcc")
        a.I(f"v_mul_lo_u32 v{vsum}, v{vC}, s{sT}")
        a.I(f"v_mad_u32_u24 v{vDG + e}, v{d0}, 12, v{vsum}")
        a.I(f"v_lshl_add_u32 v{vDR + e}, v{d1}, 3, v{vsum}")
        a.I(f"v_add_u32 v{vDR + e}, {NGc * 12}, v{vDR + e}")
    if EPL == 2:
        a.I(f"v_add_u32 v{vsum}, v{vnG}, v{vnG + 1}")
        a.I(f"v_add_u32 v{vsum + 1}, v{vnR}, v{vnR + 1}")
    else:
        a.I(f"v_mov_b32 v{vsum}, v{vnG}")
        a.I(f"v_mov_b32 v{vsum + 1}, v{vnR}")
    a.I(f"v_mov_b32 v{vsum + 2}, v{vsum}")
    a.I(f"v_mov_b32 v{vsum + 3}, v{vsum + 1}")
    scan_add(a, [vsum + 2, vsum + 3])
    a.I(f"v_readlane_b32 s{sNG}, v{vsum + 2}, 63")
    a.I(f"v_readlane_b32 s{sNR}, v{vsum + 3}, 63")
    a.I(f"v_sub_u32 v{vPG}, v{vsum + 2}, v{vsum}")
    a.I(f"v_sub_u32 v{vPR}, v{vsum + 3}, v{vsum + 1}")
    if EPL == 2:
        a.I(f"v_add_u32 v{vPG + 1}, v{vPG}, v{vnG}")
        a.I(f"v_add_u32 v{vPR + 1}, v{vPR}, v{vnR}")
    for e in range(EPL):
        a.I(f"v_mul_u32_u24 v{vsum}, 12, v{vPG + e}")
        a.I(f"v_sub_u32 v{vDG + e}, v{vDG + e}, v{vsum}")
        a.I(f"v_lshlrev_b32 v{vsum}, 3, v{vPR + e}")
        a.I(f"v_sub_u32 v{vDR + e}, v{vDR + e}, v{vsum}")
        a.I(f"v_cmp_ne_u32 vcc, 0, v{vnG + e}")
        a.I(f"v_cndmask_b32 v{vPG + e}, -1, v{vPG + e}, vcc")
        a.I(f"v_cmp_ne_u32 vcc, 0, v{vnR + e}")
        a.I(f"v_cndmask_b32 v{vPR + e}, -1, v{vPR + e}, vcc")
    a.I(f"s_mov_b32 s{sP0G}, 0")
    a.I(f"s_mov_b32 s{sP0R}, 0")
    a.I(f"s_mov_b32 s{sCG}, 0")
    a.I(f"s_mov_b32 s{sCR}, 0")
    a.I(f"s_mov_b32 s{sRemG}, s{sNG}")
    a.I(f"s_mov_b32 s{sRemR}, s{sNR}")
    a.I(f"s_add_u32 s{sT}, s{sNG}, s{sNR}")
    a.I(f"v_mov_b32 v{vsum}, s{sT}")
    a.I(f"s_lshl_b32 s{sT}, s{sWid}, 2")
    a.I(f"s_add_u32 s{sT}, s{sT}, {MISC}")
    a.I(f"v_mov_b32 v{vsum + 1}, s{sT}")
    a.I("s_mov_b64 exec, 1")
    a.I(f"ds_write_b32 v{vsum + 1}, v{vsum}")
    a.I("s_mov_b64 exec, -1")

    ldpol = (" " + c.ld_rec) if c.ld_rec else ""
    TY = {"R": (8, vPR, vDR, sP0R, sCR, vLaneR, sRemR, vR),
          "G": (12, vPG, vDG, sP0G, sCG, vLaneG, sRemG, vG)}

    def set_exec(sRem, k):
        if k:
            a.I(f"s_sub_i32 s{sT}, s{sRem}, {64 * k}")
            a.I(f"s_max_i32 s{sT}, s{sT}, 0")
        else:
            a.I(f"s_max_i32 s{sT}, s{sRem}, 0")
        a.I(f"s_bfm_b64 exec, s{sT}, 0")
        a.I(f"s_cmp_ge_i32 s{sT}, 64")
        a.I("s_cselect_b64 exec, -1, exec")

    def issue(typ, k):
        R, vP, vDl, sP0, sCar, vLn, sRem, regs = TY[typ]
        r = regs[k]
        set_exec(sRem, k)
        if typ == "G":
            a.vmem(f"buffer_load_dwordx3 {v(r, 3)}, v{r}, {s(sREC, 4)}, 0 offen{ldpol}", f"G{k}")
        else:
            a.vmem(f"buffer_load_dwordx2 {v(r, 2)}, v{r}, {s(sREC, 4)}, 0 offen{ldpol}", f"R{k}")
        a.I("s_mov_b64 exec, -1")

    def stageA_steps(typ, nb, do_issue=True, kstart=0):
        R, vP, vDl, sP0, sCar, vLn, sRem, regs = TY[typ]
        steps = []
        k0 = kstart
        while k0 < nb:
            n = min(SUB, nb - k0)

            def s1(k0=k0, n=n):
                for i in range((n * 256 + 511) // 512):
                    a.I(f"ds_write_b64 v{vMk8}, {v(vZ, 2)} offset:{i * 512}")
                a.I(f"s_add_u32 s{sOff}, s{sP0}, {k0 * 64}")
                for e in range(EPL):
                    a.I(f"v_subrev_u32 v{vA}, s{sOff}, v{vP + e}")
                    a.I(f"v_cmp_gt_u32 vcc, {n * 64}, v{vA}")
                    a.I(f"v_lshl_add_u32 v{vA}, v{vA}, 2, s{sMkBase}")
                    a.I("s_mov_b64 exec, vcc")
                    a.I(f"ds_write_b32 v{vA}, v{vDl + e}")
                    a.I("s_mov_b64 exec, -1")
                for k in range(n):
                    a.I(f"ds_read_b32 v{regs[k0 + k]}, v{vMk4} offset:{k * 256}")
                a.I(f"s_mul_i32 s{sOff}, s{sOff}, {R}")

            def s2(k0=k0, n=n):
                a.I("s_waitcnt lgkmcnt(0)")
                scan_max(a, [regs[k0 + k] for k in range(n)])
            steps += [s1, s2]
            for k in range(n):
                def s3(k=k0 + k):
                    r = regs[k]
                    a.I(f"v_max_u32 v{r}, s{sCar}, v{r}")
                    a.I(f"v_readlane_b32 s{sCar}, v{r}, 63")
                    a.I(f"v_add3_u32 v{r}, v{r}, v{vLn}, s{sOff}")
                    a.I(f"s_add_u32 s{sOff}, s{sOff}, {64 * R}")
                    if do_issue:
                        issue(typ, k)
                steps.append(s3)
            k0 += n
        return steps

    def stageB(k):
        a.vwait(f"R{k}")
        set_exec(sRemR, k)
        a.I(f"v_mov_b32 v{vM[k]}, v{vR[k] + 1}")
        if c.nogather:
            a.I("s_mov_b64 exec, 0")
        a.vmem(f"buffer_load_dwordx2 {v(vR[k], 2)}, v{vR[k]}, {s(sMDT, 4)}, 0 offen", f"B{k}")
        a.I("s_mov_b64 exec, -1")

    lblc = [0]

    def comp(typ, k):
        n = lblc[0]; lblc[0] += 1
        if typ == "G":
            m01, m23, meta, sRem = vG[k], vG[k] + 1, vG[k] + 2, sRemG
            tag = f"G{k}"
        else:
            m01, m23, meta, sRem = vR[k], vR[k] + 1, vM[k], sRemR
            tag = f"B{k}"
        t = vT
        a16, a8, a4 = t, t + 1, t + 2
        af, r0, r2 = t + 3, t + 4, t + 5
        Gq = t + 8
        Gb = t + 12
        c01, c2l, c2h = t + 6, t + 7, t + 14
        md = t + 16
        g = t + 20
        sm = t + 15
        set_exec(sRem, k)
        if c.nocomp:
            a.vwait(tag, trim=False)
            a.I("s_mov_b64 exec, 0")
        a.I(f"s_cbranch_execz P2_SK{n}")
        if typ == "G":
            a.vwait(tag, trim=False)
        a.I(f"v_and_b32 v{a4}, 0xffff, v{meta}")
        a.I(f"v_add_u32 v{a8}, v{a4}, v{a4}")
        a.I(f"v_add_u32 v{a16}, v{a8}, v{a8}")
        a.I(f"ds_read_b64 {v(Gb, 2)}, v{a8} offset:{GB}")
        a.I(f"ds_read_b128 {v(Gq, 4)}, v{a16} offset:{GA}")
        a.I(f"v_and_b32 v{af}, s{sMaskHi}, v{meta}")
        a.I(f"v_mul_f32 v{r0}, 0.15915494, v{af}")
        a.I(f"v_mul_f32 v{r2}, 0x40400000, v{af}")
        a.I(f"v_cos_f32 v{r0}, v{r0}")
        a.I(f"v_cvt_pk_bf16_f32 v{r2}, 0, v{r2}")
        a.I(f"v_mul_f32 v{r2}, 0.15915494, v{r2}")
        a.I(f"v_mul_f32 v{af}, v{r0}, v{r0}")
        a.I(f"v_cos_f32 v{r2}, v{r2}")
        a.I(f"v_fma_f32 v{af}, v{af}, 2.0, -1.0")
        a.I(f"v_cvt_pk_bf16_f32 v{c01}, v{r0}, v{af}")
        a.I(f"v_cvt_pk_bf16_f32 v{c2l}, v{r2}, 0")
        a.I(f"v_cvt_pk_bf16_f32 v{c2h}, 0, v{r2}")
        a.I("s_waitcnt lgkmcnt(1)")
        for d in range(4):
            a.I(f"v_dot2_f32_bf16 v{g + d}, v{Gb + d // 2}, v{c2l if d % 2 == 0 else c2h}, 0")
        a.I("s_waitcnt lgkmcnt(0)")
        for d in range(4):
            a.I(f"v_dot2_f32_bf16 v{g + d}, v{Gq + d}, v{c01}, v{g + d}")
        if typ == "R":
            a.vwait(tag, trim=False)
        a.I(f"v_lshlrev_b32 v{md}, 16, v{m01}")
        a.I(f"v_and_b32 v{md + 1}, s{sMaskHi}, v{m01}")
        a.I(f"v_lshlrev_b32 v{md + 2}, 16, v{m23}")
        a.I(f"v_and_b32 v{md + 3}, s{sMaskHi}, v{m23}")
        for d in range(4):
            a.I(f"v_mul_f32 v{md + d}, v{md + d}, v{g + d}")
        a.I(f"v_add_f32 v{sm}, |v{md}|, |v{md + 1}|")
        a.I(f"v_add_f32 v{g}, |v{md + 2}|, |v{md + 3}|")
        a.I(f"v_add_f32 v{sm}, v{sm}, v{g}")
        a.I(f"v_cmp_ngt_f32 vcc, s{sLim}, v{sm}")
        for d in range(4):
            a.I(f"v_cvt_rpi_i32_f32 v{g + d}, v{md + d}")
        a.I(f"s_cbranch_vccz P2_FAST{n}")
        a.I(f"s_mov_b64 s[{sSave}:{sSave + 1}], exec")
        a.I("s_mov_b64 exec, vcc")
        for d in range(4):
            a.I(f"ds_add_f32 v{a4}, v{md + d} offset:{ACCF + d * S * 4}")
        a.I(f"s_andn2_b64 exec, s[{sSave}:{sSave + 1}], vcc")
        a.L(f"P2_FAST{n}")
        for d in range(4):
            a.I(f"ds_add_u32 v{a4}, v{g + d} offset:{ACC + d * S * 4}")
        a.L(f"P2_SK{n}")
        a.I("s_mov_b64 exec, -1")

    def table_to_lds():
        a.I(f"v_lshlrev_b32 v{vT}, 4, v0")
        a.I(f"v_lshlrev_b32 v{vT + 1}, 3, v0")
        a.vwait("ts0")
        a.I(f"ds_write_b128 v{vT}, {v(tA[0], 4)} offset:{GA}")
        a.I(f"ds_write_b64 v{vT + 1}, {v(tB[0], 2)} offset:{GB}")
        a.I(f"v_mov_b32 v{vRW}, v{tB[0] + 2}")
        a.I(f"v_mov_b32 v{vRW + 1}, v{tB[0] + 3}")
        a.I(f"v_cmp_gt_u32 vcc, {S - 1024}, v0")
        a.I(f"v_add_u32 v{vT}, 0x4000, v{vT}")
        a.vwait("ts1")
        a.I(f"v_mov_b32 v{vRW + 2}, v{tB[1] + 2}")
        a.I(f"v_mov_b32 v{vRW + 3}, v{tB[1] + 3}")
        a.I("s_mov_b64 exec, vcc")
        a.I(f"ds_write_b128 v{vT}, {v(tA[1], 4)} offset:{GA}")
        a.I(f"ds_write_b64 v{vT + 1}, {v(tB[1], 2)} offset:{GB + 8192}")
        a.I("s_mov_b64 exec, -1")

    def barrier_and_lim():
        a.I("s_waitcnt lgkmcnt(0)")
        st_("pre")
        a.I("s_barrier")
        st_("bar")
        a.I(f"v_and_b32 v{vT}, 15, v0")
        a.I(f"v_lshlrev_b32 v{vT}, 2, v{vT}")
        a.I(f"v_add_u32 v{vT}, {MISC}, v{vT}")
        a.I(f"ds_read_b32 v{vT + 1}, v{vT}")
        for h in range(2):
            for d in range(4):
                pk = "s_pack_ll_b32_b16" if d % 2 == 0 else "s_pack_hh_b32_b16"
                a.I(f"{pk} s{sWU + h * 4 + d}, s{64 + 4 * h + d // 2}, s{64 + 4 * h + 2 + d // 2}")
        a.I("s_waitcnt lgkmcnt(0)")
        for sh in (1, 2, 4, 8):
            a.I(f"v_add_u32_dpp v{vT + 1}, v{vT + 1}, v{vT + 1} row_shr:{sh} row_mask:0xf bank_mask:0xf bound_ctrl:0")
        a.I(f"v_readlane_b32 s{sLim}, v{vT + 1}, 15")
        a.I(f"s_or_b32 s{sLim}, s{sLim}, 1")
        a.I(f"s_flbit_i32_b32 s{sLim}, s{sLim}")
        a.I(f"s_sub_u32 s{sLim}, s{sLim}, 1")
        a.I(f"s_min_u32 s{sLim}, s{sLim}, {KFIX}")
        a.I(f"s_add_u32 s{sLim}, s{sLim}, 127")
        a.I(f"s_lshl_b32 s{sLim}, s{sLim}, 23")

    if nbG < 4:
        table_to_lds()
        for f in stageA_steps("R", nbR):
            f()
    else:
        n1 = min(SUB, nbR)
        for f in stageA_steps("R", n1):
            f()
        table_to_lds()
        for f in stageA_steps("R", nbR, kstart=n1):
            f()
    barrier_and_lim()

    def sched1():
        for f in stageA_steps("G", nbG):
            f()
        st_("AG")
        kb = 0
        while kb < min(c.lead, nbR):
            stageB(kb); kb += 1
        kg = kr = 0
        done = 0
        while kg < nbG or kr < nbR:
            pickR = kr < nbR and ((kr + c.lag < kb and kr * max(nbG, 1) <= kg * nbR) or kg >= nbG)
            if pickR:
                while kb <= kr:
                    stageB(kb); kb += 1
                comp("R", kr); kr += 1
            else:
                comp("G", kg); kg += 1
            done += 1
            if kb < nbR and done % c.cpb == 0:
                stageB(kb); kb += 1
        st_("comps")

    def sched2():
        l2 = min(c.lead2, nbR)
        Bs = [(lambda k=k: stageB(k)) for k in range(l2)]
        for f in merge(Bs, stageA_steps("G", nbG, do_issue=False)):
            f()
        kb = l2
        kr = 0
        gi = 0
        while kb < nbR:
            comp("R", kr); kr += 1
            stageB(kb); kb += 1
        for k in range(nbG):
            issue("G", k)
        st_("AG")
        while kr < nbR:
            comp("R", kr); kr += 1
        for k in range(nbG):
            comp("G", k)
        st_("comps")

    kinds = [int(ch) for ch in str(c.kinds)]
    fn = {1: sched1, 2: sched2}
    vm0 = list(a.vm)
    n0 = st_.n
    if len(kinds) == 2:
        a.I(f"s_bitcmp1_b32 s2, {c.kbit}")
        a.I("s_cbranch_scc1 P2_TYPE2")
    fn[kinds[0]]()
    if len(kinds) == 2:
        a.I("s_branch P2_NEXT")
        a.L("P2_TYPE2")
        a.vm = list(vm0)
        st_.n = n0
        fn[kinds[1]]()
    a.L("P2_NEXT")
    a.vwait_all()
    if nbG:
        a.I(f"s_add_u32 s{sP0G}, s{sP0G}, {nbG * 64}")
    if nbR:
        a.I(f"s_add_u32 s{sP0R}, s{sP0R}, {nbR * 64}")
    a.L("P2_LOOP")
    a.I(f"s_sub_i32 s{sRemG}, s{sNG}, s{sP0G}")
    a.I(f"s_sub_i32 s{sRemR}, s{sNR}, s{sP0R}")
    a.I(f"s_max_i32 s{sT}, s{sRemG}, s{sRemR}")
    a.I(f"s_cmp_le_i32 s{sT}, 0")
    a.I("s_cbranch_scc1 P2_LOOP_END")
    lg, lr = min(nbG, 4), min(nbR, 4)
    for f in stageA_steps("R", lr) + stageA_steps("G", lg):
        f()
    for k in range(lr):
        stageB(k)
    for k in range(lg):
        comp("G", k)
    for k in range(lr):
        comp("R", k)
    a.vwait_all()
    a.I(f"s_add_u32 s{sP0G}, s{sP0G}, {lg * 64}")
    a.I(f"s_add_u32 s{sP0R}, s{sP0R}, {lr * 64}")
    a.I("s_branch P2_LOOP")
    a.L("P2_LOOP_END")
    st_("loop")
    a.I(f"v_lshlrev_b32 v{vT}, 3, v0")
    a.I(f"s_mul_i32 s{sT}, s{sB}, {S * 8}")
    a.I(f"s_add_u32 s{sT + 1}, s{sT}, 8192")
    vMrow = (vG[0] if nbG else vR[0])
    a.I(f"buffer_load_dwordx2 {v(vMrow, 2)}, v{vT}, {s(sMS, 4)}, s{sT} offen")
    a.I(f"buffer_load_dwordx2 {v(vMrow + 2, 2)}, v{vT}, {s(sMS, 4)}, s{sT + 1} offen")
    a.I("s_waitcnt lgkmcnt(0)")
    a.I("s_barrier")
    st_("bar3")
    for j in range(2):
        if j == 1:
            a.I(f"s_cmp_ge_u32 s{sWid}, {NW2}")
            a.I("s_cbranch_scc1 P2_FIN")
            a.I(f"v_cmp_gt_u32 vcc, {S - 1024}, v0")
            a.I("s_mov_b64 exec, vcc")
        q = vT + 4; f = vT + 8; up = vT + 12; rw = vT + 16; pk = vT + 20
        a.I(f"v_lshlrev_b32 v{vT + 1}, 2, v0")
        for d in range(4):
            a.I(f"ds_read_b32 v{q + d}, v{vT + 1} offset:{ACC + d * S * 4 + j * 4096}")
        for d in range(4):
            a.I(f"ds_read_b32 v{f + d}, v{vT + 1} offset:{ACCF + d * S * 4 + j * 4096}")
        for d in range(4):
            a.I(f"v_bfe_i32 v{up + d}, v{vSH + j}, {8 * d}, 8")
        for d in range(4):
            a.I(f"v_sub_u32 v{up + d}, 0, v{up + d}")
        a.I(f"v_lshlrev_b32 v{rw}, 16, v{vRW + 2 * j}")
        a.I(f"v_and_b32 v{rw + 1}, s{sMaskHi}, v{vRW + 2 * j}")
        a.I(f"v_lshlrev_b32 v{rw + 2}, 16, v{vRW + 2 * j + 1}")
        a.I(f"v_and_b32 v{rw + 3}, s{sMaskHi}, v{vRW + 2 * j + 1}")
        a.I("s_waitcnt lgkmcnt(0)")
        for d in range(4):
            a.I(f"v_cvt_f32_i32 v{q + d}, v{q + d}")
        for d in range(4):
            a.I(f"v_add_f32 v{q + d}, v{q + d}, v{f + d}")
        for d in range(4):
            a.I(f"v_ldexp_f32 v{q + d}, v{q + d}, v{up + d}")
        a.I(f"v_cvt_pk_bf16_f32 v{pk}, v{q}, v{q + 1}")
        a.I(f"v_cvt_pk_bf16_f32 v{pk + 1}, v{q + 2}, v{q + 3}")
        for d in range(4):
            a.I(f"v_dot2_f32_bf16 v{up + d}, v{pk}, s{sWU + d}, 0")
        for d in range(4):
            a.I(f"v_dot2_f32_bf16 v{up + d}, v{pk + 1}, s{sWU + 4 + d}, v{up + d}")
        m01, m23 = vMrow + 2 * j, vMrow + 2 * j + 1
        if j == 0:
            a.I("s_waitcnt vmcnt(0)")
        a.I(f"v_lshlrev_b32 v{f}, 16, v{m01}")
        a.I(f"v_and_b32 v{f + 1}, s{sMaskHi}, v{m01}")
        a.I(f"v_lshlrev_b32 v{f + 2}, 16, v{m23}")
        a.I(f"v_and_b32 v{f + 3}, s{sMaskHi}, v{m23}")
        for d in range(4):
            a.I(f"v_cvt_pk_bf16_f32 v{up + d}, 0, v{up + d}")
        for d in range(4):
            a.I(f"v_mul_f32 v{up + d}, v{up + d}, v{rw + d}")
        for d in range(4):
            a.I(f"v_cvt_pk_bf16_f32 v{up + d}, 0, v{up + d}")
        for d in range(4):
            a.I(f"v_add_f32 v{up + d}, v{up + d}, v{f + d}")
        a.I(f"v_cvt_pk_bf16_f32 v{pk}, v{up}, v{up + 1}")
        a.I(f"v_cvt_pk_bf16_f32 v{pk + 1}, v{up + 2}, v{up + 3}")
        a.I(f"buffer_store_dwordx2 {v(pk, 2)}, v{vT}, {s(sOUT, 4)}, s{sT + j} offen")
    a.L("P2_FIN")
    st_("end")
    st_.flush(sWid, 16, 0x9000000, sY, vT + 1)
    a.L("P2_END")
    a.I("s_endpgm")
    return a, lds


HEADER = """; gemnet triplet message passing: two launches
;  gp2: one workgroup per bucket: accumulates its triplets in LDS and writes the output rows
"""


def kd(name, nv, ns):
    acc = (nv + 3) // 4 * 4
    return f""".amdhsa_kernel {name}
  .amdhsa_next_free_vgpr {nv}
  .amdhsa_next_free_sgpr {ns}
  .amdhsa_accum_offset {acc}
  .amdhsa_group_segment_fixed_size 0
  .amdhsa_kernarg_size 112
  .amdhsa_user_sgpr_count 2
  .amdhsa_user_sgpr_kernarg_segment_ptr 1
  .amdhsa_system_sgpr_workgroup_id_x 1
  .amdhsa_float_denorm_mode_32 3
  .amdhsa_float_denorm_mode_16_64 3
.end_amdhsa_kernel
"""


def build(c):
    p1, lds1 = gen_p1(c)
    p2, lds2 = gen_p2(c)
    n1 = p1.fix_hazards()
    n2 = p2.fix_hazards()
    v1, s1 = p1.max_regs()
    v2, s2 = p2.max_regs()
    out = HEADER
    out += f"; @launch kernel=gp1_kernel grid=({c.G1},1,1) block=({c.TPB1},1,1) lds={lds1}\n"
    out += f"; @launch kernel=gp2_kernel grid=({NB},1,1) block=(1024,1,1) lds={lds2}\n"
    out += '.amdgcn_target "amdgcn-amd-amdhsa--gfx950"\n.text\n'
    for name, k in (("gp1_kernel", p1), ("gp2_kernel", p2)):
        out += f".globl {name}\n.p2align 8\n.type {name},@function\n{name}:\n" + k.text()
    out += '.section .rodata,"a"\n.p2align 6\n'
    out += kd("gp1_kernel", v1, s1)
    out += ".p2align 6\n"
    out += kd("gp2_kernel", v2, s2)
    info = f"p1: vgpr {v1} sgpr {s1} lds {lds1} nops {n1}; p2: vgpr {v2} sgpr {s2} lds {lds2} nops {n2}; NC {c.NC} CB {c.CB} CPW {c.CPW} EPL {c.EPL}"
    return out, info


if __name__ == "__main__":
    kw = {}
    outp = "standalone__molecular_angular_gemnet__graph.s"
    for arg in sys.argv[1:]:
        k, val = arg.split("=", 1)
        if k == "out":
            outp = val
            continue
        try:
            val = int(val)
        except ValueError:
            pass
        kw[k] = val
    c = Cfg(**kw)
    txt, info = build(c)
    open(outp, "w").write(txt)
    print(info)
```

```python
import sys, os
sys.path.insert(0, os.path.dirname(__file__))
from asmlib import Asm, Alloc, v, s

E = 400000
T = 6400000
NB = 256
S = 1568
MAGIC = 2739138
KFIX = 16

WS_OFFS = 0x6000000
WS_MDT = 0x7000000
WS_MX = 0x7600000
WS_GT = 0x7800000
GT_BYTES = 0x280000


class Cfg:
    def __init__(self, **kw):
        self.NT = 4
        self.nb = 8
        self.GPT = 5
        self.TPB1 = 640
        self.G1 = 250
        self.ld_in = "nt"
        self.st_rec = ""
        self.ld_rec = ""
        self.nbG = 14
        self.nbR = 14
        self.sub = 4
        self.lead = 3
        self.g0 = 0
        self.lag = 3
        self.cpb = 1
        self.nset = 2
        self.wspread = 5
        self.order = 0
        self.e0 = 190
        self.nb0 = 6
        self.q1 = 2
        self.scanw = 15
        self.useG = 0
        self.bsh = 11
        self.cps = 1
        self.npf = 0
        self.tbar = 1
        self.aspread = 5
        self.early = 1
        self.kbit = 3
        self.lead2 = 4
        self.stamps = 0
        self.nogather = 0
        self.nocomp = 0
        self.__dict__.update(kw)
        self.TA = max(0, (E - self.NT * (E * self.e0 // 1000)) // max(1, self.NT - 1))
        self.MT = (self.NT << 32) // (E + self.TA)
        self.C = self.TPB1 * self.GPT * 4
        self.NC = (T + self.C - 1) // self.C
        rem = T - (self.NC - 1) * self.C
        assert rem % (self.TPB1 * 4) == 0
        self.LASTG = rem // (self.TPB1 * 4)
        assert not self.useG
        self.CB = self.C * 8
        assert self.C < 65536
        assert self.CB % 16 == 0
        assert self.NC * self.CB <= WS_OFFS
        self.CPW = (self.NC + 15) // 16
        self.EPL = (self.CPW + 63) // 64
        self.CPW = (self.CPW + self.EPL - 1) // self.EPL * self.EPL


def srd(a, d, base_lo, base_hi, nbytes, add=0):
    if add:
        a.I(f"s_add_u32 s{d}, s{base_lo}, {hex(add)}")
        a.I(f"s_addc_u32 s{d + 1}, s{base_hi}, 0")
    else:
        a.I(f"s_mov_b32 s{d}, s{base_lo}")
        a.I(f"s_mov_b32 s{d + 1}, s{base_hi}")
    a.I(f"s_mov_b32 s{d + 2}, {hex(nbytes)}")
    a.I(f"s_mov_b32 s{d + 3}, 0x20000")


class Stamper:
    def __init__(self, a, on, vreg, sreg):
        self.a, self.on, self.v, self.s, self.n = a, on, vreg, sreg, 0
        self.names = []

    def __call__(self, name):
        if not self.on:
            return
        a = self.a
        a.I(f"s_memtime s[{self.s}:{self.s + 1}]")
        a.I("s_waitcnt lgkmcnt(0)")
        a.I(f"v_writelane_b32 v{self.v}, s{self.s}, {self.n}")
        self.names.append(name)
        self.n += 1

    def flush(self, sWid, nwaves, wsoff, ssrd, vtmp):
        if not self.on:
            return
        a = self.a
        a.I("s_mov_b64 exec, -1")
        a.I(f"s_load_dwordx2 s[{self.s}:{self.s + 1}], s[0:1], 104")
        a.I("s_waitcnt lgkmcnt(0)")
        srd(a, ssrd, self.s, self.s + 1, 0x1000000, wsoff)
        a.I(f"s_mul_i32 s{self.s}, s2, {nwaves}")
        a.I(f"s_add_u32 s{self.s}, s{self.s}, s{sWid}")
        a.I(f"s_lshl_b32 s{self.s}, s{self.s}, 8")
        a.I(f"v_and_b32 v{vtmp}, 63, v0")
        a.I(f"v_lshlrev_b32 v{vtmp}, 2, v{vtmp}")
        a.I(f"buffer_store_dword v{self.v}, v{vtmp}, s[{ssrd}:{ssrd + 3}], s{self.s} offen")
        print("stamps:", " ".join(self.names))


def scan(a, regs, op):
    for sh in (1, 2, 4, 8):
        for r in regs:
            a.I(f"{op}_dpp v{r}, v{r}, v{r} row_shr:{sh} row_mask:0xf bank_mask:0xf bound_ctrl:0")
    for r in regs:
        a.I(f"{op}_dpp v{r}, v{r}, v{r} row_bcast:15 row_mask:0xa bank_mask:0xf")
    for r in regs:
        a.I(f"{op}_dpp v{r}, v{r}, v{r} row_bcast:31 row_mask:0xc bank_mask:0xf")


def scan_add(a, regs):
    scan(a, regs, "v_add_u32")


def scan_max(a, regs):
    scan(a, regs, "v_max_u32")


def md_dots(a, m01, m23, W, t):
    for d in range(4):
        a.I(f"v_dot2_f32_bf16 v{t + d}, v{m23}, s{W + 2 * d + 1}, 0")
    for d in range(4):
        a.I(f"v_dot2_f32_bf16 v{t + d}, v{m01}, s{W + 2 * d}, v{t + d}")


def md_pack(a, t, out01, out23):
    a.I(f"v_cvt_pk_bf16_f32 v{out01}, v{t}, v{t + 1}")
    a.I(f"v_cvt_pk_bf16_f32 v{out23}, v{t + 2}, v{t + 3}")


def pack4(a, dst4, tmp):
    for t in range(4):
        a.I(f"s_mov_b32 s{tmp + t}, s{dst4[t]}")
    for d in range(4):
        pk = "s_pack_ll_b32_b16" if d % 2 == 0 else "s_pack_hh_b32_b16"
        a.I(f"{pk} s{dst4[d]}, s{tmp + d // 2}, s{tmp + 2 + d // 2}")


def gen_p1(c):
    a = Asm()
    NT, GPT, TPB, C, NC, CB, G1 = c.NT, c.GPT, c.TPB1, c.C, c.NC, c.CB, c.G1
    NWV = TPB // 64
    MT = c.MT
    CNT = CB
    WT = 4096
    lds = CB + 4096 + 32
    va = Alloc("v", 1, 256)
    vT8 = va.get(); vT16 = va.get(); vOne = va.get()
    vCnt16 = va.get()
    vOffA = va.get()
    vZ = va.get(4, 2)
    pII = va.get(4 * GPT, 2)
    pIO = va.get(4 * GPT, 2)
    pAN = va.get(2 * GPT, 2)
    pool0 = va.get(0, 2)
    vX = va.get(8 * GPT, 2)
    if not c.useG:
        ME = [vX + 2 * i + 1 for i in range(4 * GPT)]
    elif c.early:
        vME = va.get(4 * GPT, 2)
        ME = [vME + i for i in range(4 * GPT)]
    else:
        ME = [pIO + i for i in range(4 * GPT)]
    vKA = va.get(4 * GPT, 2)
    vRK = va.get(4 * GPT, 2)
    pool1 = va.get(0, 2)
    vT = va.get(12, 2)
    tt = pool0
    assert pool1 - pool0 >= 44
    sChunk, sWid, sMaskHi, sMagic, sNegS2, sO4, sO2, sPre, sRecOff = 3, 4, 5, 6, 7, 8, 9, 10, 11
    sTmp = 14
    sIN, sOUT, sANG, sM = 16, 20, 24, 28
    sW = 32
    sREC, sOFF = 40, 44
    sWt = 48
    sCen = 96
    sPT = 8
    a.I(f"s_cmp_ge_u32 s2, {G1}")
    a.I("s_cbranch_scc1 P1_END")
    st_ = Stamper(a, c.stamps, va.get() if c.stamps else 0, 100)
    if c.stamps:
        a.I(f"v_mov_b32 v{st_.v}, 0")
    st_("start")
    a.I("s_load_dwordx4 s[48:51], s[0:1], 0")
    a.I("s_load_dwordx2 s[52:53], s[0:1], 16")
    a.I("s_load_dwordx4 s[56:59], s[0:1], 32")
    a.I("s_load_dwordx4 s[60:63], s[0:1], 56")
    a.I("s_load_dwordx2 s[64:65], s[0:1], 72")
    a.I("s_load_dwordx2 s[12:13], s[0:1], 104")
    a.I(f"v_lshlrev_b32 v{vT8}, 3, v0")
    a.I(f"v_lshlrev_b32 v{vT16}, 4, v0")
    a.I(f"v_mov_b32 v{vZ}, 0")
    a.I(f"v_mov_b32 v{vZ + 1}, 0")
    a.I(f"v_mov_b32 v{vZ + 2}, 0")
    a.I(f"v_mov_b32 v{vZ + 3}, 0")
    a.I(f"v_mov_b32 v{vOne}, 1")
    a.I(f"v_add_u32 v{vCnt16}, {CNT}, v{vT16}")
    a.I(f"v_lshrrev_b32 v{vT}, 6, v0")
    a.I(f"v_readfirstlane_b32 s{sWid}, v{vT}")
    a.I(f"s_mov_b32 s{sChunk}, s2")
    a.I(f"s_mov_b32 s{sMaskHi}, 0xffff0000")

    def zero_counters(lbl):
        if TPB > 256:
            a.I(f"s_cmp_ge_u32 s{sWid}, 4")
            a.I(f"s_cbranch_scc1 {lbl}")
        a.I(f"ds_write_b128 v{vCnt16}, {v(vZ, 4)}")
        a.L(lbl)
    zero_counters("P1_Z0")
    a.I(f"v_lshrrev_b32 v{vOffA}, 1, v0")
    a.I(f"s_mov_b32 s{sTmp}, {NC * 32}")
    a.I(f"v_mul_lo_u32 v{vOffA}, v{vOffA}, s{sTmp}")
    a.I(f"v_and_b32 v{vT}, 1, v0")
    a.I(f"v_lshl_add_u32 v{vOffA}, v{vT}, 4, v{vOffA}")
    a.I("s_waitcnt lgkmcnt(0)")
    srd(a, sIN, 50, 51, T * 4)
    srd(a, sOUT, 52, 53, T * 4)
    srd(a, sANG, 56, 57, T * 2)
    pol = (" " + c.ld_in) if c.ld_in else ""

    def issue_inputs(schunk):
        a.I(f"s_mul_i32 s{sO4}, s{schunk}, {C * 4}")
        a.I(f"s_mul_i32 s{sO2}, s{schunk}, {C * 2}")
        for g in range(GPT):
            a.vmem(f"buffer_load_dwordx4 {v(pII + 4 * g, 4)}, v{vT16}, {s(sIN, 4)}, s{sO4} offen{pol}", f"ii{g}")
            a.vmem(f"buffer_load_dwordx4 {v(pIO + 4 * g, 4)}, v{vT16}, {s(sOUT, 4)}, s{sO4} offen{pol}", f"io{g}")
            a.vmem(f"buffer_load_dwordx2 {v(pAN + 2 * g, 2)}, v{vT8}, {s(sANG, 4)}, s{sO2} offen{pol}", f"an{g}")
            if g + 1 < GPT:
                a.I(f"s_add_u32 s{sO4}, s{sO4}, {TPB * 16}")
                a.I(f"s_add_u32 s{sO2}, s{sO2}, {TPB * 8}")

    issue_inputs(sChunk)
    srd(a, sM, 48, 49, E * 8)
    RPW = (E + G1 - 1) // G1
    NR_ = (RPW + TPB - 1) // TPB
    assert NR_ <= 4
    vMRa = tt
    vMR = tt + 4
    vS = tt + 12
    a.I(f"s_mul_i32 s{sMagic}, s2, {RPW * 8}")
    for r in range(NR_):
        lim = RPW - r * TPB
        a.I(f"v_add_u32 v{vMRa + r}, {r * TPB * 8}, v{vT8}")
        if lim < TPB:
            a.I(f"v_cmp_gt_u32 vcc, {lim}, v0")
            a.I(f"v_mov_b32 v{vT}, 0x7ffffff0")
            a.I(f"v_cndmask_b32 v{vMRa + r}, v{vT}, v{vMRa + r}, vcc")
        a.vmem(f"buffer_load_dwordx2 {v(vMR + 2 * r, 2)}, v{vMRa + r}, {s(sM, 4)}, s{sMagic} offen", f"mr{r}")
    a.I(f"s_mov_b32 s{sTmp}, s60")
    a.I(f"s_mov_b32 s{sTmp + 1}, s61")
    a.I("s_mov_b32 s10, s62")
    a.I("s_mov_b32 s11, s63")
    a.I("s_load_dwordx8 s[40:47], s[64:65], 0")
    a.I(f"s_load_dwordx4 s[{sCen}:{sCen + 3}], s[58:59], 0")
    a.I(f"s_load_dwordx16 s[{sWt}:{sWt + 15}], s[10:11], 0")
    a.I(f"s_load_dwordx16 s[{sWt + 16}:{sWt + 31}], s[10:11], 64")
    a.I(f"s_load_dwordx16 s[{sWt + 32}:{sWt + 47}], s[10:11], 128")
    a.I("s_waitcnt lgkmcnt(0)")
    r = 40
    for d in range(4):
        pk = "s_pack_ll_b32_b16" if d % 2 == 0 else "s_pack_hh_b32_b16"
        a.I(f"{pk} s{sW + 2 * d}, s{r + d // 2}, s{r + 2 + d // 2}")
        a.I(f"{pk} s{sW + 2 * d + 1}, s{r + 4 + d // 2}, s{r + 6 + d // 2}")
    sMDT, sGT = 40, 44
    srd(a, sMDT, 12, 13, E * 8, WS_MDT)
    srd(a, sGT, 12, 13, GT_BYTES, WS_GT)
    NTW = (1024 + G1 - 1) // G1
    EPW = NTW * 64
    while 1024 % NTW:
        NTW += 1
    EPW = NTW * 64
    assert NTW <= NWV
    a.I(f"s_cmp_lt_u32 s{sWid}, {NWV - NTW}")
    a.I("s_cbranch_scc1 P1_TB1")
    a.I(f"s_cmp_ge_u32 s2, {(1024 + NTW - 1) // NTW}")
    a.I("s_cbranch_scc1 P1_TB1")

    def ws_reg(j, l, d):
        base = sWt + 12 * j
        return [base + 2 * l, base + 2 * l + 1, base + 6 + 2 * l, base + 6 + 2 * l + 1][d]
    for j in range(4):
        for l in range(3):
            pack4(a, [ws_reg(j, l, t) for t in range(4)], sPT)
    vIdx = tt + 14
    vFlag = tt + 13
    vDd = tt + 15
    vr = tt + 16
    vRBF = tt + 24
    vg = tt + 28
    vs_ = tt + 40
    a.I(f"s_mul_i32 s{sPT}, s2, {EPW}")
    a.I(f"v_subrev_u32 v{vIdx}, {(NWV - NTW) * 64}, v0")
    a.I(f"v_add_u32 v{vIdx}, s{sPT}, v{vIdx}")
    a.I(f"v_lshlrev_b32 v{vDd}, 16, v{vIdx}")
    for r in range(8):
        if r % 2 == 0:
            a.I(f"s_lshl_b32 s{sPT + r % 4}, s{sCen + r // 2}, 16")
        else:
            a.I(f"s_and_b32 s{sPT + r % 4}, s{sCen + r // 2}, 0xffff0000")
        a.I(f"v_subrev_f32 v{vr + r}, s{sPT + r % 4}, v{vDd}")
    for r in range(8):
        a.I(f"v_cvt_pk_bf16_f32 v{vr + r}, 0, v{vr + r}")
    for r in range(8):
        a.I(f"v_mul_f32 v{vr + r}, v{vr + r}, v{vr + r}")
    for r in range(8):
        a.I(f"v_cvt_pk_bf16_f32 v{vr + r}, 0, v{vr + r}")
    for r in range(8):
        a.I(f"v_mul_f32 v{vr + r}, 0xc1200000, v{vr + r}")
    for r in range(8):
        a.I(f"v_cvt_pk_bf16_f32 v{vr + r}, 0, v{vr + r}")
    for r in range(8):
        a.I(f"v_mul_f32 v{vr + r}, 0x3fb8aa3b, v{vr + r}")
    for r in range(8):
        a.I(f"v_exp_f32 v{vr + r}, v{vr + r}")
    for q in range(4):
        a.I(f"v_cvt_pk_bf16_f32 v{vRBF + q}, v{vr + 2 * q}, v{vr + 2 * q + 1}")
    for q in range(4):
        for l in range(3):
            for d in range(4):
                src2 = "0" if q == 0 else f"v{vg + 4 * l + d}"
                a.I(f"v_dot2_f32_bf16 v{vg + 4 * l + d}, v{vRBF + q}, s{ws_reg(q, l, d)}, {src2}")
    a.I(f"s_load_dwordx16 s[{sWt}:{sWt + 15}], s[{sTmp}:{sTmp + 1}], 0")
    for d in range(4):
        a.I(f"v_add_f32 v{vs_ + d}, |v{vg + d}|, |v{vg + 4 + d}|")
    for d in range(4):
        a.I(f"v_add_f32 v{vs_ + d}, v{vs_ + d}, |v{vg + 8 + d}|")
    a.I(f"v_add_f32 v{vr}, v{vs_}, v{vs_ + 1}")
    a.I(f"v_add_f32 v{vr + 1}, v{vs_ + 2}, v{vs_ + 3}")
    a.I(f"v_add_f32 v{vr}, v{vr}, v{vr + 1}")
    a.I(f"v_cmp_gt_u32 vcc, 0x7f000000, v{vr}")
    for d in range(4):
        a.I(f"v_frexp_exp_i32_f32 v{vs_ + d}, v{vs_ + d}")
    a.I(f"s_movk_i32 s{sPT}, -60")
    for d in range(4):
        a.I(f"v_med3_i32 v{vs_ + d}, v{vs_ + d}, s{sPT}, 60")
    vSH = vDd
    a.I(f"v_and_b32 v{vSH}, 0xff, v{vs_}")
    for d in range(1, 4):
        a.I(f"v_and_b32 v{vr + d}, 0xff, v{vs_ + d}")
        a.I(f"v_lshl_or_b32 v{vSH}, v{vr + d}, {8 * d}, v{vSH}")
    for d in range(4):
        a.I(f"v_sub_u32 v{vs_ + d}, 0, v{vs_ + d}")
    for l in range(3):
        for d in range(4):
            a.I(f"v_ldexp_f32 v{vg + 4 * l + d}, v{vg + 4 * l + d}, v{vs_ + d}")
    a.I(f"v_cndmask_b32 v{vr + 7}, 1, 0, vcc") if False else None
    a.I(f"v_mov_b32 v{vr + 7}, 1")
    a.I(f"v_cndmask_b32 v{vFlag}, v{vr + 7}, v{vZ}, vcc")
    for d in range(4):
        a.I(f"v_cvt_pk_bf16_f32 v{vr + d}, v{vg + d}, v{vg + 4 + d}")
    a.I(f"v_cvt_pk_bf16_f32 v{vr + 4}, v{vg + 8}, v{vg + 9}")
    a.I(f"v_cvt_pk_bf16_f32 v{vr + 5}, v{vg + 10}, v{vg + 11}")
    a.I("s_waitcnt lgkmcnt(0)")
    for q in range(4):
        pack4(a, [sWt + 4 * q + t for t in range(4)], sPT)
    for q in range(4):
        for d in range(4):
            src2 = "0" if q == 0 else f"v{vs_ + d}"
            a.I(f"v_dot2_f32_bf16 v{vs_ + d}, v{vRBF + q}, s{sWt + q * 4 + d}, {src2}")
    a.I(f"v_lshlrev_b32 v{vg}, 5, v{vIdx}")
    a.I(f"v_lshlrev_b32 v{vg + 1}, 3, v{vIdx}")
    a.I(f"s_mov_b32 s{sPT + 1}, 0x200000")
    a.I(f"v_mov_b32 v{vr + 6}, v{vSH}")
    a.I(f"v_mov_b32 v{vr + 7}, v{vFlag}")
    a.I(f"v_cvt_pk_bf16_f32 v{vg + 2}, v{vs_}, v{vs_ + 1}")
    a.I(f"v_cvt_pk_bf16_f32 v{vg + 3}, v{vs_ + 2}, v{vs_ + 3}")
    a.I(f"buffer_store_dwordx4 {v(vr, 4)}, v{vg}, {s(sGT, 4)}, 0 offen")
    a.I(f"buffer_store_dwordx4 {v(vr + 4, 4)}, v{vg}, {s(sGT, 4)}, 0 offen offset:16")
    a.I(f"buffer_store_dwordx2 {v(vg + 2, 2)}, v{vg + 1}, {s(sGT, 4)}, s{sPT + 1} offen")
    a.L("P1_TB1")
    a.vwait_all()
    vMx = tt + 12
    a.I(f"v_mov_b32 v{vMx}, 0")
    a.I(f"s_mov_b32 s{sPT}, 0x7fff0000")
    for r in range(NR_):
        md_dots(a, vMR + 2 * r, vMR + 2 * r + 1, sW, vT + 4 * (r % 2))
        md_pack(a, vT + 4 * (r % 2), vMR + 2 * r, vMR + 2 * r + 1)
        a.I(f"buffer_store_dwordx2 {v(vMR + 2 * r, 2)}, v{vMRa + r}, {s(sMDT, 4)}, s{sMagic} offen")
        for h in range(2):
            a.I(f"v_lshlrev_b32 v{vT + 8}, 16, v{vMR + 2 * r + h}")
            a.I(f"v_and_b32 v{vT + 9}, s{sPT}, v{vMR + 2 * r + h}")
            a.I(f"v_and_b32 v{vT + 8}, s{sPT}, v{vT + 8}")
            a.I(f"v_max3_u32 v{vMx}, v{vMx}, v{vT + 8}, v{vT + 9}")
    scan_max(a, [vMx])
    srd(a, sGT, 12, 13, 0x10000, WS_MX)
    a.I(f"s_mul_i32 s{sPT}, s2, {NWV}")
    a.I(f"s_add_u32 s{sPT}, s{sPT}, s{sWid}")
    a.I(f"s_lshl_b32 s{sPT}, s{sPT}, 2")
    a.I(f"s_mov_b64 exec, 0x8000000000000000") if False else None
    a.I(f"v_readlane_b32 s{sPT + 1}, v{vMx}, 63")
    a.I(f"v_mov_b32 v{vMx}, s{sPT + 1}")
    a.I("s_mov_b64 exec, 1")
    a.I(f"buffer_store_dword v{vMx}, v{vZ}, {s(sGT, 4)}, s{sPT} offen")
    a.I("s_mov_b64 exec, -1")
    a.I("s_nop 4")
    srd(a, sREC, 12, 13, NC * CB)
    srd(a, sOFF, 12, 13, 128 * NC * 32, WS_OFFS)
    sMT = 13
    a.I(f"s_mov_b32 s{sMT}, {MT}")
    sCnt = 12
    a.I(f"s_mov_b32 s{sCnt}, {CNT}")
    a.I(f"s_mov_b32 s{sMagic}, {MAGIC}")
    a.I(f"s_mov_b32 s{sNegS2}, {-(S // 2)}")
    a.I("s_waitcnt vmcnt(0) lgkmcnt(0)")
    st_("tables")
    ncopy = (CB + TPB * 16 - 1) // (TPB * 16)
    a.vm = []
    for g in range(GPT):
        a.vm += [f"ii{g}", f"io{g}", f"an{g}"]
    a.vm += (["offst"] if c.early else []) + ["cp"] * ncopy
    a.L("P1_LOOP")
    a.I("s_barrier")
    st_("top")
    a.I(f"s_cmp_eq_u32 s{sChunk}, {NC - 1}")
    a.I(f"s_cselect_b32 s{sPre}, {c.LASTG}, {GPT}")
    G = c.useG
    for g in range(GPT):
        a.vwait(f"an{g}")
        for k in range(4):
            i = 4 * g + k
            a.I(f"v_mul_hi_u32_u24 v{vT + k}, s{sMagic}, v{pIO + i}")
            if c.TA:
                a.I(f"v_add_u32 v{vT + 4 + k}, {c.TA}, v{pII + i}")
                a.I(f"v_mul_hi_u32_u24 v{vT + 4 + k}, s{sMT}, v{vT + 4 + k}")
            else:
                a.I(f"v_mul_hi_u32_u24 v{vT + 4 + k}, s{sMT}, v{pII + i}")
        for k in range(4):
            i = 4 * g + k
            a.I(f"v_lshl_add_u32 v{vKA + i}, v{vT + k}, 4, s{sCnt}")
            a.I(f"v_lshlrev_b32 v{vX + 2 * i}, 3, v{pII + i}")
            a.I(f"v_lshlrev_b32 v{vT + k}, 3, v{vT + k}")
            a.I(f"v_lshlrev_b32 v{ME[i]}, 2, v{pIO + i}")
            a.I(f"v_lshl_add_u32 v{vKA + i}, v{vT + 4 + k}, 2, v{vKA + i}")
            a.I(f"v_mad_i32_i24 v{ME[i]}, v{vT + k}, s{sNegS2}, v{ME[i]}")
            an = pAN + 2 * g + k // 2
            if k % 2 == 0:
                a.I(f"v_lshl_or_b32 v{ME[i]}, v{an}, 16, v{ME[i]}")
            else:
                a.I(f"v_and_or_b32 v{ME[i]}, v{an}, s{sMaskHi}, v{ME[i]}")
            if c.useG:
                a.I(f"v_mov_b32 v{vX + 2 * i + 1}, v{ME[i]}")
        if G:
            for k in range(4):
                i = 4 * g + k
                a.I(f"v_cmp_eq_u32 vcc, 0, v{vT + 4 + k}")
                a.I(f"v_mov_b32 v{vT + 8 + k}, 8")
                a.I("s_mov_b64 exec, vcc")
                a.vmem(f"buffer_load_dwordx2 {v(vX + 2 * i, 2)}, v{vX + 2 * i}, {s(sM, 4)}, 0 offen", f"md{i}")
                a.I(f"v_mov_b32 v{vT + 8 + k}, 12")
                a.I("s_mov_b64 exec, -1")
        if g >= c.LASTG:
            a.I(f"s_cmp_le_u32 s{sPre}, {g}")
            a.I(f"s_cbranch_scc1 P1_HS{g}")
        for k in range(4):
            i = 4 * g + k
            a.I(f"ds_add_rtn_u32 v{vRK + i}, v{vKA + i}, v{(vT + 8 + k) if G else vOne}")
        if g >= c.LASTG:
            a.L(f"P1_HS{g}")
    st_("hist_issued")
    if c.early:
        a.I(f"s_add_u32 s{sTmp}, s{sChunk}, {G1}")
        issue_inputs(sTmp)
    a.I("s_waitcnt lgkmcnt(0)")
    a.I("s_barrier")
    st_("barB")
    n0 = vT
    pA, pB, iA, iB = vT + 4, vT + 5, vT + 6, vT + 7
    x = vT + 8
    sS = 48
    sTot = 64
    if TPB > 256:
        a.I(f"s_cmp_ge_u32 s{sWid}, 4")
        a.I("s_cbranch_scc1 P1_S1")
    a.I(f"ds_read_b128 {v(n0, 4)}, v{vCnt16}")
    a.I("s_waitcnt lgkmcnt(0)")
    a.I(f"v_lshl_or_b32 v{pA}, v{n0 + 1}, 16, v{n0}")
    a.I(f"v_lshl_or_b32 v{pB}, v{n0 + 3}, 16, v{n0 + 2}")
    a.I(f"v_mov_b32 v{iA}, v{pA}")
    a.I(f"v_mov_b32 v{iB}, v{pB}")
    scan_add(a, [iA, iB])
    a.I(f"v_readlane_b32 s{sS}, v{iA}, 63")
    a.I(f"v_readlane_b32 s{sS + 1}, v{iB}, 63")
    a.I(f"s_lshl_b32 s{sTmp + 1}, s{sWid}, 3")
    a.I(f"s_add_u32 s{sTmp + 1}, s{sTmp + 1}, s{sCnt}")
    a.I(f"v_mov_b32 v{x + 2}, s{sTmp + 1}")
    a.I(f"v_mov_b32 v{x}, s{sS}")
    a.I(f"v_mov_b32 v{x + 1}, s{sS + 1}")
    a.I(f"ds_write_b64 v{x + 2}, {v(x, 2)} offset:{WT}")
    a.I("s_waitcnt lgkmcnt(0)")
    a.L("P1_S1")
    a.I("s_barrier")
    if TPB > 256:
        a.I(f"s_cmp_ge_u32 s{sWid}, 4")
        a.I("s_cbranch_scc1 P1_S2")
    a.I(f"v_and_b32 v{x}, 7, v0")
    a.I(f"v_lshl_add_u32 v{x}, v{x}, 2, s{sCnt}")
    a.I(f"ds_read_b32 v{x}, v{x} offset:{WT}")
    a.I(f"v_sub_u32 v{iA}, v{iA}, v{pA}")
    a.I(f"v_sub_u32 v{iB}, v{iB}, v{pB}")
    a.I("s_waitcnt lgkmcnt(0)")
    for l in range(8):
        a.I(f"v_readlane_b32 s{sS + l}, v{x}, {l}")
    a.I(f"s_add_u32 s{sS + 8}, s{sS}, s{sS + 2}")
    a.I(f"s_add_u32 s{sS + 8}, s{sS + 8}, s{sS + 4}")
    a.I(f"s_add_u32 s{sS + 8}, s{sS + 8}, s{sS + 6}")
    a.I(f"s_add_u32 s{sS + 9}, s{sS + 1}, s{sS + 3}")
    a.I(f"s_add_u32 s{sS + 9}, s{sS + 9}, s{sS + 5}")
    a.I(f"s_add_u32 s{sS + 9}, s{sS + 9}, s{sS + 7}")
    a.I(f"s_mov_b32 s{sS + 10}, 0")
    a.I(f"s_mov_b32 s{sS + 11}, 0")
    for w in range(3):
        a.I(f"s_cmp_gt_u32 s{sWid}, {w}")
        a.I(f"s_cselect_b32 s{sS + 2 * w}, s{sS + 2 * w}, 0")
        a.I(f"s_cselect_b32 s{sS + 2 * w + 1}, s{sS + 2 * w + 1}, 0")
        a.I(f"s_add_u32 s{sS + 10}, s{sS + 10}, s{sS + 2 * w}")
        a.I(f"s_add_u32 s{sS + 11}, s{sS + 11}, s{sS + 2 * w + 1}")
    assert TPB == 256 or c.LASTG == GPT
    a.I(f"s_add_u32 s{sTot}, s{sS + 8}, s{sS + 9}")
    a.I(f"s_lshr_b32 s{sS + 12}, s{sTot}, 16")
    a.I(f"s_and_b32 s{sTot}, s{sTot}, 0xffff")
    a.I(f"s_add_u32 s{sTot}, s{sTot}, s{sS + 12}")
    a.I(f"s_lshl_b32 s{sTot}, s{sTot}, 3")
    a.I(f"s_and_b32 s{sS}, s{sS + 8}, 0xffff")
    a.I(f"s_lshr_b32 s{sS + 1}, s{sS + 8}, 16")
    a.I(f"s_add_u32 s{sS + 1}, s{sS + 1}, s{sS}")
    a.I(f"s_and_b32 s{sS + 2}, s{sS + 9}, 0xffff")
    a.I(f"s_add_u32 s{sS + 2}, s{sS + 2}, s{sS + 1}")
    a.I(f"s_lshl_b32 s{sS}, s{sS}, 16")
    a.I(f"s_add_u32 s{sS + 10}, s{sS + 10}, s{sS}")
    a.I(f"s_lshl_b32 s{sS + 2}, s{sS + 2}, 16")
    a.I(f"s_add_u32 s{sS + 11}, s{sS + 11}, s{sS + 1}")
    a.I(f"s_add_u32 s{sS + 11}, s{sS + 11}, s{sS + 2}")
    a.I(f"v_add_u32 v{iA}, s{sS + 10}, v{iA}")
    a.I(f"v_add_u32 v{iB}, s{sS + 11}, v{iB}")
    a.I(f"v_and_b32 v{x}, 0xffff, v{iA}")
    a.I(f"v_lshrrev_b32 v{x + 1}, 16, v{iA}")
    a.I(f"v_and_b32 v{x + 2}, 0xffff, v{iB}")
    a.I(f"v_lshrrev_b32 v{x + 3}, 16, v{iB}")
    for t in range(4):
        a.I(f"v_lshl_or_b32 v{n0 + t}, v{n0 + t}, 16, v{x + t}")
    a.I(f"ds_write_b128 v{vCnt16}, {v(x, 4)}")
    a.I("s_waitcnt lgkmcnt(0)")
    a.L("P1_S2")
    a.I(f"s_lshl_b32 s{sTmp + 1}, s{sChunk}, 5")
    a.vmem(f"buffer_store_dwordx4 {v(n0, 4)}, v{vOffA}, {s(sOFF, 4)}, s{sTmp + 1} offen", "offst")
    a.I("s_barrier")
    st_("scan")
    for g in range(GPT):
        if g >= c.LASTG:
            a.I(f"s_cmp_le_u32 s{sPre}, {g}")
            a.I("s_cbranch_scc1 P1_SCAT_DONE")
        for k in range(4):
            i = 4 * g + k
            if G:
                a.I(f"v_and_b32 v{vT + 8 + k}, 12, v{vKA + i}")
            a.I(f"ds_read_b32 v{vKA + i}, v{vKA + i}")
        if G:
            for k in range(4):
                i = 4 * g + k
                xx = vX + 2 * i
                a.I(f"v_cmp_eq_u32 s[{sS + 2 * k}:{sS + 2 * k + 1}], 0, v{vT + 8 + k}")
                a.vwait(f"md{i}", trim=(g < c.LASTG))
                md_dots(a, xx, xx + 1, sW, vT + 4 * (k % 2))
                a.I(f"s_mov_b64 exec, s[{sS + 2 * k}:{sS + 2 * k + 1}]")
                md_pack(a, vT + 4 * (k % 2), xx, xx + 1)
                a.I("s_mov_b64 exec, -1")
        a.I("s_waitcnt lgkmcnt(0)")
        for k in range(4):
            i = 4 * g + k
            a.I(f"v_add_lshl_u32 v{vKA + i}, v{vRK + i}, v{vKA + i}, 3")
            if G:
                a.I(f"ds_write2_b32 v{vKA + i}, v{vX + 2 * i}, v{vX + 2 * i + 1} offset0:0 offset1:1")
            else:
                a.I(f"ds_write_b64 v{vKA + i}, {v(vX + 2 * i, 2)}")
            if G:
                a.I(f"s_mov_b64 exec, s[{sS + 2 * k}:{sS + 2 * k + 1}]")
                a.I(f"ds_write_b32 v{vKA + i}, v{ME[i]} offset:8")
                a.I("s_mov_b64 exec, -1")
    a.L("P1_SCAT_DONE")
    if G:
        a.vwait(f"md{4 * GPT - 1}")
    a.I("s_waitcnt lgkmcnt(0)")
    st_("scat")
    a.I("s_barrier")
    st_("barE")
    if not c.early:
        a.I(f"s_add_u32 s{sTmp}, s{sChunk}, {G1}")
        issue_inputs(sTmp)
    st_("pref_issued")
    zero_counters("P1_Z1")
    a.I(f"s_mul_i32 s{sRecOff}, s{sChunk}, {CB}")
    bufs = list(range(pool0, pool1 - 3, 4))
    assert len(bufs) >= ncopy
    spol = (" " + c.st_rec) if c.st_rec else ""
    step = TPB * 16
    per = 65536 // step
    for q in range(1, (ncopy + per - 1) // per):
        a.I(f"v_add_u32 v{vT + q}, {q * per * step}, v{vT16}")
    for i in range(ncopy):
        q = i // per
        base, off = (vT16 if q == 0 else vT + q), (i % per) * step
        a.I(f"ds_read_b128 {v(bufs[i], 4)}, v{base} offset:{off}")
    for i in range(ncopy):
        n_out = ncopy - 1 - i
        a.I(f"s_waitcnt lgkmcnt({min(n_out, 15)})")
        guard = (i + 1) * step > C * 8 or c.LASTG < GPT
        if guard:
            a.I(f"s_sub_i32 s{sTmp}, s{sTot}, {i * step}")
            a.I(f"v_cmp_gt_i32 vcc, s{sTmp}, v{vT16}")
            a.I("s_mov_b64 exec, vcc")
        a.vmem(f"buffer_store_dwordx4 {v(bufs[i], 4)}, v{vT16}, {s(sREC, 4)}, s{sRecOff} offen{spol}", "cp")
        if guard:
            a.I("s_mov_b64 exec, -1")
        a.I(f"s_add_u32 s{sRecOff}, s{sRecOff}, {step}")
    st_("copy")
    a.I(f"s_add_u32 s{sChunk}, s{sChunk}, {G1}")
    a.I(f"s_cmp_lt_u32 s{sChunk}, {NC}")
    a.I("s_cbranch_scc1 P1_LOOP")
    st_.flush(sWid, NWV, 0x8000000, 92, vT)
    a.L("P1_END")
    a.I("s_endpgm")
    return a, lds


def merge(A, B):
    out = []
    la, lb = len(A), len(B)
    ia = ib = 0
    while ia < la or ib < lb:
        if ib >= lb or (ia < la and ia * lb <= ib * la):
            out.append(A[ia]); ia += 1
        else:
            out.append(B[ib]); ib += 1
    return out


def gen_p2(c):
    a = Asm()
    NT, NC, CB, EPL, CPW, nb = c.NT, c.NC, c.CB, c.EPL, c.CPW, c.nb
    SUB = c.sub
    BSH = c.bsh
    NMX = c.G1 * (c.TPB1 // 64)
    MT, TA = c.MT, c.TA
    NBT = [c.nb0 if t == 0 else nb for t in range(NT)]
    tlo = [0] + [next(i for i in range(max(0, -(-(t << 32) // MT) - TA - 2), E) if ((i + TA) * MT) >> 32 == t) for t in range(1, NT)]
    bin0 = [(tlo[t] * 8) >> BSH for t in range(NT)]
    binN = [(((tlo[t + 1] - 1) if t + 1 < NT else E - 1) * 8 >> BSH) - bin0[t] + 1 for t in range(NT)]
    NBIN = 512
    assert max(binN) <= NBIN
    ACC = 0
    GB = 4 * S * 4
    GA = GB + S * 8
    MISC = GA + S * 16
    CNT2 = MISC + 256
    MARKS = CNT2 + 2 * NBIN * 4
    MW = SUB * 256
    assert MW % 512 == 0
    SORT = MARKS + 16 * MW
    lds = SORT + nb * 1024 * 8
    assert lds <= 163840, lds
    va = Alloc("v", 1, 128)
    vMk4 = va.get(); vMk8 = va.get()
    vLaneR = va.get()
    vP = [va.get(EPL) for _ in range(NT)]
    vDl = [va.get(EPL) for _ in range(NT)]
    vA = va.get()
    vSrt = va.get()
    vSH = va.get(2, 2)
    vD8 = va.get(2, 2)
    vZ = va.get(2, 2)
    rX = [va.get(2, 2) for _ in range(nb)]
    sX_ = [[va.get(2, 2) for _ in range(nb)] for _ in range(2)]
    rK = [va.get() for _ in range(nb)]
    sM_ = [[va.get() for _ in range(nb)] for _ in range(2)]
    vT = va.get(24, 2)
    sREC, sMDT, sXs, sY = 16, 20, 24, 28
    sB, sWid, sMode, sMkBase, sKB, sScale, sT, sOff, sMaskHi = 4, 5, 6, 7, 8, 9, 14, 15, 3
    sPtr = 32
    sSave = 42
    sOUT, sMS = 44, 48
    sWU = 56
    sN = [72 + t for t in range(4)]
    sP0 = [76 + t for t in range(4)]
    sCar = [80 + t for t in range(4)]
    sRem = [84 + t for t in range(4)]
    sSR = [88, 89]
    NW2 = (S - 1024 + 63) // 64

    a.I(f"s_cmp_ge_u32 s2, {NB}")
    a.I("s_cbranch_scc1 P2_END")
    st_ = Stamper(a, c.stamps, va.get() if c.stamps else 0, 100)
    if c.stamps:
        a.I(f"v_mov_b32 v{st_.v}, 0")
    st_("start")
    a.I(f"s_load_dwordx2 s[{sPtr}:{sPtr + 1}], s[0:1], 104")
    a.I(f"s_load_dwordx2 s[{sPtr + 2}:{sPtr + 3}], s[0:1], 24")
    a.I(f"s_load_dwordx4 s[{sPtr + 4}:{sPtr + 7}], s[0:1], 80")
    a.I(f"s_load_dwordx2 s[52:53], s[0:1], 0")
    a.I(f"s_and_b32 s{sB}, s2, 7")
    a.I(f"s_lshl_b32 s{sB}, s{sB}, 5")
    a.I(f"s_lshr_b32 s{sT}, s2, 3")
    a.I(f"s_add_u32 s{sB}, s{sB}, s{sT}")
    a.I(f"s_mov_b32 s{sMaskHi}, 0xffff0000")
    vLane = vT + 23
    a.I(f"v_and_b32 v{vLane}, 63, v0")
    a.I(f"v_lshrrev_b32 v{vT}, 6, v0")
    a.I(f"v_readfirstlane_b32 s{sWid}, v{vT}")
    vC = vT + 2
    a.I(f"v_mul_u32_u24 v{vC}, {EPL}, v{vLane}")
    a.I(f"s_mul_i32 s{sT}, s{sWid}, {CPW}")
    a.I(f"v_add_u32 v{vC}, s{sT}, v{vC}")
    a.I(f"s_lshr_b32 s{sT}, s{sB}, 1")
    a.I(f"s_mul_i32 s{sT}, s{sT}, {NC * 32}")
    a.I(f"s_and_b32 s{sOff}, s{sB}, 1")
    a.I(f"s_lshl_b32 s{sOff}, s{sOff}, 4")
    a.I(f"s_add_u32 s{sT}, s{sT}, s{sOff}")
    a.I(f"v_lshlrev_b32 v{vT + 3}, 5, v{vC}")
    a.I(f"s_mul_i32 s{sOff}, s{sB}, {S * 2}")
    vE0 = vT + 1
    a.I(f"v_lshlrev_b32 v{vE0}, 1, v0")
    a.I(f"v_lshlrev_b32 v{vA}, 4, v0")
    a.I("s_waitcnt lgkmcnt(0)")
    srd(a, sXs, sPtr, sPtr + 1, 128 * NC * 32, WS_OFFS)
    vEnt = vT + 4
    for e in range(EPL):
        a.vmem(f"buffer_load_dwordx4 {v(vEnt + 4 * e, 4)}, v{vT + 3}, {s(sXs, 4)}, s{sT} offen offset:{32 * e}", f"ent{e}")
    srd(a, sY, sPtr + 2, sPtr + 3, E * 2)
    vD = vSH
    a.vmem(f"buffer_load_ushort v{vD}, v{vE0}, {s(sY, 4)}, s{sOff} offen", "d0")
    a.vmem(f"buffer_load_ushort v{vD + 1}, v{vE0}, {s(sY, 4)}, s{sOff} offen offset:2048", "d1")
    assert NMX <= 4096
    srd(a, sXs, sPtr, sPtr + 1, NMX * 4, WS_MX)
    vMxv = sX_[1][0]
    assert sX_[1][1] == vMxv + 2
    a.vmem(f"buffer_load_dwordx4 {v(vMxv, 4)}, v{vA}, {s(sXs, 4)}, 0 offen", "mx")
    a.I(f"s_load_dwordx8 s[64:71], s[{sPtr + 4}:{sPtr + 5}], 0")
    srd(a, sMDT, sPtr, sPtr + 1, E * 8, WS_MDT)
    srd(a, sREC, sPtr, sPtr + 1, NC * CB)
    srd(a, sOUT, sPtr + 6, sPtr + 7, E * 8)
    srd(a, sMS, 52, 53, E * 8)
    for i in range(4):
        a.I(f"v_mov_b32 v{vT + 16 + i}, 0")
    a.I(f"v_mov_b32 v{vZ}, 0")
    a.I(f"v_mov_b32 v{vZ + 1}, 0")
    nz = (4 * S * 4) // 16
    a.I(f"ds_write_b128 v{vA}, {v(vT + 16, 4)}")
    a.I(f"v_cmp_gt_u32 vcc, {nz - 1024}, v0")
    a.I(f"v_lshlrev_b32 v{vT}, 2, v0")
    a.I(f"v_add_u32 v{vT}, {CNT2}, v{vT}")
    a.I(f"ds_write_b32 v{vT}, v{vZ}")
    a.I("s_mov_b64 exec, vcc")
    a.I(f"ds_write_b128 v{vA}, {v(vT + 16, 4)} offset:16384")
    a.I("s_mov_b64 exec, -1")
    a.I(f"v_lshlrev_b32 v{vLaneR}, 3, v{vLane}")
    a.I(f"v_lshlrev_b32 v{vSrt}, 3, v0")
    a.I(f"v_add_u32 v{vSrt}, {SORT}, v{vSrt}")
    a.I(f"s_mul_i32 s{sMkBase}, s{sWid}, {MW}")
    a.I(f"s_add_u32 s{sMkBase}, s{sMkBase}, {MARKS}")
    a.I(f"v_lshl_add_u32 v{vMk4}, v{vLane}, 2, s{sMkBase}")
    a.I(f"v_lshl_add_u32 v{vMk8}, v{vLane}, 3, s{sMkBase}")
    srd(a, sY, sPtr, sPtr + 1, GT_BYTES, WS_GT)
    a.vwait(f"ent{EPL - 1}")
    st_("ent")
    vn = vT + 12
    vsum = vT + 20
    assert EPL <= 2
    for e in range(EPL):
        if e:
            a.I(f"v_add_u32 v{vC}, 1, v{vC}")
        a.I(f"v_cmp_gt_u32 vcc, {NC}, v{vC}")
        a.I(f"v_cmp_gt_u32 s[{sSave}:{sSave + 1}], {CPW // EPL}, v{vLane}")
        a.I(f"s_mov_b32 s{sT}, {CB}")
        a.I(f"s_and_b64 vcc, vcc, s[{sSave}:{sSave + 1}]")
        a.I(f"v_mul_lo_u32 v{vsum}, v{vC}, s{sT}")
        for t in range(NT):
            d = vEnt + 4 * e + t
            n_ = vn + t * EPL + e
            a.I(f"v_lshrrev_b32 v{n_}, 16, v{d}")
            a.I(f"v_and_b32 v{d}, 0xffff, v{d}")
            a.I(f"v_cndmask_b32 v{n_}, 0, v{n_}, vcc")
            a.I(f"v_lshl_add_u32 v{vDl[t] + e}, v{d}, 3, v{vsum}")
    for t in range(NT):
        if EPL == 2:
            a.I(f"v_add_u32 v{vEnt + t}, v{vn + 2 * t}, v{vn + 2 * t + 1}")
        else:
            a.I(f"v_mov_b32 v{vEnt + t}, v{vn + t}")
        a.I(f"v_mov_b32 v{vP[t]}, v{vEnt + t}")
    scan_add(a, [vP[t] for t in range(NT)])
    for t in range(NT):
        a.I(f"v_readlane_b32 s{sN[t]}, v{vP[t]}, 63")
    for t in range(NT):
        a.I(f"v_sub_u32 v{vP[t]}, v{vP[t]}, v{vEnt + t}")
        if EPL == 2:
            a.I(f"v_add_u32 v{vP[t] + 1}, v{vP[t]}, v{vn + 2 * t}")
    for t in range(NT):
        for e in range(EPL):
            a.I(f"v_lshlrev_b32 v{vsum}, 3, v{vP[t] + e}")
            a.I(f"v_cmp_ne_u32 vcc, 0, v{vn + t * EPL + e}")
            a.I(f"v_sub_u32 v{vDl[t] + e}, v{vDl[t] + e}, v{vsum}")
            a.I(f"v_cndmask_b32 v{vP[t] + e}, -1, v{vP[t] + e}, vcc")
    sTotN = sKB
    a.I(f"s_mov_b32 s{sTotN}, 0")
    for t in range(NT):
        a.I(f"s_mov_b32 s{sP0[t]}, 0")
        a.I(f"s_mov_b32 s{sCar[t]}, 0")
        a.I(f"s_mov_b32 s{sRem[t]}, s{sN[t]}")
        a.I(f"s_add_u32 s{sTotN}, s{sTotN}, s{sN[t]}")
    tA = [vT + 4, vT + 8]
    tB = [vT + 12, vT + 16]

    def table_loads():
        for j in range(2):
            a.vwait(f"d{j}")
            a.I(f"v_lshlrev_b32 v{vT + 20 + j}, 5, v{vD + j}")
            a.I(f"v_lshlrev_b32 v{vD8 + j}, 3, v{vD + j}")
            a.vmem(f"buffer_load_dwordx4 {v(tA[j], 4)}, v{vT + 20 + j}, {s(sY, 4)}, 0 offen", f"ta{j}")
            a.vmem(f"buffer_load_dwordx4 {v(tB[j], 4)}, v{vT + 20 + j}, {s(sY, 4)}, 0 offen offset:16", f"ts{j}")

    ldpol = (" " + c.ld_rec) if c.ld_rec else ""

    def set_exec_s(sreg, off):
        if off:
            a.I(f"s_sub_i32 s{sT}, s{sreg}, {off}")
            a.I(f"s_max_i32 s{sT}, s{sT}, 0")
        else:
            a.I(f"s_max_i32 s{sT}, s{sreg}, 0")
        a.I(f"s_bfm_b64 exec, s{sT}, 0")
        a.I(f"s_cmp_ge_i32 s{sT}, 64")
        a.I("s_cselect_b64 exec, -1, exec")

    def stageA_p(t, n_tot, regs, tagp):
        P = []
        k0 = 0
        while k0 < n_tot:
            n = min(SUB, n_tot - k0)

            def p(k0=k0, n=n):
                for i in range((n * 256 + 511) // 512):
                    a.I(f"ds_write_b64 v{vMk8}, {v(vZ, 2)} offset:{i * 512}")
                a.I(f"s_add_u32 s{sOff}, s{sP0[t]}, {k0 * 64}")
                for e in range(EPL):
                    a.I(f"v_subrev_u32 v{vA}, s{sOff}, v{vP[t] + e}")
                    a.I(f"v_cmp_gt_u32 vcc, {n * 64}, v{vA}")
                    a.I(f"v_lshl_add_u32 v{vA}, v{vA}, 2, s{sMkBase}")
                    a.I("s_mov_b64 exec, vcc")
                    a.I(f"ds_write_b32 v{vA}, v{vDl[t] + e}")
                    a.I("s_mov_b64 exec, -1")
                for k in range(n):
                    a.I(f"ds_read_b32 v{regs[k0 + k]}, v{vMk4} offset:{k * 256}")
                a.I(f"s_lshl_b32 s{sOff}, s{sOff}, 3")
                a.I("s_waitcnt lgkmcnt(0)")
                scan_max(a, [regs[k0 + k] for k in range(n)])
                for k in range(k0, k0 + n):
                    r = regs[k]
                    a.I(f"v_max_u32 v{r}, s{sCar[t]}, v{r}")
                    a.I(f"v_readlane_b32 s{sCar[t]}, v{r}, 63")
                    a.I(f"v_add3_u32 v{r}, v{r}, v{vLaneR}, s{sOff}")
                    a.I(f"s_add_u32 s{sOff}, s{sOff}, 512")
                    set_exec_s(sRem[t], 64 * k)
                    a.vmem(f"buffer_load_dwordx2 {v(r, 2)}, v{r}, {s(sREC, 4)}, 0 offen{ldpol}", f"{tagp}{k}")
                    a.I("s_mov_b64 exec, -1")
            P.append(p)
            k0 += n
        return P

    def stageA(t, n_tot, regs, tagp):
        for p in stageA_p(t, n_tot, regs, tagp):
            p()

    def gather(r, m, sreg, off, tag):
        set_exec_s(sreg, off)
        a.I(f"v_mov_b32 v{m}, v{r + 1}")
        a.vmem(f"buffer_load_dwordx2 {v(r, 2)}, v{r}, {s(sMDT, 4)}, 0 offen", tag)
        a.I("s_mov_b64 exec, -1")

    lblc = [0]

    def comp(r, meta, sreg, off, tag):
        n = lblc[0]; lblc[0] += 1
        m01, m23 = r, r + 1
        t = vT
        a16, a8, a4 = t, t + 1, t + 2
        af, r0, r2 = t + 3, t + 4, t + 5
        Gq = t + 8
        Gb = t + 12
        c01, c2l, c2h = t + 6, t + 7, t + 14
        md = t + 16
        g = t + 20
        set_exec_s(sreg, off)
        a.I(f"s_cbranch_execz P2_SK{n}")
        a.I(f"v_and_b32 v{a4}, 0xffff, v{meta}")
        a.I(f"v_add_u32 v{a8}, v{a4}, v{a4}")
        a.I(f"v_add_u32 v{a16}, v{a8}, v{a8}")
        a.I(f"ds_read_b64 {v(Gb, 2)}, v{a8} offset:{GB}")
        a.I(f"ds_read_b128 {v(Gq, 4)}, v{a16} offset:{GA}")
        a.I(f"v_and_b32 v{af}, s{sMaskHi}, v{meta}")
        a.I(f"v_mul_f32 v{r0}, 0.15915494, v{af}")
        a.I(f"v_mul_f32 v{r2}, 0x40400000, v{af}")
        a.I(f"v_cos_f32 v{r0}, v{r0}")
        a.I(f"v_cvt_pk_bf16_f32 v{r2}, 0, v{r2}")
        a.I(f"v_mul_f32 v{r2}, 0.15915494, v{r2}")
        a.I(f"v_mul_f32 v{af}, v{r0}, v{r0}")
        a.I(f"v_cos_f32 v{r2}, v{r2}")
        a.I(f"v_fma_f32 v{af}, v{af}, 2.0, -1.0")
        a.I(f"v_cvt_pk_bf16_f32 v{c01}, v{r0}, v{af}")
        a.I(f"v_cvt_pk_bf16_f32 v{c2l}, v{r2}, 0")
        a.I(f"v_cvt_pk_bf16_f32 v{c2h}, 0, v{r2}")
        a.I("s_waitcnt lgkmcnt(1)")
        for d in range(4):
            a.I(f"v_dot2_f32_bf16 v{g + d}, v{Gb + d // 2}, v{c2l if d % 2 == 0 else c2h}, 0")
        a.I("s_waitcnt lgkmcnt(0)")
        for d in range(4):
            a.I(f"v_dot2_f32_bf16 v{g + d}, v{Gq + d}, v{c01}, v{g + d}")
        a.vwait(tag, trim=False)
        a.I(f"v_lshlrev_b32 v{md}, 16, v{m01}")
        a.I(f"v_and_b32 v{md + 1}, s{sMaskHi}, v{m01}")
        a.I(f"v_lshlrev_b32 v{md + 2}, 16, v{m23}")
        a.I(f"v_and_b32 v{md + 3}, s{sMaskHi}, v{m23}")
        a.I(f"s_cmp_lg_u32 s{sMode}, 0")
        for d in range(4):
            a.I(f"v_mul_f32 v{md + d}, v{md + d}, v{g + d}")
        a.I(f"s_cbranch_scc1 P2_FL{n}")
        for d in range(4):
            a.I(f"v_cvt_rpi_i32_f32 v{g + d}, v{md + d}")
            a.I(f"ds_add_u32 v{a4}, v{g + d} offset:{ACC + d * S * 4}")
        a.I(f"s_branch P2_SK{n}")
        a.L(f"P2_FL{n}")
        for d in range(4):
            a.I(f"ds_add_f32 v{a4}, v{md + d} offset:{ACC + d * S * 4}")
        a.L(f"P2_SK{n}")
        a.I("s_mov_b64 exec, -1")
        a.vwait(tag)

    def misc_and_scale():
        a.vwait("mx")
        a.I(f"v_max3_u32 v{vMxv}, v{vMxv}, v{vMxv + 1}, v{vMxv + 2}")
        a.I(f"v_max_u32 v{vMxv}, v{vMxv}, v{vMxv + 3}")
        a.vwait("ts1")
        a.I(f"v_cmp_gt_u32 vcc, {S - 1024}, v0")
        a.I(f"v_cndmask_b32 v{tB[1] + 3}, 0, v{tB[1] + 3}, vcc")
        a.I(f"v_or_b32 v{vMxv + 1}, v{tB[0] + 3}, v{tB[1] + 3}")
        a.I(f"v_lshlrev_b32 v{vMxv + 1}, 31, v{vMxv + 1}")
        a.I(f"v_or_b32 v{vMxv}, v{vMxv}, v{vMxv + 1}")
        scan_max(a, [vMxv])
        a.I(f"v_readlane_b32 s{sT}, v{vMxv}, 63")
        a.I(f"s_lshl_b32 s{sOff}, s{sWid}, 3")
        a.I(f"s_add_u32 s{sOff}, s{sOff}, {MISC}")
        a.I(f"v_mov_b32 v{vMxv}, s{sTotN}")
        a.I(f"v_mov_b32 v{vMxv + 1}, s{sT}")
        a.I(f"v_mov_b32 v{vMxv + 2}, s{sOff}")
        a.I("s_mov_b64 exec, 1")
        a.I(f"ds_write_b64 v{vMxv + 2}, {v(vMxv, 2)}")
        a.I("s_mov_b64 exec, -1")
        a.I("s_waitcnt lgkmcnt(0)")
        st_("pre")
        a.I("s_barrier")
        st_("bar")
        a.I(f"v_and_b32 v{vMxv + 2}, 15, v0")
        a.I(f"v_lshlrev_b32 v{vMxv + 2}, 3, v{vMxv + 2}")
        a.I(f"v_add_u32 v{vMxv + 2}, {MISC}, v{vMxv + 2}")
        a.I(f"ds_read_b64 {v(vMxv, 2)}, v{vMxv + 2}")
        for h in range(2):
            for d in range(4):
                pk = "s_pack_ll_b32_b16" if d % 2 == 0 else "s_pack_hh_b32_b16"
                a.I(f"{pk} s{sWU + h * 4 + d}, s{64 + 4 * h + d // 2}, s{64 + 4 * h + 2 + d // 2}")
        a.I("s_waitcnt lgkmcnt(0)")
        for sh in (1, 2, 4, 8):
            a.I(f"v_add_u32_dpp v{vMxv}, v{vMxv}, v{vMxv} row_shr:{sh} row_mask:0xf bank_mask:0xf bound_ctrl:0")
            a.I(f"v_max_u32_dpp v{vMxv + 1}, v{vMxv + 1}, v{vMxv + 1} row_shr:{sh} row_mask:0xf bank_mask:0xf bound_ctrl:0")
        a.I(f"v_readlane_b32 s{sT}, v{vMxv}, 15")
        a.I(f"v_readlane_b32 s{sOff}, v{vMxv + 1}, 15")
        a.I(f"s_or_b32 s{sT}, s{sT}, 1")
        a.I(f"s_flbit_i32_b32 s{sT}, s{sT}")
        a.I(f"s_sub_u32 s{sT}, s{sT}, 2")
        a.I(f"s_min_u32 s{sT}, s{sT}, 22")
        a.I(f"s_cmp_ge_u32 s{sOff}, 0x7f000000")
        a.I(f"s_cselect_b32 s{sMode}, 1, 0")
        a.I(f"s_lshr_b32 s{sOff}, s{sOff}, 23")
        a.I(f"s_max_u32 s{sOff}, s{sOff}, 70")
        a.I(f"s_min_u32 s{sOff}, s{sOff}, 190")
        a.I(f"s_add_u32 s{sKB}, s{sT}, 126")
        a.I(f"s_sub_i32 s{sKB}, s{sKB}, s{sOff}")
        a.I(f"s_cmp_lg_u32 s{sMode}, 0")
        a.I(f"s_cselect_b32 s{sKB}, 0, s{sKB}")
        a.I(f"s_add_u32 s{sScale}, s{sKB}, 127")
        a.I(f"s_lshl_b32 s{sScale}, s{sScale}, 23")
        x0, x1 = vT + 20, vT + 21
        for j in range(2):
            for r in [tA[j] + q for q in range(4)] + [tB[j], tB[j] + 1]:
                a.I(f"v_lshlrev_b32 v{x0}, 16, v{r}")
                a.I(f"v_and_b32 v{x1}, s{sMaskHi}, v{r}")
                a.I(f"v_mul_f32 v{x0}, s{sScale}, v{x0}")
                a.I(f"v_mul_f32 v{x1}, s{sScale}, v{x1}")
                a.I(f"v_cvt_pk_bf16_f32 v{r}, v{x0}, v{x1}")
            a.I(f"v_mov_b32 v{vSH + j}, v{tB[j] + 2}")
        a.I(f"v_lshlrev_b32 v{vT}, 4, v0")
        a.I(f"v_lshlrev_b32 v{vT + 1}, 3, v0")
        a.I(f"ds_write_b128 v{vT}, {v(tA[0], 4)} offset:{GA}")
        a.I(f"ds_write_b64 v{vT + 1}, {v(tB[0], 2)} offset:{GB}")
        a.I(f"v_cmp_gt_u32 vcc, {S - 1024}, v0")
        a.I("s_mov_b64 exec, vcc")
        a.I(f"ds_write_b128 v{vT}, {v(tA[1], 4)} offset:{GA + 16384}")
        a.I(f"ds_write_b64 v{vT + 1}, {v(tB[1], 2)} offset:{GB + 8192}")
        a.I("s_mov_b64 exec, -1")

    vOne = vT + 22

    def S1(t):
        cb = CNT2 + (t % 2) * NBIN * 4 - bin0[t] * 4
        a.I(f"v_mov_b32 v{vOne}, 1")
        a.I(f"s_mov_b32 s{sSave}, {cb}")
        for k in range(nb):
            a.vwait(f"R{t}_{k}")
            set_exec_s(sRem[t], 64 * k)
            a.I(f"v_lshrrev_b32 v{vA}, {BSH}, v{rX[k]}")
            a.I(f"v_lshl_add_u32 v{vA}, v{vA}, 2, s{sSave}")
            a.I(f"ds_add_rtn_u32 v{rK[k]}, v{vA}, v{vOne}")
            a.I("s_mov_b64 exec, -1")
        a.I("s_waitcnt lgkmcnt(0)")

    def S2(t):
        n = lblc[0]; lblc[0] += 1
        a.I(f"s_cmp_lg_u32 s{sWid}, {c.scanw}")
        a.I(f"s_cbranch_scc1 P2_NS{n}")
        x = vT
        a.I(f"v_lshlrev_b32 v{x + 10}, 2, v{vLaneR}")
        a.I(f"v_add_u32 v{x + 10}, {CNT2 + (t % 2) * NBIN * 4}, v{x + 10}")
        a.I(f"ds_read_b128 {v(x, 4)}, v{x + 10}")
        a.I(f"ds_read_b128 {v(x + 4, 4)}, v{x + 10} offset:16")
        a.I("s_waitcnt lgkmcnt(0)")
        for q in range(1, 8):
            a.I(f"v_add_u32 v{x + q}, v{x + q}, v{x + q - 1}")
        a.I(f"v_mov_b32 v{x + 8}, v{x + 7}")
        scan_add(a, [x + 8])
        a.I(f"v_readlane_b32 s{sT}, v{x + 8}, 63")
        a.I(f"v_sub_u32 v{x + 8}, v{x + 8}, v{x + 7}")
        for q in range(7, 0, -1):
            a.I(f"v_add_u32 v{x + q}, v{x + q - 1}, v{x + 8}")
        a.I(f"v_mov_b32 v{x}, v{x + 8}")
        a.I(f"ds_write_b128 v{x + 10}, {v(x, 4)}")
        a.I(f"ds_write_b128 v{x + 10}, {v(x + 4, 4)} offset:16")
        a.I(f"v_mov_b32 v{x + 9}, s{sT}")
        a.I(f"v_mov_b32 v{x + 11}, {MISC + 128 + 4 * (t % 2)}")
        a.I(f"ds_write_b32 v{x + 11}, v{x + 9}")
        a.I("s_waitcnt lgkmcnt(0)")
        a.L(f"P2_NS{n}")

    def S3(t):
        cb = CNT2 + (t % 2) * NBIN * 4 - bin0[t] * 4
        a.I(f"s_mov_b32 s{sSave}, {cb}")
        a.I(f"s_mov_b32 s{sSave + 1}, {SORT}")
        a.I(f"v_mov_b32 v{vT + 8}, {MISC + 128 + 4 * (t % 2)}")
        a.I(f"ds_read_b32 v{vT + 8}, v{vT + 8}")
        for k in range(nb):
            a.I(f"v_lshrrev_b32 v{vT + 10 + k}, {BSH}, v{rX[k]}")
            a.I(f"v_lshl_add_u32 v{vT + 10 + k}, v{vT + 10 + k}, 2, s{sSave}")
            set_exec_s(sRem[t], 64 * k)
            a.I(f"ds_read_b32 v{vT + 10 + k}, v{vT + 10 + k}")
            a.I("s_mov_b64 exec, -1")
        a.I(f"s_waitcnt lgkmcnt({nb})")
        a.I(f"v_readfirstlane_b32 s{sSR[t % 2]}, v{vT + 8}")
        a.I(f"s_lshl_b32 s{sOff}, s{sWid}, 6")
        a.I(f"s_sub_i32 s{sSR[t % 2]}, s{sSR[t % 2]}, s{sOff}")
        for k in range(nb):
            a.I(f"s_waitcnt lgkmcnt({nb - 1})")
            a.I(f"v_add_u32 v{vT + 10 + k}, v{vT + 10 + k}, v{rK[k]}")
            a.I(f"v_lshl_add_u32 v{vT + 10 + k}, v{vT + 10 + k}, 3, s{sSave + 1}")
            set_exec_s(sRem[t], 64 * k)
            a.I(f"ds_write_b64 v{vT + 10 + k}, {v(rX[k], 2)}")
            a.I("s_mov_b64 exec, -1")

    def S4(t):
        p = t % 2
        a.I(f"v_lshlrev_b32 v{vA}, 2, v0")
        a.I(f"v_cmp_gt_u32 vcc, {NBIN}, v0")
        a.I(f"v_add_u32 v{vA}, {CNT2 + p * NBIN * 4}, v{vA}")
        a.I("s_mov_b64 exec, vcc")
        a.I(f"ds_write_b32 v{vA}, v{vZ}")
        a.I("s_mov_b64 exec, -1")
        for k in range(nb):
            a.I(f"ds_read_b64 {v(sX_[p][k], 2)}, v{vSrt} offset:{k * 8192}")
        a.I("s_waitcnt lgkmcnt(0)")

    def cnt_of(t, k):
        return (sRem[0], 64 * k) if t == 0 else (sSR[t % 2], 1024 * k)

    def G_(t, k):
        p = t % 2
        if t == 0:
            a.vwait(f"R0_{k}")
        gather(sX_[p][k], sM_[p][k], *cnt_of(t, k), f"B{t}_{k}")

    def C_(t, k):
        p = t % 2
        comp(sX_[p][k], sM_[p][k], *cnt_of(t, k), f"B{t}_{k}")

    def bar():
        a.I("s_waitcnt lgkmcnt(0)")
        a.I("s_barrier")

    assert nb * 8192 <= 65536
    assert vT + 10 + nb <= vT + 22
    L = c.lead
    if c.order == 0:
        stageA(0, NBT[0], sX_[0], "R0_")
        table_loads()
        if NT > 1:
            stageA(1, nb, rX, "R1_")
    else:
        table_loads()
        stageA(0, NBT[0], sX_[0], "R0_")
        if c.order == 2 and NT > 1:
            stageA(1, nb, rX, "R1_")
        misc_and_scale()
        if c.order == 1 and NT > 1:
            stageA(1, nb, rX, "R1_")
    compQ = []
    step = 0
    gstep = {}
    for t in range(NT):
        W = []
        if t == 0 and c.order == 0:
            W.append(misc_and_scale)
        if t + 1 < NT:
            def s3w(t=t):
                while compQ and compQ[0][0] < t:
                    C_(*compQ.pop(0))
                S3(t + 1)
            W += [lambda t=t: S1(t + 1), bar, lambda t=t: S2(t + 1), None, bar, s3w]
            if t + 2 < NT:
                W += [lambda: a.I("s_waitcnt lgkmcnt(0)")] + stageA_p(t + 2, nb, rX, f"R{t + 2}_")
        elif t == 0:
            W.append(bar)
        if t > 0:
            S4(t)
        ready = t > 0
        nbar = 0
        wi = 0
        for k in range(NBT[t]):
            G_(t, k)
            gstep[(t, k)] = step
            compQ.append((t, k))
            step += 1
            tgt = min(len(W), -(-len(W) * (k + 1) // min(c.wspread, NBT[t])))
            while wi < tgt:
                f = W[wi]; wi += 1
                if f is not None:
                    f()
                if f is bar:
                    ready = True
            n = 0
            while ready and compQ and n < c.cps and gstep[compQ[0]] + L <= step:
                C_(*compQ.pop(0)); n += 1
        while wi < len(W):
            f = W[wi]; wi += 1
            if f is not None:
                f()
        while compQ and compQ[0][0] < t:
            C_(*compQ.pop(0))
        if t + 1 < NT:
            bar()
        st_(f"T{t}")
    while compQ:
        C_(*compQ.pop(0))
    st_("comps")
    a.vwait_all()
    for t in range(NT):
        a.I(f"s_add_u32 s{sP0[t]}, s{sP0[t]}, {NBT[t] * 64}")
        a.L(f"P2_LOOP{t}")
        a.I(f"s_sub_i32 s{sRem[t]}, s{sN[t]}, s{sP0[t]}")
        a.I(f"s_cmp_le_i32 s{sRem[t]}, 0")
        a.I(f"s_cbranch_scc1 P2_LOOP_END{t}")
        lr = min(nb, 4)
        stageA(t, lr, rX, "L")
        for k in range(lr):
            a.vwait(f"L{k}")
            gather(rX[k], rK[k], sRem[t], 64 * k, f"LB{k}")
        for k in range(lr):
            comp(rX[k], rK[k], sRem[t], 64 * k, f"LB{k}")
        a.vwait_all()
        a.I(f"s_add_u32 s{sP0[t]}, s{sP0[t]}, {lr * 64}")
        a.I(f"s_branch P2_LOOP{t}")
        a.L(f"P2_LOOP_END{t}")
    st_("loop")
    a.I(f"v_lshlrev_b32 v{vT}, 3, v0")
    a.I(f"s_mul_i32 s{sT}, s{sB}, {S * 8}")
    a.I(f"s_add_u32 s{sT + 1}, s{sT}, 8192")
    vMrow = rX[0]
    vRW = rX[2]
    assert rX[1] == vMrow + 2 and rX[3] == vRW + 2
    a.I(f"buffer_load_dwordx2 {v(vMrow, 2)}, v{vT}, {s(sMS, 4)}, s{sT} offen")
    a.I(f"buffer_load_dwordx2 {v(vMrow + 2, 2)}, v{vT}, {s(sMS, 4)}, s{sT + 1} offen")
    a.I(f"s_mov_b32 s{sSave}, 0x200000")
    a.I(f"buffer_load_dwordx2 {v(vRW, 2)}, v{vD8}, {s(sY, 4)}, s{sSave} offen")
    a.I(f"buffer_load_dwordx2 {v(vRW + 2, 2)}, v{vD8 + 1}, {s(sY, 4)}, s{sSave} offen")
    a.I("s_waitcnt lgkmcnt(0)")
    a.I("s_barrier")
    st_("bar3")
    for j in range(2):
        if j == 1:
            a.I(f"s_cmp_ge_u32 s{sWid}, {NW2}")
            a.I("s_cbranch_scc1 P2_FIN")
            a.I(f"v_cmp_gt_u32 vcc, {S - 1024}, v0")
            a.I("s_mov_b64 exec, vcc")
        q = vT + 4; f = vT + 8; up = vT + 12; rw = vT + 16; pk = vT + 20
        a.I(f"v_lshlrev_b32 v{vT + 1}, 2, v0")
        for d in range(4):
            a.I(f"ds_read_b32 v{q + d}, v{vT + 1} offset:{ACC + d * S * 4 + j * 4096}")
        for d in range(4):
            a.I(f"v_bfe_i32 v{up + d}, v{vSH + j}, {8 * d}, 8")
        for d in range(4):
            a.I(f"v_subrev_u32 v{up + d}, s{sKB}, v{up + d}")
        a.I(f"s_cmp_lg_u32 s{sMode}, 0")
        a.I("s_waitcnt lgkmcnt(0)")
        a.I(f"s_cbranch_scc1 P2_EF{j}")
        for d in range(4):
            a.I(f"v_cvt_f32_i32 v{q + d}, v{q + d}")
        a.L(f"P2_EF{j}")
        for d in range(4):
            a.I(f"v_ldexp_f32 v{q + d}, v{q + d}, v{up + d}")
        a.I(f"v_cvt_pk_bf16_f32 v{pk}, v{q}, v{q + 1}")
        a.I(f"v_cvt_pk_bf16_f32 v{pk + 1}, v{q + 2}, v{q + 3}")
        for d in range(4):
            a.I(f"v_dot2_f32_bf16 v{up + d}, v{pk}, s{sWU + d}, 0")
        for d in range(4):
            a.I(f"v_dot2_f32_bf16 v{up + d}, v{pk + 1}, s{sWU + 4 + d}, v{up + d}")
        m01, m23 = vMrow + 2 * j, vMrow + 2 * j + 1
        if j == 0:
            a.I("s_waitcnt vmcnt(0)")
        a.I(f"v_lshlrev_b32 v{rw}, 16, v{vRW + 2 * j}")
        a.I(f"v_and_b32 v{rw + 1}, s{sMaskHi}, v{vRW + 2 * j}")
        a.I(f"v_lshlrev_b32 v{rw + 2}, 16, v{vRW + 2 * j + 1}")
        a.I(f"v_and_b32 v{rw + 3}, s{sMaskHi}, v{vRW + 2 * j + 1}")
        a.I(f"v_lshlrev_b32 v{f}, 16, v{m01}")
        a.I(f"v_and_b32 v{f + 1}, s{sMaskHi}, v{m01}")
        a.I(f"v_lshlrev_b32 v{f + 2}, 16, v{m23}")
        a.I(f"v_and_b32 v{f + 3}, s{sMaskHi}, v{m23}")
        for d in range(4):
            a.I(f"v_cvt_pk_bf16_f32 v{up + d}, 0, v{up + d}")
        for d in range(4):
            a.I(f"v_mul_f32 v{up + d}, v{up + d}, v{rw + d}")
        for d in range(4):
            a.I(f"v_cvt_pk_bf16_f32 v{up + d}, 0, v{up + d}")
        for d in range(4):
            a.I(f"v_add_f32 v{up + d}, v{up + d}, v{f + d}")
        a.I(f"v_cvt_pk_bf16_f32 v{pk}, v{up}, v{up + 1}")
        a.I(f"v_cvt_pk_bf16_f32 v{pk + 1}, v{up + 2}, v{up + 3}")
        a.I(f"buffer_store_dwordx2 {v(pk, 2)}, v{vT}, {s(sOUT, 4)}, s{sT + j} offen")
    a.L("P2_FIN")
    st_("end")
    st_.flush(sWid, 16, 0x9000000, sY, vT + 1)
    a.L("P2_END")
    a.I("s_endpgm")
    return a, lds


HEADER = """; gemnet triplet message passing: two launches
;  gp2: one workgroup per bucket: accumulates its triplets in LDS and writes the output rows
"""


def kd(name, nv, ns):
    acc = (nv + 3) // 4 * 4
    return f""".amdhsa_kernel {name}
  .amdhsa_next_free_vgpr {nv}
  .amdhsa_next_free_sgpr {ns}
  .amdhsa_accum_offset {acc}
  .amdhsa_group_segment_fixed_size 0
  .amdhsa_kernarg_size 112
  .amdhsa_user_sgpr_count 2
  .amdhsa_user_sgpr_kernarg_segment_ptr 1
  .amdhsa_system_sgpr_workgroup_id_x 1
  .amdhsa_float_denorm_mode_32 3
  .amdhsa_float_denorm_mode_16_64 3
.end_amdhsa_kernel
"""


def build(c):
    p1, lds1 = gen_p1(c)
    p2, lds2 = gen_p2(c)
    n1 = p1.fix_hazards()
    n2 = p2.fix_hazards()
    v1, s1 = p1.max_regs()
    v2, s2 = p2.max_regs()
    out = HEADER
    out += f"; @launch kernel=gp1_kernel grid=({c.G1},1,1) block=({c.TPB1},1,1) lds={lds1}\n"
    out += f"; @launch kernel=gp2_kernel grid=({NB},1,1) block=(1024,1,1) lds={lds2}\n"
    out += '.amdgcn_target "amdgcn-amd-amdhsa--gfx950"\n.text\n'
    for name, k in (("gp1_kernel", p1), ("gp2_kernel", p2)):
        out += f".globl {name}\n.p2align 8\n.type {name},@function\n{name}:\n" + k.text()
    out += '.section .rodata,"a"\n.p2align 6\n'
    out += kd("gp1_kernel", v1, s1)
    out += ".p2align 6\n"
    out += kd("gp2_kernel", v2, s2)
    info = f"p1: vgpr {v1} sgpr {s1} lds {lds1} nops {n1}; p2: vgpr {v2} sgpr {s2} lds {lds2} nops {n2}; NC {c.NC} CB {c.CB} CPW {c.CPW} EPL {c.EPL}"
    return out, info


if __name__ == "__main__":
    kw = {}
    outp = "standalone__molecular_angular_gemnet__graph.s"
    for arg in sys.argv[1:]:
        k, val = arg.split("=", 1)
        if k == "out":
            outp = val
            continue
        try:
            val = int(val)
        except ValueError:
            pass
        kw[k] = val
    c = Cfg(**kw)
    txt, info = build(c)
    open(outp, "w").write(txt)
    print(info)
```

```python
import sys, os
sys.path.insert(0, os.path.dirname(__file__))
from asmlib import Asm, Alloc, v, s

E = 400000
T = 6400000
NB = 256
S = 1568
MAGIC = 2739138
KFIX = 16

WS_OFFS = 0x6000000
WS_MDT = 0x7000000
WS_MX = 0x7600000
WS_GT = 0x7800000
GT_BYTES = 0x280000


class Cfg:
    def __init__(self, **kw):
        self.NT = 4
        self.nb = 8
        self.GPT = 5
        self.TPB1 = 640
        self.G1 = 250
        self.ld_in = "nt"
        self.st_rec = ""
        self.ld_rec = ""
        self.nbG = 14
        self.nbR = 14
        self.sub = 4
        self.lead = 3
        self.g0 = 0
        self.lag = 3
        self.cpb = 1
        self.nset = 2
        self.wspread = 5
        self.cpf = 0
        self.cpf2 = 0
        self.order = 0
        self.e0 = 190
        self.nb0 = 6
        self.q1 = 2
        self.scanw = 15
        self.useG = 0
        self.bsh = 11
        self.cps = 1
        self.npf = 0
        self.tbar = 1
        self.aspread = 5
        self.early = 1
        self.kbit = 3
        self.lead2 = 4
        self.stamps = 0
        self.nogather = 0
        self.nocomp = 0
        self.__dict__.update(kw)
        self.TA = max(0, (E - self.NT * (E * self.e0 // 1000)) // max(1, self.NT - 1))
        self.MT = (self.NT << 32) // (E + self.TA)
        self.C = self.TPB1 * self.GPT * 4
        self.NC = (T + self.C - 1) // self.C
        rem = T - (self.NC - 1) * self.C
        assert rem % (self.TPB1 * 4) == 0
        self.LASTG = rem // (self.TPB1 * 4)
        assert not self.useG
        self.CB = self.C * 8
        assert self.C < 65536
        assert self.CB % 16 == 0
        assert self.NC * self.CB <= WS_OFFS
        self.CPW = (self.NC + 15) // 16
        self.EPL = (self.CPW + 63) // 64
        self.CPW = (self.CPW + self.EPL - 1) // self.EPL * self.EPL


def srd(a, d, base_lo, base_hi, nbytes, add=0):
    if add:
        a.I(f"s_add_u32 s{d}, s{base_lo}, {hex(add)}")
        a.I(f"s_addc_u32 s{d + 1}, s{base_hi}, 0")
    else:
        a.I(f"s_mov_b32 s{d}, s{base_lo}")
        a.I(f"s_mov_b32 s{d + 1}, s{base_hi}")
    a.I(f"s_mov_b32 s{d + 2}, {hex(nbytes)}")
    a.I(f"s_mov_b32 s{d + 3}, 0x20000")


class Stamper:
    def __init__(self, a, on, vreg, sreg):
        self.a, self.on, self.v, self.s, self.n = a, on, vreg, sreg, 0
        self.names = []

    def __call__(self, name):
        if not self.on:
            return
        a = self.a
        a.I(f"s_memtime s[{self.s}:{self.s + 1}]")
        a.I("s_waitcnt lgkmcnt(0)")
        a.I(f"v_writelane_b32 v{self.v}, s{self.s}, {self.n}")
        self.names.append(name)
        self.n += 1

    def flush(self, sWid, nwaves, wsoff, ssrd, vtmp):
        if not self.on:
            return
        a = self.a
        a.I("s_mov_b64 exec, -1")
        a.I(f"s_load_dwordx2 s[{self.s}:{self.s + 1}], s[0:1], 104")
        a.I("s_waitcnt lgkmcnt(0)")
        srd(a, ssrd, self.s, self.s + 1, 0x1000000, wsoff)
        a.I(f"s_mul_i32 s{self.s}, s2, {nwaves}")
        a.I(f"s_add_u32 s{self.s}, s{self.s}, s{sWid}")
        a.I(f"s_lshl_b32 s{self.s}, s{self.s}, 8")
        a.I(f"v_and_b32 v{vtmp}, 63, v0")
        a.I(f"v_lshlrev_b32 v{vtmp}, 2, v{vtmp}")
        a.I(f"buffer_store_dword v{self.v}, v{vtmp}, s[{ssrd}:{ssrd + 3}], s{self.s} offen")
        print("stamps:", " ".join(self.names))


def scan(a, regs, op):
    for sh in (1, 2, 4, 8):
        for r in regs:
            a.I(f"{op}_dpp v{r}, v{r}, v{r} row_shr:{sh} row_mask:0xf bank_mask:0xf bound_ctrl:0")
    for r in regs:
        a.I(f"{op}_dpp v{r}, v{r}, v{r} row_bcast:15 row_mask:0xa bank_mask:0xf")
    for r in regs:
        a.I(f"{op}_dpp v{r}, v{r}, v{r} row_bcast:31 row_mask:0xc bank_mask:0xf")


def scan_add(a, regs):
    scan(a, regs, "v_add_u32")


def scan_max(a, regs):
    scan(a, regs, "v_max_u32")


def md_dots(a, m01, m23, W, t):
    for d in range(4):
        a.I(f"v_dot2_f32_bf16 v{t + d}, v{m23}, s{W + 2 * d + 1}, 0")
    for d in range(4):
        a.I(f"v_dot2_f32_bf16 v{t + d}, v{m01}, s{W + 2 * d}, v{t + d}")


def md_pack(a, t, out01, out23):
    a.I(f"v_cvt_pk_bf16_f32 v{out01}, v{t}, v{t + 1}")
    a.I(f"v_cvt_pk_bf16_f32 v{out23}, v{t + 2}, v{t + 3}")


def pack4(a, dst4, tmp):
    for t in range(4):
        a.I(f"s_mov_b32 s{tmp + t}, s{dst4[t]}")
    for d in range(4):
        pk = "s_pack_ll_b32_b16" if d % 2 == 0 else "s_pack_hh_b32_b16"
        a.I(f"{pk} s{dst4[d]}, s{tmp + d // 2}, s{tmp + 2 + d // 2}")


def code_prefetch(a, name, first, last, sP, sWid, vOff, vDst, nmax):
    a.I(f"s_getpc_b64 s[{sP}:{sP + 1}]")
    a.L(f"{name}_PC")
    a.I(f"s_sub_u32 s{sP}, s{sP}, {name}_PC-{first}")
    a.I(f"s_subb_u32 s{sP + 1}, s{sP + 1}, 0")
    a.I(f"v_lshlrev_b32 v{vOff}, 7, v0")
    a.I(f"s_cmp_eq_u32 s{sWid}, 0")
    for j in range(nmax):
        a.I(f"v_min_u32 v{vOff + 1}, {last}-{first}-4, v{vOff}")
        a.I("s_cselect_b64 exec, -1, 0")
        a.vmem(f"global_load_dword v{vDst}, v{vOff + 1}, s[{sP}:{sP + 1}]", "cpf")
        a.I("s_mov_b64 exec, -1")
        a.I(f"v_add_u32 v{vOff}, 0x2000, v{vOff}")


def gen_p1(c):
    a = Asm()
    NT, GPT, TPB, C, NC, CB, G1 = c.NT, c.GPT, c.TPB1, c.C, c.NC, c.CB, c.G1
    NWV = TPB // 64
    MT = c.MT
    CNT = CB
    WT = 4096
    lds = CB + 4096 + 32
    va = Alloc("v", 1, 256)
    vT8 = va.get(); vT16 = va.get()
    vCnt16 = va.get()
    vZ = va.get(2, 2)
    pII = va.get(4 * GPT, 2)
    pIO = va.get(4 * GPT, 2)
    pAN = va.get(2 * GPT, 2)
    pool0 = va.get(0, 2)
    vX = va.get(8 * GPT, 2)
    if not c.useG:
        ME = [vX + 2 * i + 1 for i in range(4 * GPT)]
    elif c.early:
        vME = va.get(4 * GPT, 2)
        ME = [vME + i for i in range(4 * GPT)]
    else:
        ME = [pIO + i for i in range(4 * GPT)]
    vKA = va.get(4 * GPT, 2)
    pool1 = va.get(0, 2)
    vT = va.get(12, 2)
    tt = pool0
    vOne = vT + 8
    vOffA = vT + 4
    assert pool1 - pool0 >= 44
    sChunk, sWid, sMaskHi, sMagic, sNegS2, sO4, sO2, sPre, sRecOff = 3, 4, 5, 6, 7, 8, 9, 10, 11
    sTmp = 14
    sIN, sOUT, sANG, sM = 16, 20, 24, 28
    sW = 32
    sREC, sOFF = 40, 44
    sWt = 48
    sCen = 96
    sPT = 8
    a.I(f"s_cmp_ge_u32 s2, {G1}")
    a.I("s_cbranch_scc1 P1_END")
    a.I(f"s_bfe_u32 s{sWid}, s3, 0x60006")
    st_ = Stamper(a, c.stamps, va.get() if c.stamps else 0, 100)
    if c.stamps:
        a.I(f"v_mov_b32 v{st_.v}, 0")
    st_("start")
    a.I("s_load_dwordx4 s[48:51], s[0:1], 0")
    a.I("s_load_dwordx2 s[52:53], s[0:1], 16")
    a.I("s_load_dwordx4 s[56:59], s[0:1], 32")
    a.I("s_load_dwordx4 s[60:63], s[0:1], 56")
    a.I("s_load_dwordx2 s[64:65], s[0:1], 72")
    a.I("s_load_dwordx2 s[12:13], s[0:1], 104")
    a.I(f"v_lshlrev_b32 v{vT8}, 3, v0")
    a.I(f"v_lshlrev_b32 v{vT16}, 4, v0")
    a.I(f"v_mov_b32 v{vZ}, 0")
    a.I(f"v_mov_b32 v{vZ + 1}, 0")
    a.I(f"v_add_u32 v{vCnt16}, {CNT}, v{vT16}")
    a.I(f"s_mov_b32 s{sChunk}, s2")
    a.I(f"s_mov_b32 s{sMaskHi}, 0xffff0000")
    if c.cpf:
        code_prefetch(a, "P1", "gp1_kernel", "TEXT_END", 66, sWid, vT + 2, vKA + 4 * GPT - 1, c.cpf)

    def zero_counters(lbl):
        if TPB > 256:
            a.I(f"s_cmp_ge_u32 s{sWid}, 4")
            a.I(f"s_cbranch_scc1 {lbl}")
        a.I(f"ds_write_b64 v{vCnt16}, {v(vZ, 2)}")
        a.I(f"ds_write_b64 v{vCnt16}, {v(vZ, 2)} offset:8")
        a.L(lbl)
    zero_counters("P1_Z0")
    a.I("s_waitcnt lgkmcnt(0)")
    srd(a, sIN, 50, 51, T * 4)
    srd(a, sOUT, 52, 53, T * 4)
    srd(a, sANG, 56, 57, T * 2)
    pol = (" " + c.ld_in) if c.ld_in else ""

    def issue_inputs(schunk):
        a.I(f"s_mul_i32 s{sO4}, s{schunk}, {C * 4}")
        a.I(f"s_mul_i32 s{sO2}, s{schunk}, {C * 2}")
        for g in range(GPT):
            a.vmem(f"buffer_load_dwordx4 {v(pII + 4 * g, 4)}, v{vT16}, {s(sIN, 4)}, s{sO4} offen{pol}", f"ii{g}")
            a.vmem(f"buffer_load_dwordx4 {v(pIO + 4 * g, 4)}, v{vT16}, {s(sOUT, 4)}, s{sO4} offen{pol}", f"io{g}")
            a.vmem(f"buffer_load_dwordx2 {v(pAN + 2 * g, 2)}, v{vT8}, {s(sANG, 4)}, s{sO2} offen{pol}", f"an{g}")
            if g + 1 < GPT:
                a.I(f"s_add_u32 s{sO4}, s{sO4}, {TPB * 16}")
                a.I(f"s_add_u32 s{sO2}, s{sO2}, {TPB * 8}")

    issue_inputs(sChunk)
    srd(a, sM, 48, 49, E * 8)
    RPW = (E + G1 - 1) // G1
    NR_ = (RPW + TPB - 1) // TPB
    assert NR_ <= 4
    vMRa = tt
    vMR = tt + 4
    vS = tt + 12
    a.I(f"s_mul_i32 s{sMagic}, s2, {RPW * 8}")
    for r in range(NR_):
        lim = RPW - r * TPB
        a.I(f"v_add_u32 v{vMRa + r}, {r * TPB * 8}, v{vT8}")
        if lim < TPB:
            a.I(f"v_cmp_gt_u32 vcc, {lim}, v0")
            a.I(f"v_mov_b32 v{vT}, 0x7ffffff0")
            a.I(f"v_cndmask_b32 v{vMRa + r}, v{vT}, v{vMRa + r}, vcc")
        a.vmem(f"buffer_load_dwordx2 {v(vMR + 2 * r, 2)}, v{vMRa + r}, {s(sM, 4)}, s{sMagic} offen", f"mr{r}")
    a.I(f"s_mov_b32 s{sTmp}, s60")
    a.I(f"s_mov_b32 s{sTmp + 1}, s61")
    a.I("s_mov_b32 s10, s62")
    a.I("s_mov_b32 s11, s63")
    a.I("s_load_dwordx8 s[40:47], s[64:65], 0")
    a.I(f"s_load_dwordx4 s[{sCen}:{sCen + 3}], s[58:59], 0")
    a.I(f"s_load_dwordx16 s[{sWt}:{sWt + 15}], s[10:11], 0")
    a.I(f"s_load_dwordx16 s[{sWt + 16}:{sWt + 31}], s[10:11], 64")
    a.I(f"s_load_dwordx16 s[{sWt + 32}:{sWt + 47}], s[10:11], 128")
    a.I("s_waitcnt lgkmcnt(0)")
    r = 40
    for d in range(4):
        pk = "s_pack_ll_b32_b16" if d % 2 == 0 else "s_pack_hh_b32_b16"
        a.I(f"{pk} s{sW + 2 * d}, s{r + d // 2}, s{r + 2 + d // 2}")
        a.I(f"{pk} s{sW + 2 * d + 1}, s{r + 4 + d // 2}, s{r + 6 + d // 2}")
    sMDT, sGT = 40, 44
    srd(a, sMDT, 12, 13, E * 8, WS_MDT)
    srd(a, sGT, 12, 13, GT_BYTES, WS_GT)
    NTW = (1024 + G1 - 1) // G1
    EPW = NTW * 64
    while 1024 % NTW:
        NTW += 1
    EPW = NTW * 64
    assert NTW <= NWV
    a.I(f"s_cmp_lt_u32 s{sWid}, {NWV - NTW}")
    a.I("s_cbranch_scc1 P1_TB1")
    a.I(f"s_cmp_ge_u32 s2, {(1024 + NTW - 1) // NTW}")
    a.I("s_cbranch_scc1 P1_TB1")

    def ws_reg(j, l, d):
        base = sWt + 12 * j
        return [base + 2 * l, base + 2 * l + 1, base + 6 + 2 * l, base + 6 + 2 * l + 1][d]
    for j in range(4):
        for l in range(3):
            pack4(a, [ws_reg(j, l, t) for t in range(4)], sPT)
    vIdx = tt + 14
    vFlag = tt + 13
    vDd = tt + 15
    vr = tt + 16
    vRBF = tt + 24
    vg = tt + 28
    vs_ = tt + 40
    a.I(f"s_mul_i32 s{sPT}, s2, {EPW}")
    a.I(f"v_subrev_u32 v{vIdx}, {(NWV - NTW) * 64}, v0")
    a.I(f"v_add_u32 v{vIdx}, s{sPT}, v{vIdx}")
    a.I(f"v_lshlrev_b32 v{vDd}, 16, v{vIdx}")
    for r in range(8):
        if r % 2 == 0:
            a.I(f"s_lshl_b32 s{sPT + r % 4}, s{sCen + r // 2}, 16")
        else:
            a.I(f"s_and_b32 s{sPT + r % 4}, s{sCen + r // 2}, 0xffff0000")
        a.I(f"v_subrev_f32 v{vr + r}, s{sPT + r % 4}, v{vDd}")
    for r in range(8):
        a.I(f"v_cvt_pk_bf16_f32 v{vr + r}, 0, v{vr + r}")
    for r in range(8):
        a.I(f"v_mul_f32 v{vr + r}, v{vr + r}, v{vr + r}")
    for r in range(8):
        a.I(f"v_cvt_pk_bf16_f32 v{vr + r}, 0, v{vr + r}")
    for r in range(8):
        a.I(f"v_mul_f32 v{vr + r}, 0xc1200000, v{vr + r}")
    for r in range(8):
        a.I(f"v_cvt_pk_bf16_f32 v{vr + r}, 0, v{vr + r}")
    for r in range(8):
        a.I(f"v_mul_f32 v{vr + r}, 0x3fb8aa3b, v{vr + r}")
    for r in range(8):
        a.I(f"v_exp_f32 v{vr + r}, v{vr + r}")
    for q in range(4):
        a.I(f"v_cvt_pk_bf16_f32 v{vRBF + q}, v{vr + 2 * q}, v{vr + 2 * q + 1}")
    for q in range(4):
        for l in range(3):
            for d in range(4):
                src2 = "0" if q == 0 else f"v{vg + 4 * l + d}"
                a.I(f"v_dot2_f32_bf16 v{vg + 4 * l + d}, v{vRBF + q}, s{ws_reg(q, l, d)}, {src2}")
    a.I(f"s_load_dwordx16 s[{sWt}:{sWt + 15}], s[{sTmp}:{sTmp + 1}], 0")
    for d in range(4):
        a.I(f"v_add_f32 v{vs_ + d}, |v{vg + d}|, |v{vg + 4 + d}|")
    for d in range(4):
        a.I(f"v_add_f32 v{vs_ + d}, v{vs_ + d}, |v{vg + 8 + d}|")
    a.I(f"v_add_f32 v{vr}, v{vs_}, v{vs_ + 1}")
    a.I(f"v_add_f32 v{vr + 1}, v{vs_ + 2}, v{vs_ + 3}")
    a.I(f"v_add_f32 v{vr}, v{vr}, v{vr + 1}")
    a.I(f"v_cmp_gt_u32 vcc, 0x7f000000, v{vr}")
    for d in range(4):
        a.I(f"v_frexp_exp_i32_f32 v{vs_ + d}, v{vs_ + d}")
    a.I(f"s_movk_i32 s{sPT}, -60")
    for d in range(4):
        a.I(f"v_med3_i32 v{vs_ + d}, v{vs_ + d}, s{sPT}, 60")
    vSH = vDd
    a.I(f"v_and_b32 v{vSH}, 0xff, v{vs_}")
    for d in range(1, 4):
        a.I(f"v_and_b32 v{vr + d}, 0xff, v{vs_ + d}")
        a.I(f"v_lshl_or_b32 v{vSH}, v{vr + d}, {8 * d}, v{vSH}")
    for d in range(4):
        a.I(f"v_sub_u32 v{vs_ + d}, 0, v{vs_ + d}")
    for l in range(3):
        for d in range(4):
            a.I(f"v_ldexp_f32 v{vg + 4 * l + d}, v{vg + 4 * l + d}, v{vs_ + d}")
    a.I(f"v_cndmask_b32 v{vr + 7}, 1, 0, vcc") if False else None
    a.I(f"v_mov_b32 v{vr + 7}, 1")
    a.I(f"v_cndmask_b32 v{vFlag}, v{vr + 7}, v{vZ}, vcc")
    for d in range(4):
        a.I(f"v_cvt_pk_bf16_f32 v{vr + d}, v{vg + d}, v{vg + 4 + d}")
    a.I(f"v_cvt_pk_bf16_f32 v{vr + 4}, v{vg + 8}, v{vg + 9}")
    a.I(f"v_cvt_pk_bf16_f32 v{vr + 5}, v{vg + 10}, v{vg + 11}")
    a.I("s_waitcnt lgkmcnt(0)")
    for q in range(4):
        pack4(a, [sWt + 4 * q + t for t in range(4)], sPT)
    for q in range(4):
        for d in range(4):
            src2 = "0" if q == 0 else f"v{vs_ + d}"
            a.I(f"v_dot2_f32_bf16 v{vs_ + d}, v{vRBF + q}, s{sWt + q * 4 + d}, {src2}")
    a.I(f"v_lshlrev_b32 v{vg}, 5, v{vIdx}")
    a.I(f"v_lshlrev_b32 v{vg + 1}, 3, v{vIdx}")
    a.I(f"s_mov_b32 s{sPT + 1}, 0x200000")
    a.I(f"v_mov_b32 v{vr + 6}, v{vSH}")
    a.I(f"v_mov_b32 v{vr + 7}, v{vFlag}")
    a.I(f"v_cvt_pk_bf16_f32 v{vg + 2}, v{vs_}, v{vs_ + 1}")
    a.I(f"v_cvt_pk_bf16_f32 v{vg + 3}, v{vs_ + 2}, v{vs_ + 3}")
    a.I(f"buffer_store_dwordx4 {v(vr, 4)}, v{vg}, {s(sGT, 4)}, 0 offen")
    a.I(f"buffer_store_dwordx4 {v(vr + 4, 4)}, v{vg}, {s(sGT, 4)}, 0 offen offset:16")
    a.I(f"buffer_store_dwordx2 {v(vg + 2, 2)}, v{vg + 1}, {s(sGT, 4)}, s{sPT + 1} offen")
    a.L("P1_TB1")
    a.vwait_all()
    vMx = tt + 12
    a.I(f"v_mov_b32 v{vMx}, 0")
    a.I(f"s_mov_b32 s{sPT}, 0x7fff0000")
    for r in range(NR_):
        md_dots(a, vMR + 2 * r, vMR + 2 * r + 1, sW, vT + 4 * (r % 2))
        md_pack(a, vT + 4 * (r % 2), vMR + 2 * r, vMR + 2 * r + 1)
        a.I(f"buffer_store_dwordx2 {v(vMR + 2 * r, 2)}, v{vMRa + r}, {s(sMDT, 4)}, s{sMagic} offen")
        for h in range(2):
            a.I(f"v_lshlrev_b32 v{vT + 8}, 16, v{vMR + 2 * r + h}")
            a.I(f"v_and_b32 v{vT + 9}, s{sPT}, v{vMR + 2 * r + h}")
            a.I(f"v_and_b32 v{vT + 8}, s{sPT}, v{vT + 8}")
            a.I(f"v_max3_u32 v{vMx}, v{vMx}, v{vT + 8}, v{vT + 9}")
    scan_max(a, [vMx])
    srd(a, sGT, 12, 13, 0x10000, WS_MX)
    a.I(f"s_mul_i32 s{sPT}, s2, {NWV}")
    a.I(f"s_add_u32 s{sPT}, s{sPT}, s{sWid}")
    a.I(f"s_lshl_b32 s{sPT}, s{sPT}, 2")
    a.I(f"s_mov_b64 exec, 0x8000000000000000") if False else None
    a.I(f"v_readlane_b32 s{sPT + 1}, v{vMx}, 63")
    a.I(f"v_mov_b32 v{vMx}, s{sPT + 1}")
    a.I("s_mov_b64 exec, 1")
    a.I(f"buffer_store_dword v{vMx}, v{vZ}, {s(sGT, 4)}, s{sPT} offen")
    a.I("s_mov_b64 exec, -1")
    a.I("s_nop 4")
    srd(a, sREC, 12, 13, NC * CB)
    srd(a, sOFF, 12, 13, 128 * NC * 32, WS_OFFS)
    sMT = 13
    a.I(f"s_mov_b32 s{sMT}, {MT}")
    sCnt = 12
    a.I(f"s_mov_b32 s{sCnt}, {CNT}")
    a.I(f"s_mov_b32 s{sMagic}, {MAGIC}")
    a.I(f"s_mov_b32 s{sNegS2}, {-(S // 2)}")
    a.I("s_waitcnt vmcnt(0) lgkmcnt(0)")
    st_("tables")
    ncopy = (CB + TPB * 16 - 1) // (TPB * 16)
    a.vm = []
    for g in range(GPT):
        a.vm += [f"ii{g}", f"io{g}", f"an{g}"]
    a.vm += (["offst"] if c.early else []) + ["cp"] * ncopy
    a.L("P1_LOOP")
    a.I("s_barrier")
    st_("top")
    a.I(f"s_cmp_eq_u32 s{sChunk}, {NC - 1}")
    a.I(f"s_cselect_b32 s{sPre}, {c.LASTG}, {GPT}")
    G = c.useG
    a.I(f"v_mov_b32 v{vOne}, 1")
    for g in range(GPT):
        a.vwait(f"an{g}")
        for k in range(4):
            i = 4 * g + k
            a.I(f"v_mul_hi_u32_u24 v{vT + k}, s{sMagic}, v{pIO + i}")
            if c.TA:
                a.I(f"v_add_u32 v{vT + 4 + k}, {c.TA}, v{pII + i}")
                a.I(f"v_mul_hi_u32_u24 v{vT + 4 + k}, s{sMT}, v{vT + 4 + k}")
            else:
                a.I(f"v_mul_hi_u32_u24 v{vT + 4 + k}, s{sMT}, v{pII + i}")
        for k in range(4):
            i = 4 * g + k
            a.I(f"v_lshl_add_u32 v{vKA + i}, v{vT + k}, 4, s{sCnt}")
            a.I(f"v_lshlrev_b32 v{vX + 2 * i}, 3, v{pII + i}")
            a.I(f"v_lshlrev_b32 v{vT + k}, 3, v{vT + k}")
            a.I(f"v_lshlrev_b32 v{ME[i]}, 2, v{pIO + i}")
            a.I(f"v_lshl_add_u32 v{vKA + i}, v{vT + 4 + k}, 2, v{vKA + i}")
            a.I(f"v_mad_i32_i24 v{ME[i]}, v{vT + k}, s{sNegS2}, v{ME[i]}")
            an = pAN + 2 * g + k // 2
            if k % 2 == 0:
                a.I(f"v_lshl_or_b32 v{ME[i]}, v{an}, 16, v{ME[i]}")
            else:
                a.I(f"v_and_or_b32 v{ME[i]}, v{an}, s{sMaskHi}, v{ME[i]}")
            if c.useG:
                a.I(f"v_mov_b32 v{vX + 2 * i + 1}, v{ME[i]}")
        if G:
            for k in range(4):
                i = 4 * g + k
                a.I(f"v_cmp_eq_u32 vcc, 0, v{vT + 4 + k}")
                a.I(f"v_mov_b32 v{vT + 8 + k}, 8")
                a.I("s_mov_b64 exec, vcc")
                a.vmem(f"buffer_load_dwordx2 {v(vX + 2 * i, 2)}, v{vX + 2 * i}, {s(sM, 4)}, 0 offen", f"md{i}")
                a.I(f"v_mov_b32 v{vT + 8 + k}, 12")
                a.I("s_mov_b64 exec, -1")
        if g >= c.LASTG:
            a.I(f"s_cmp_le_u32 s{sPre}, {g}")
            a.I(f"s_cbranch_scc1 P1_HS{g}")
        for k in range(4):
            i = 4 * g + k
            a.I(f"ds_add_rtn_u32 v{pII + i}, v{vKA + i}, v{vOne}")
        if g >= c.LASTG:
            a.L(f"P1_HS{g}")
    st_("hist_issued")
    a.I("s_waitcnt lgkmcnt(0)")
    for i in range(4 * GPT):
        a.I(f"v_lshl_or_b32 v{vKA + i}, v{pII + i}, 17, v{vKA + i}")
    if c.early:
        a.I(f"s_add_u32 s{sTmp}, s{sChunk}, {G1}")
        issue_inputs(sTmp)
    a.I("s_waitcnt lgkmcnt(0)")
    a.I("s_barrier")
    st_("barB")
    n0 = vT
    pA, pB, iA, iB = vT + 4, vT + 5, vT + 6, vT + 7
    x = vT + 8
    sS = 48
    sTot = 64
    if TPB > 256:
        a.I(f"s_cmp_ge_u32 s{sWid}, 4")
        a.I("s_cbranch_scc1 P1_S1")
    a.I(f"ds_read_b128 {v(n0, 4)}, v{vCnt16}")
    a.I("s_waitcnt lgkmcnt(0)")
    a.I(f"v_lshl_or_b32 v{pA}, v{n0 + 1}, 16, v{n0}")
    a.I(f"v_lshl_or_b32 v{pB}, v{n0 + 3}, 16, v{n0 + 2}")
    a.I(f"v_mov_b32 v{iA}, v{pA}")
    a.I(f"v_mov_b32 v{iB}, v{pB}")
    scan_add(a, [iA, iB])
    a.I(f"v_readlane_b32 s{sS}, v{iA}, 63")
    a.I(f"v_readlane_b32 s{sS + 1}, v{iB}, 63")
    a.I(f"s_lshl_b32 s{sTmp + 1}, s{sWid}, 3")
    a.I(f"s_add_u32 s{sTmp + 1}, s{sTmp + 1}, s{sCnt}")
    a.I(f"v_mov_b32 v{x + 2}, s{sTmp + 1}")
    a.I(f"v_mov_b32 v{x}, s{sS}")
    a.I(f"v_mov_b32 v{x + 1}, s{sS + 1}")
    a.I(f"ds_write_b64 v{x + 2}, {v(x, 2)} offset:{WT}")
    a.I("s_waitcnt lgkmcnt(0)")
    a.L("P1_S1")
    a.I("s_barrier")
    if TPB > 256:
        a.I(f"s_cmp_ge_u32 s{sWid}, 4")
        a.I("s_cbranch_scc1 P1_S2")
    a.I(f"v_and_b32 v{x}, 7, v0")
    a.I(f"v_lshl_add_u32 v{x}, v{x}, 2, s{sCnt}")
    a.I(f"ds_read_b32 v{x}, v{x} offset:{WT}")
    a.I(f"v_sub_u32 v{iA}, v{iA}, v{pA}")
    a.I(f"v_sub_u32 v{iB}, v{iB}, v{pB}")
    a.I("s_waitcnt lgkmcnt(0)")
    for l in range(8):
        a.I(f"v_readlane_b32 s{sS + l}, v{x}, {l}")
    a.I(f"s_add_u32 s{sS + 8}, s{sS}, s{sS + 2}")
    a.I(f"s_add_u32 s{sS + 8}, s{sS + 8}, s{sS + 4}")
    a.I(f"s_add_u32 s{sS + 8}, s{sS + 8}, s{sS + 6}")
    a.I(f"s_add_u32 s{sS + 9}, s{sS + 1}, s{sS + 3}")
    a.I(f"s_add_u32 s{sS + 9}, s{sS + 9}, s{sS + 5}")
    a.I(f"s_add_u32 s{sS + 9}, s{sS + 9}, s{sS + 7}")
    a.I(f"s_mov_b32 s{sS + 10}, 0")
    a.I(f"s_mov_b32 s{sS + 11}, 0")
    for w in range(3):
        a.I(f"s_cmp_gt_u32 s{sWid}, {w}")
        a.I(f"s_cselect_b32 s{sS + 2 * w}, s{sS + 2 * w}, 0")
        a.I(f"s_cselect_b32 s{sS + 2 * w + 1}, s{sS + 2 * w + 1}, 0")
        a.I(f"s_add_u32 s{sS + 10}, s{sS + 10}, s{sS + 2 * w}")
        a.I(f"s_add_u32 s{sS + 11}, s{sS + 11}, s{sS + 2 * w + 1}")
    assert TPB == 256 or c.LASTG == GPT
    a.I(f"s_add_u32 s{sTot}, s{sS + 8}, s{sS + 9}")
    a.I(f"s_lshr_b32 s{sS + 12}, s{sTot}, 16")
    a.I(f"s_and_b32 s{sTot}, s{sTot}, 0xffff")
    a.I(f"s_add_u32 s{sTot}, s{sTot}, s{sS + 12}")
    a.I(f"s_lshl_b32 s{sTot}, s{sTot}, 3")
    a.I(f"s_and_b32 s{sS}, s{sS + 8}, 0xffff")
    a.I(f"s_lshr_b32 s{sS + 1}, s{sS + 8}, 16")
    a.I(f"s_add_u32 s{sS + 1}, s{sS + 1}, s{sS}")
    a.I(f"s_and_b32 s{sS + 2}, s{sS + 9}, 0xffff")
    a.I(f"s_add_u32 s{sS + 2}, s{sS + 2}, s{sS + 1}")
    a.I(f"s_lshl_b32 s{sS}, s{sS}, 16")
    a.I(f"s_add_u32 s{sS + 10}, s{sS + 10}, s{sS}")
    a.I(f"s_lshl_b32 s{sS + 2}, s{sS + 2}, 16")
    a.I(f"s_add_u32 s{sS + 11}, s{sS + 11}, s{sS + 1}")
    a.I(f"s_add_u32 s{sS + 11}, s{sS + 11}, s{sS + 2}")
    a.I(f"v_add_u32 v{iA}, s{sS + 10}, v{iA}")
    a.I(f"v_add_u32 v{iB}, s{sS + 11}, v{iB}")
    a.I(f"v_and_b32 v{x}, 0xffff, v{iA}")
    a.I(f"v_lshrrev_b32 v{x + 1}, 16, v{iA}")
    a.I(f"v_and_b32 v{x + 2}, 0xffff, v{iB}")
    a.I(f"v_lshrrev_b32 v{x + 3}, 16, v{iB}")
    for t in range(4):
        a.I(f"v_lshl_or_b32 v{n0 + t}, v{n0 + t}, 16, v{x + t}")
    a.I(f"ds_write_b128 v{vCnt16}, {v(x, 4)}")
    a.I("s_waitcnt lgkmcnt(0)")
    a.L("P1_S2")
    a.I(f"v_lshrrev_b32 v{vOffA}, 1, v0")
    a.I(f"s_mov_b32 s{sTmp}, {NC * 32}")
    a.I(f"v_mul_lo_u32 v{vOffA}, v{vOffA}, s{sTmp}")
    a.I(f"v_and_b32 v{vOffA + 1}, 1, v0")
    a.I(f"v_lshl_add_u32 v{vOffA}, v{vOffA + 1}, 4, v{vOffA}")
    a.I(f"s_lshl_b32 s{sTmp + 1}, s{sChunk}, 5")
    a.vmem(f"buffer_store_dwordx4 {v(n0, 4)}, v{vOffA}, {s(sOFF, 4)}, s{sTmp + 1} offen", "offst")
    a.I("s_barrier")
    st_("scan")
    def sc_read(g):
        for k in range(4):
            i = 4 * g + k
            tb = vT + 4 * (g % 2) + k
            a.I(f"v_and_b32 v{tb}, 0x1ffff, v{vKA + i}")
            a.I(f"ds_read_b32 v{tb}, v{tb}")

    def sc_write(g):
        for k in range(4):
            i = 4 * g + k
            tb = vT + 4 * (g % 2) + k
            a.I(f"v_lshrrev_b32 v{vKA + i}, 17, v{vKA + i}")
            a.I(f"v_add_lshl_u32 v{vKA + i}, v{vKA + i}, v{tb}, 3")
            a.I(f"ds_write_b64 v{vKA + i}, {v(vX + 2 * i, 2)}")
    assert c.LASTG == GPT
    sc_read(0)
    for g in range(GPT):
        if g + 1 < GPT:
            sc_read(g + 1)
            a.I(f"s_waitcnt lgkmcnt({4 if g == 0 else 8})")
        else:
            a.I(f"s_waitcnt lgkmcnt({4 if g else 0})")
        sc_write(g)
    a.L("P1_SCAT_DONE")
    if G:
        a.vwait(f"md{4 * GPT - 1}")
    a.I("s_waitcnt lgkmcnt(0)")
    st_("scat")
    a.I("s_barrier")
    st_("barE")
    if not c.early:
        a.I(f"s_add_u32 s{sTmp}, s{sChunk}, {G1}")
        issue_inputs(sTmp)
    st_("pref_issued")
    zero_counters("P1_Z1")
    a.I(f"s_mul_i32 s{sRecOff}, s{sChunk}, {CB}")
    bufs = list(range(pool0, pool1 - 3, 4))
    assert len(bufs) >= ncopy
    spol = (" " + c.st_rec) if c.st_rec else ""
    step = TPB * 16
    per = 65536 // step
    for q in range(1, (ncopy + per - 1) // per):
        a.I(f"v_add_u32 v{vT + q}, {q * per * step}, v{vT16}")
    for i in range(ncopy):
        q = i // per
        base, off = (vT16 if q == 0 else vT + q), (i % per) * step
        a.I(f"ds_read_b128 {v(bufs[i], 4)}, v{base} offset:{off}")
    for i in range(ncopy):
        n_out = ncopy - 1 - i
        a.I(f"s_waitcnt lgkmcnt({min(n_out, 15)})")
        guard = (i + 1) * step > C * 8 or c.LASTG < GPT
        if guard:
            a.I(f"s_sub_i32 s{sTmp}, s{sTot}, {i * step}")
            a.I(f"v_cmp_gt_i32 vcc, s{sTmp}, v{vT16}")
            a.I("s_mov_b64 exec, vcc")
        a.vmem(f"buffer_store_dwordx4 {v(bufs[i], 4)}, v{vT16}, {s(sREC, 4)}, s{sRecOff} offen{spol}", "cp")
        if guard:
            a.I("s_mov_b64 exec, -1")
        a.I(f"s_add_u32 s{sRecOff}, s{sRecOff}, {step}")
    st_("copy")
    a.I(f"s_add_u32 s{sChunk}, s{sChunk}, {G1}")
    a.I(f"s_cmp_lt_u32 s{sChunk}, {NC}")
    a.I("s_cbranch_scc1 P1_LOOP")
    st_.flush(sWid, NWV, 0x8000000, 92, vT)
    a.L("P1_END")
    a.I("s_endpgm")
    return a, lds


def merge(A, B):
    out = []
    la, lb = len(A), len(B)
    ia = ib = 0
    while ia < la or ib < lb:
        if ib >= lb or (ia < la and ia * lb <= ib * la):
            out.append(A[ia]); ia += 1
        else:
            out.append(B[ib]); ib += 1
    return out


def gen_p2(c):
    a = Asm()
    NT, NC, CB, EPL, CPW, nb = c.NT, c.NC, c.CB, c.EPL, c.CPW, c.nb
    SUB = c.sub
    BSH = c.bsh
    NMX = c.G1 * (c.TPB1 // 64)
    MT, TA = c.MT, c.TA
    NBT = [c.nb0 if t == 0 else nb for t in range(NT)]
    tlo = [0] + [next(i for i in range(max(0, -(-(t << 32) // MT) - TA - 2), E) if ((i + TA) * MT) >> 32 == t) for t in range(1, NT)]
    bin0 = [(tlo[t] * 8) >> BSH for t in range(NT)]
    binN = [(((tlo[t + 1] - 1) if t + 1 < NT else E - 1) * 8 >> BSH) - bin0[t] + 1 for t in range(NT)]
    NBIN = 512
    assert max(binN) <= NBIN
    ACC = 0
    GB = 4 * S * 4
    GA = GB + S * 8
    MISC = GA + S * 16
    CNT2 = MISC + 256
    MARKS = CNT2 + 2 * NBIN * 4
    MW = SUB * 256
    assert MW % 512 == 0
    SORT = MARKS + 16 * MW
    lds = SORT + nb * 1024 * 8
    assert lds <= 163840, lds
    va = Alloc("v", 1, 128)
    vMk4 = va.get(); vMk8 = va.get()
    vLaneR = va.get()
    vP = [va.get(EPL) for _ in range(NT)]
    vDl = [va.get(EPL) for _ in range(NT)]
    vA = va.get()
    vSrt = va.get()
    vSH = va.get(2, 2)
    vD8 = va.get(2, 2)
    vZ = va.get(2, 2)
    rX = [va.get(2, 2) for _ in range(nb)]
    sX_ = [[va.get(2, 2) for _ in range(nb)] for _ in range(2)]
    rK = [va.get() for _ in range(nb)]
    sM_ = [[va.get() for _ in range(nb)] for _ in range(2)]
    vT = va.get(24, 2)
    sREC, sMDT, sXs, sY = 16, 20, 24, 28
    sB, sWid, sMode, sMkBase, sKB, sScale, sT, sOff, sMaskHi = 4, 5, 6, 7, 8, 9, 14, 15, 3
    sPtr = 32
    sSave = 42
    sOUT, sMS = 44, 48
    sWU = 56
    sN = [72 + t for t in range(4)]
    sP0 = [76 + t for t in range(4)]
    sCar = [80 + t for t in range(4)]
    sRem = [84 + t for t in range(4)]
    sSR = [88, 89]
    NW2 = (S - 1024 + 63) // 64

    a.L("P2_ENTRY")
    a.I(f"s_cmp_ge_u32 s2, {NB}")
    a.I("s_cbranch_scc1 P2_END")
    a.I(f"s_bfe_u32 s{sWid}, s3, 0x60006")
    st_ = Stamper(a, c.stamps, va.get() if c.stamps else 0, 100)
    if c.stamps:
        a.I(f"v_mov_b32 v{st_.v}, 0")
    st_("start")
    a.I(f"s_load_dwordx2 s[{sPtr}:{sPtr + 1}], s[0:1], 104")
    a.I(f"s_load_dwordx2 s[{sPtr + 2}:{sPtr + 3}], s[0:1], 24")
    a.I(f"s_load_dwordx4 s[{sPtr + 4}:{sPtr + 7}], s[0:1], 80")
    a.I(f"s_load_dwordx2 s[52:53], s[0:1], 0")
    a.I(f"s_and_b32 s{sB}, s2, 7")
    a.I(f"s_lshl_b32 s{sB}, s{sB}, 5")
    a.I(f"s_lshr_b32 s{sT}, s2, 3")
    a.I(f"s_add_u32 s{sB}, s{sB}, s{sT}")
    a.I(f"s_mov_b32 s{sMaskHi}, 0xffff0000")
    vLane = vT + 23
    a.I(f"v_and_b32 v{vLane}, 63, v0")
    if c.cpf2:
        code_prefetch(a, "P2", "gp2_kernel", "TEXT_END", 54, sWid, vT + 4, rK[0], c.cpf2)
    vC = vT + 2
    a.I(f"v_mul_u32_u24 v{vC}, {EPL}, v{vLane}")
    a.I(f"s_mul_i32 s{sT}, s{sWid}, {CPW}")
    a.I(f"v_add_u32 v{vC}, s{sT}, v{vC}")
    a.I(f"s_lshr_b32 s{sT}, s{sB}, 1")
    a.I(f"s_mul_i32 s{sT}, s{sT}, {NC * 32}")
    a.I(f"s_and_b32 s{sOff}, s{sB}, 1")
    a.I(f"s_lshl_b32 s{sOff}, s{sOff}, 4")
    a.I(f"s_add_u32 s{sT}, s{sT}, s{sOff}")
    a.I(f"v_lshlrev_b32 v{vT + 3}, 5, v{vC}")
    a.I(f"s_mul_i32 s{sOff}, s{sB}, {S * 2}")
    vE0 = vT + 1
    a.I(f"v_lshlrev_b32 v{vE0}, 1, v0")
    a.I(f"v_lshlrev_b32 v{vA}, 4, v0")
    a.I("s_waitcnt lgkmcnt(0)")
    srd(a, sXs, sPtr, sPtr + 1, 128 * NC * 32, WS_OFFS)
    vEnt = vT + 4
    for e in range(EPL):
        a.vmem(f"buffer_load_dwordx4 {v(vEnt + 4 * e, 4)}, v{vT + 3}, {s(sXs, 4)}, s{sT} offen offset:{32 * e}", f"ent{e}")
    srd(a, sY, sPtr + 2, sPtr + 3, E * 2)
    vD = vSH
    a.vmem(f"buffer_load_ushort v{vD}, v{vE0}, {s(sY, 4)}, s{sOff} offen", "d0")
    a.vmem(f"buffer_load_ushort v{vD + 1}, v{vE0}, {s(sY, 4)}, s{sOff} offen offset:2048", "d1")
    assert NMX <= 4096
    srd(a, sXs, sPtr, sPtr + 1, NMX * 4, WS_MX)
    vMxv = sX_[1][0]
    assert sX_[1][1] == vMxv + 2
    a.vmem(f"buffer_load_dwordx4 {v(vMxv, 4)}, v{vA}, {s(sXs, 4)}, 0 offen", "mx")
    a.I(f"s_load_dwordx8 s[64:71], s[{sPtr + 4}:{sPtr + 5}], 0")
    srd(a, sMDT, sPtr, sPtr + 1, E * 8, WS_MDT)
    srd(a, sREC, sPtr, sPtr + 1, NC * CB)
    srd(a, sOUT, sPtr + 6, sPtr + 7, E * 8)
    srd(a, sMS, 52, 53, E * 8)
    for i in range(4):
        a.I(f"v_mov_b32 v{vT + 16 + i}, 0")
    a.I(f"v_mov_b32 v{vZ}, 0")
    a.I(f"v_mov_b32 v{vZ + 1}, 0")
    nz = (4 * S * 4) // 16
    a.I(f"ds_write_b128 v{vA}, {v(vT + 16, 4)}")
    a.I(f"v_cmp_gt_u32 vcc, {nz - 1024}, v0")
    a.I(f"v_lshlrev_b32 v{vT}, 2, v0")
    a.I(f"v_add_u32 v{vT}, {CNT2}, v{vT}")
    a.I(f"ds_write_b32 v{vT}, v{vZ}")
    a.I("s_mov_b64 exec, vcc")
    a.I(f"ds_write_b128 v{vA}, {v(vT + 16, 4)} offset:16384")
    a.I("s_mov_b64 exec, -1")
    a.I(f"v_lshlrev_b32 v{vLaneR}, 3, v{vLane}")
    a.I(f"v_lshlrev_b32 v{vSrt}, 3, v0")
    a.I(f"v_add_u32 v{vSrt}, {SORT}, v{vSrt}")
    a.I(f"s_mul_i32 s{sMkBase}, s{sWid}, {MW}")
    a.I(f"s_add_u32 s{sMkBase}, s{sMkBase}, {MARKS}")
    a.I(f"v_lshl_add_u32 v{vMk4}, v{vLane}, 2, s{sMkBase}")
    a.I(f"v_lshl_add_u32 v{vMk8}, v{vLane}, 3, s{sMkBase}")
    srd(a, sY, sPtr, sPtr + 1, GT_BYTES, WS_GT)
    a.vwait(f"ent{EPL - 1}")
    st_("ent")
    vn = vT + 12
    vsum = vT + 20
    assert EPL <= 2
    for e in range(EPL):
        if e:
            a.I(f"v_add_u32 v{vC}, 1, v{vC}")
        a.I(f"v_cmp_gt_u32 vcc, {NC}, v{vC}")
        a.I(f"v_cmp_gt_u32 s[{sSave}:{sSave + 1}], {CPW // EPL}, v{vLane}")
        a.I(f"s_mov_b32 s{sT}, {CB}")
        a.I(f"s_and_b64 vcc, vcc, s[{sSave}:{sSave + 1}]")
        a.I(f"v_mul_lo_u32 v{vsum}, v{vC}, s{sT}")
        for t in range(NT):
            d = vEnt + 4 * e + t
            n_ = vn + t * EPL + e
            a.I(f"v_lshrrev_b32 v{n_}, 16, v{d}")
            a.I(f"v_and_b32 v{d}, 0xffff, v{d}")
            a.I(f"v_cndmask_b32 v{n_}, 0, v{n_}, vcc")
            a.I(f"v_lshl_add_u32 v{vDl[t] + e}, v{d}, 3, v{vsum}")
    for t in range(NT):
        if EPL == 2:
            a.I(f"v_add_u32 v{vEnt + t}, v{vn + 2 * t}, v{vn + 2 * t + 1}")
        else:
            a.I(f"v_mov_b32 v{vEnt + t}, v{vn + t}")
        a.I(f"v_mov_b32 v{vP[t]}, v{vEnt + t}")
    scan_add(a, [vP[t] for t in range(NT)])
    for t in range(NT):
        a.I(f"v_readlane_b32 s{sN[t]}, v{vP[t]}, 63")
    for t in range(NT):
        a.I(f"v_sub_u32 v{vP[t]}, v{vP[t]}, v{vEnt + t}")
        if EPL == 2:
            a.I(f"v_add_u32 v{vP[t] + 1}, v{vP[t]}, v{vn + 2 * t}")
    for t in range(NT):
        for e in range(EPL):
            a.I(f"v_lshlrev_b32 v{vsum}, 3, v{vP[t] + e}")
            a.I(f"v_cmp_ne_u32 vcc, 0, v{vn + t * EPL + e}")
            a.I(f"v_sub_u32 v{vDl[t] + e}, v{vDl[t] + e}, v{vsum}")
            a.I(f"v_cndmask_b32 v{vP[t] + e}, -1, v{vP[t] + e}, vcc")
    sTotN = sKB
    a.I(f"s_mov_b32 s{sTotN}, 0")
    for t in range(NT):
        a.I(f"s_mov_b32 s{sP0[t]}, 0")
        a.I(f"s_mov_b32 s{sCar[t]}, 0")
        a.I(f"s_mov_b32 s{sRem[t]}, s{sN[t]}")
        a.I(f"s_add_u32 s{sTotN}, s{sTotN}, s{sN[t]}")
    tA = [vT + 4, vT + 8]
    tB = [vT + 12, vT + 16]

    def table_loads():
        for j in range(2):
            a.vwait(f"d{j}")
            a.I(f"v_lshlrev_b32 v{vT + 20 + j}, 5, v{vD + j}")
            a.I(f"v_lshlrev_b32 v{vD8 + j}, 3, v{vD + j}")
            a.vmem(f"buffer_load_dwordx4 {v(tA[j], 4)}, v{vT + 20 + j}, {s(sY, 4)}, 0 offen", f"ta{j}")
            a.vmem(f"buffer_load_dwordx4 {v(tB[j], 4)}, v{vT + 20 + j}, {s(sY, 4)}, 0 offen offset:16", f"ts{j}")

    ldpol = (" " + c.ld_rec) if c.ld_rec else ""

    def set_exec_s(sreg, off):
        if off:
            a.I(f"s_sub_i32 s{sT}, s{sreg}, {off}")
            a.I(f"s_max_i32 s{sT}, s{sT}, 0")
        else:
            a.I(f"s_max_i32 s{sT}, s{sreg}, 0")
        a.I(f"s_bfm_b64 exec, s{sT}, 0")
        a.I(f"s_cmp_ge_i32 s{sT}, 64")
        a.I("s_cselect_b64 exec, -1, exec")

    def stageA_p(t, n_tot, regs, tagp):
        P = []
        k0 = 0
        while k0 < n_tot:
            n = min(SUB, n_tot - k0)

            def p(k0=k0, n=n):
                for i in range((n * 256 + 511) // 512):
                    a.I(f"ds_write_b64 v{vMk8}, {v(vZ, 2)} offset:{i * 512}")
                a.I(f"s_add_u32 s{sOff}, s{sP0[t]}, {k0 * 64}")
                for e in range(EPL):
                    a.I(f"v_subrev_u32 v{vA}, s{sOff}, v{vP[t] + e}")
                    a.I(f"v_cmp_gt_u32 vcc, {n * 64}, v{vA}")
                    a.I(f"v_lshl_add_u32 v{vA}, v{vA}, 2, s{sMkBase}")
                    a.I("s_mov_b64 exec, vcc")
                    a.I(f"ds_write_b32 v{vA}, v{vDl[t] + e}")
                    a.I("s_mov_b64 exec, -1")
                for k in range(n):
                    a.I(f"ds_read_b32 v{regs[k0 + k]}, v{vMk4} offset:{k * 256}")
                a.I(f"s_lshl_b32 s{sOff}, s{sOff}, 3")
                a.I("s_waitcnt lgkmcnt(0)")
                scan_max(a, [regs[k0 + k] for k in range(n)])
                for k in range(k0, k0 + n):
                    r = regs[k]
                    a.I(f"v_max_u32 v{r}, s{sCar[t]}, v{r}")
                    a.I(f"v_readlane_b32 s{sCar[t]}, v{r}, 63")
                    a.I(f"v_add3_u32 v{r}, v{r}, v{vLaneR}, s{sOff}")
                    a.I(f"s_add_u32 s{sOff}, s{sOff}, 512")
                    set_exec_s(sRem[t], 64 * k)
                    a.vmem(f"buffer_load_dwordx2 {v(r, 2)}, v{r}, {s(sREC, 4)}, 0 offen{ldpol}", f"{tagp}{k}")
                    a.I("s_mov_b64 exec, -1")
            P.append(p)
            k0 += n
        return P

    def stageA(t, n_tot, regs, tagp):
        for p in stageA_p(t, n_tot, regs, tagp):
            p()

    def gather(r, m, sreg, off, tag):
        set_exec_s(sreg, off)
        a.I(f"v_mov_b32 v{m}, v{r + 1}")
        a.vmem(f"buffer_load_dwordx2 {v(r, 2)}, v{r}, {s(sMDT, 4)}, 0 offen", tag)
        a.I("s_mov_b64 exec, -1")

    lblc = [0]

    def comp(r, meta, sreg, off, tag):
        n = lblc[0]; lblc[0] += 1
        m01, m23 = r, r + 1
        t = vT
        a16, a8, a4 = t, t + 1, t + 2
        af, r0, r2 = t + 3, t + 4, t + 5
        Gq = t + 8
        Gb = t + 12
        c01, c2l, c2h = t + 6, t + 7, t + 14
        md = t + 16
        g = t + 20
        set_exec_s(sreg, off)
        a.I(f"s_cbranch_execz P2_SK{n}")
        a.I(f"v_and_b32 v{a4}, 0xffff, v{meta}")
        a.I(f"v_add_u32 v{a8}, v{a4}, v{a4}")
        a.I(f"v_add_u32 v{a16}, v{a8}, v{a8}")
        a.I(f"ds_read_b64 {v(Gb, 2)}, v{a8} offset:{GB}")
        a.I(f"ds_read_b128 {v(Gq, 4)}, v{a16} offset:{GA}")
        a.I(f"v_and_b32 v{af}, s{sMaskHi}, v{meta}")
        a.I(f"v_mul_f32 v{r0}, 0.15915494, v{af}")
        a.I(f"v_mul_f32 v{r2}, 0x40400000, v{af}")
        a.I(f"v_cos_f32 v{r0}, v{r0}")
        a.I(f"v_cvt_pk_bf16_f32 v{r2}, 0, v{r2}")
        a.I(f"v_mul_f32 v{r2}, 0.15915494, v{r2}")
        a.I(f"v_mul_f32 v{af}, v{r0}, v{r0}")
        a.I(f"v_cos_f32 v{r2}, v{r2}")
        a.I(f"v_fma_f32 v{af}, v{af}, 2.0, -1.0")
        a.I(f"v_cvt_pk_bf16_f32 v{c01}, v{r0}, v{af}")
        a.I(f"v_cvt_pk_bf16_f32 v{c2l}, v{r2}, 0")
        a.I(f"v_cvt_pk_bf16_f32 v{c2h}, 0, v{r2}")
        a.I("s_waitcnt lgkmcnt(1)")
        for d in range(4):
            a.I(f"v_dot2_f32_bf16 v{g + d}, v{Gb + d // 2}, v{c2l if d % 2 == 0 else c2h}, 0")
        a.I("s_waitcnt lgkmcnt(0)")
        for d in range(4):
            a.I(f"v_dot2_f32_bf16 v{g + d}, v{Gq + d}, v{c01}, v{g + d}")
        a.vwait(tag, trim=False)
        a.I(f"v_lshlrev_b32 v{md}, 16, v{m01}")
        a.I(f"v_and_b32 v{md + 1}, s{sMaskHi}, v{m01}")
        a.I(f"v_lshlrev_b32 v{md + 2}, 16, v{m23}")
        a.I(f"v_and_b32 v{md + 3}, s{sMaskHi}, v{m23}")
        a.I(f"s_cmp_lg_u32 s{sMode}, 0")
        for d in range(4):
            a.I(f"v_mul_f32 v{md + d}, v{md + d}, v{g + d}")
        a.I(f"s_cbranch_scc1 P2_FL{n}")
        for d in range(4):
            a.I(f"v_cvt_rpi_i32_f32 v{g + d}, v{md + d}")
            a.I(f"ds_add_u32 v{a4}, v{g + d} offset:{ACC + d * S * 4}")
        a.I(f"s_branch P2_SK{n}")
        a.L(f"P2_FL{n}")
        for d in range(4):
            a.I(f"ds_add_f32 v{a4}, v{md + d} offset:{ACC + d * S * 4}")
        a.L(f"P2_SK{n}")
        a.I("s_mov_b64 exec, -1")
        a.vwait(tag)

    def misc_and_scale():
        a.vwait("mx")
        a.I(f"v_max3_u32 v{vMxv}, v{vMxv}, v{vMxv + 1}, v{vMxv + 2}")
        a.I(f"v_max_u32 v{vMxv}, v{vMxv}, v{vMxv + 3}")
        a.vwait("ts1")
        a.I(f"v_cmp_gt_u32 vcc, {S - 1024}, v0")
        a.I(f"v_cndmask_b32 v{tB[1] + 3}, 0, v{tB[1] + 3}, vcc")
        a.I(f"v_or_b32 v{vMxv + 1}, v{tB[0] + 3}, v{tB[1] + 3}")
        a.I(f"v_lshlrev_b32 v{vMxv + 1}, 31, v{vMxv + 1}")
        a.I(f"v_or_b32 v{vMxv}, v{vMxv}, v{vMxv + 1}")
        scan_max(a, [vMxv])
        a.I(f"v_readlane_b32 s{sT}, v{vMxv}, 63")
        a.I(f"s_lshl_b32 s{sOff}, s{sWid}, 3")
        a.I(f"s_add_u32 s{sOff}, s{sOff}, {MISC}")
        a.I(f"v_mov_b32 v{vMxv}, s{sTotN}")
        a.I(f"v_mov_b32 v{vMxv + 1}, s{sT}")
        a.I(f"v_mov_b32 v{vMxv + 2}, s{sOff}")
        a.I("s_mov_b64 exec, 1")
        a.I(f"ds_write_b64 v{vMxv + 2}, {v(vMxv, 2)}")
        a.I("s_mov_b64 exec, -1")
        a.I("s_waitcnt lgkmcnt(0)")
        st_("pre")
        a.I("s_barrier")
        st_("bar")
        a.I(f"v_and_b32 v{vMxv + 2}, 15, v0")
        a.I(f"v_lshlrev_b32 v{vMxv + 2}, 3, v{vMxv + 2}")
        a.I(f"v_add_u32 v{vMxv + 2}, {MISC}, v{vMxv + 2}")
        a.I(f"ds_read_b64 {v(vMxv, 2)}, v{vMxv + 2}")
        for h in range(2):
            for d in range(4):
                pk = "s_pack_ll_b32_b16" if d % 2 == 0 else "s_pack_hh_b32_b16"
                a.I(f"{pk} s{sWU + h * 4 + d}, s{64 + 4 * h + d // 2}, s{64 + 4 * h + 2 + d // 2}")
        a.I("s_waitcnt lgkmcnt(0)")
        for sh in (1, 2, 4, 8):
            a.I(f"v_add_u32_dpp v{vMxv}, v{vMxv}, v{vMxv} row_shr:{sh} row_mask:0xf bank_mask:0xf bound_ctrl:0")
            a.I(f"v_max_u32_dpp v{vMxv + 1}, v{vMxv + 1}, v{vMxv + 1} row_shr:{sh} row_mask:0xf bank_mask:0xf bound_ctrl:0")
        a.I(f"v_readlane_b32 s{sT}, v{vMxv}, 15")
        a.I(f"v_readlane_b32 s{sOff}, v{vMxv + 1}, 15")
        a.I(f"s_or_b32 s{sT}, s{sT}, 1")
        a.I(f"s_flbit_i32_b32 s{sT}, s{sT}")
        a.I(f"s_sub_u32 s{sT}, s{sT}, 2")
        a.I(f"s_min_u32 s{sT}, s{sT}, 22")
        a.I(f"s_cmp_ge_u32 s{sOff}, 0x7f000000")
        a.I(f"s_cselect_b32 s{sMode}, 1, 0")
        a.I(f"s_lshr_b32 s{sOff}, s{sOff}, 23")
        a.I(f"s_max_u32 s{sOff}, s{sOff}, 70")
        a.I(f"s_min_u32 s{sOff}, s{sOff}, 190")
        a.I(f"s_add_u32 s{sKB}, s{sT}, 126")
        a.I(f"s_sub_i32 s{sKB}, s{sKB}, s{sOff}")
        a.I(f"s_cmp_lg_u32 s{sMode}, 0")
        a.I(f"s_cselect_b32 s{sKB}, 0, s{sKB}")
        a.I(f"s_add_u32 s{sScale}, s{sKB}, 127")
        a.I(f"s_lshl_b32 s{sScale}, s{sScale}, 23")
        x0, x1 = vT + 20, vT + 21
        for j in range(2):
            for r in [tA[j] + q for q in range(4)] + [tB[j], tB[j] + 1]:
                a.I(f"v_lshlrev_b32 v{x0}, 16, v{r}")
                a.I(f"v_and_b32 v{x1}, s{sMaskHi}, v{r}")
                a.I(f"v_mul_f32 v{x0}, s{sScale}, v{x0}")
                a.I(f"v_mul_f32 v{x1}, s{sScale}, v{x1}")
                a.I(f"v_cvt_pk_bf16_f32 v{r}, v{x0}, v{x1}")
            a.I(f"v_mov_b32 v{vSH + j}, v{tB[j] + 2}")
        a.I(f"v_lshlrev_b32 v{vT}, 4, v0")
        a.I(f"v_lshlrev_b32 v{vT + 1}, 3, v0")
        a.I(f"ds_write_b128 v{vT}, {v(tA[0], 4)} offset:{GA}")
        a.I(f"ds_write_b64 v{vT + 1}, {v(tB[0], 2)} offset:{GB}")
        a.I(f"v_cmp_gt_u32 vcc, {S - 1024}, v0")
        a.I("s_mov_b64 exec, vcc")
        a.I(f"ds_write_b128 v{vT}, {v(tA[1], 4)} offset:{GA + 16384}")
        a.I(f"ds_write_b64 v{vT + 1}, {v(tB[1], 2)} offset:{GB + 8192}")
        a.I("s_mov_b64 exec, -1")

    vOne = vT + 22

    def S1(t):
        cb = CNT2 + (t % 2) * NBIN * 4 - bin0[t] * 4
        a.I(f"v_mov_b32 v{vOne}, 1")
        a.I(f"s_mov_b32 s{sSave}, {cb}")
        for k in range(nb):
            a.vwait(f"R{t}_{k}")
            set_exec_s(sRem[t], 64 * k)
            a.I(f"v_lshrrev_b32 v{vA}, {BSH}, v{rX[k]}")
            a.I(f"v_lshl_add_u32 v{vA}, v{vA}, 2, s{sSave}")
            a.I(f"ds_add_rtn_u32 v{rK[k]}, v{vA}, v{vOne}")
            a.I("s_mov_b64 exec, -1")
        a.I("s_waitcnt lgkmcnt(0)")

    def S2(t):
        n = lblc[0]; lblc[0] += 1
        a.I(f"s_cmp_lg_u32 s{sWid}, {c.scanw}")
        a.I(f"s_cbranch_scc1 P2_NS{n}")
        x = vT
        a.I(f"v_lshlrev_b32 v{x + 10}, 2, v{vLaneR}")
        a.I(f"v_add_u32 v{x + 10}, {CNT2 + (t % 2) * NBIN * 4}, v{x + 10}")
        a.I(f"ds_read_b128 {v(x, 4)}, v{x + 10}")
        a.I(f"ds_read_b128 {v(x + 4, 4)}, v{x + 10} offset:16")
        a.I("s_waitcnt lgkmcnt(0)")
        for q in range(1, 8):
            a.I(f"v_add_u32 v{x + q}, v{x + q}, v{x + q - 1}")
        a.I(f"v_mov_b32 v{x + 8}, v{x + 7}")
        scan_add(a, [x + 8])
        a.I(f"v_readlane_b32 s{sT}, v{x + 8}, 63")
        a.I(f"v_sub_u32 v{x + 8}, v{x + 8}, v{x + 7}")
        for q in range(7, 0, -1):
            a.I(f"v_add_u32 v{x + q}, v{x + q - 1}, v{x + 8}")
        a.I(f"v_mov_b32 v{x}, v{x + 8}")
        a.I(f"ds_write_b128 v{x + 10}, {v(x, 4)}")
        a.I(f"ds_write_b128 v{x + 10}, {v(x + 4, 4)} offset:16")
        a.I(f"v_mov_b32 v{x + 9}, s{sT}")
        a.I(f"v_mov_b32 v{x + 11}, {MISC + 128 + 4 * (t % 2)}")
        a.I(f"ds_write_b32 v{x + 11}, v{x + 9}")
        a.I("s_waitcnt lgkmcnt(0)")
        a.L(f"P2_NS{n}")

    def S3(t):
        cb = CNT2 + (t % 2) * NBIN * 4 - bin0[t] * 4
        a.I(f"s_mov_b32 s{sSave}, {cb}")
        a.I(f"s_mov_b32 s{sSave + 1}, {SORT}")
        a.I(f"v_mov_b32 v{vT + 8}, {MISC + 128 + 4 * (t % 2)}")
        a.I(f"ds_read_b32 v{vT + 8}, v{vT + 8}")
        for k in range(nb):
            a.I(f"v_lshrrev_b32 v{vT + 10 + k}, {BSH}, v{rX[k]}")
            a.I(f"v_lshl_add_u32 v{vT + 10 + k}, v{vT + 10 + k}, 2, s{sSave}")
            set_exec_s(sRem[t], 64 * k)
            a.I(f"ds_read_b32 v{vT + 10 + k}, v{vT + 10 + k}")
            a.I("s_mov_b64 exec, -1")
        a.I(f"s_waitcnt lgkmcnt({nb})")
        a.I(f"v_readfirstlane_b32 s{sSR[t % 2]}, v{vT + 8}")
        a.I(f"s_lshl_b32 s{sOff}, s{sWid}, 6")
        a.I(f"s_sub_i32 s{sSR[t % 2]}, s{sSR[t % 2]}, s{sOff}")
        for k in range(nb):
            a.I(f"s_waitcnt lgkmcnt({nb - 1})")
            a.I(f"v_add_u32 v{vT + 10 + k}, v{vT + 10 + k}, v{rK[k]}")
            a.I(f"v_lshl_add_u32 v{vT + 10 + k}, v{vT + 10 + k}, 3, s{sSave + 1}")
            set_exec_s(sRem[t], 64 * k)
            a.I(f"ds_write_b64 v{vT + 10 + k}, {v(rX[k], 2)}")
            a.I("s_mov_b64 exec, -1")

    def S4(t):
        p = t % 2
        a.I(f"v_lshlrev_b32 v{vA}, 2, v0")
        a.I(f"v_cmp_gt_u32 vcc, {NBIN}, v0")
        a.I(f"v_add_u32 v{vA}, {CNT2 + p * NBIN * 4}, v{vA}")
        a.I("s_mov_b64 exec, vcc")
        a.I(f"ds_write_b32 v{vA}, v{vZ}")
        a.I("s_mov_b64 exec, -1")
        for k in range(nb):
            a.I(f"ds_read_b64 {v(sX_[p][k], 2)}, v{vSrt} offset:{k * 8192}")
        a.I("s_waitcnt lgkmcnt(0)")

    def cnt_of(t, k):
        return (sRem[0], 64 * k) if t == 0 else (sSR[t % 2], 1024 * k)

    def G_(t, k):
        p = t % 2
        if t == 0:
            a.vwait(f"R0_{k}")
        gather(sX_[p][k], sM_[p][k], *cnt_of(t, k), f"B{t}_{k}")

    def C_(t, k):
        p = t % 2
        comp(sX_[p][k], sM_[p][k], *cnt_of(t, k), f"B{t}_{k}")

    def bar():
        a.I("s_waitcnt lgkmcnt(0)")
        a.I("s_barrier")

    assert nb * 8192 <= 65536
    assert vT + 10 + nb <= vT + 22
    L = c.lead
    if c.order == 0:
        stageA(0, NBT[0], sX_[0], "R0_")
        table_loads()
        if NT > 1:
            stageA(1, nb, rX, "R1_")
    else:
        table_loads()
        stageA(0, NBT[0], sX_[0], "R0_")
        if c.order == 2 and NT > 1:
            stageA(1, nb, rX, "R1_")
        misc_and_scale()
        if c.order == 1 and NT > 1:
            stageA(1, nb, rX, "R1_")
    compQ = []
    step = 0
    gstep = {}
    for t in range(NT):
        W = []
        if t == 0 and c.order == 0:
            W.append(misc_and_scale)
        if t + 1 < NT:
            def s3w(t=t):
                while compQ and compQ[0][0] < t:
                    C_(*compQ.pop(0))
                S3(t + 1)
            W += [lambda t=t: S1(t + 1), bar, lambda t=t: S2(t + 1), None, bar, s3w]
            if t + 2 < NT:
                W += [lambda: a.I("s_waitcnt lgkmcnt(0)")] + stageA_p(t + 2, nb, rX, f"R{t + 2}_")
        elif t == 0:
            W.append(bar)
        if t > 0:
            S4(t)
        ready = t > 0
        nbar = 0
        wi = 0
        for k in range(NBT[t]):
            G_(t, k)
            gstep[(t, k)] = step
            compQ.append((t, k))
            step += 1
            tgt = min(len(W), -(-len(W) * (k + 1) // min(c.wspread, NBT[t])))
            while wi < tgt:
                f = W[wi]; wi += 1
                if f is not None:
                    f()
                if f is bar:
                    ready = True
            n = 0
            while ready and compQ and n < c.cps and gstep[compQ[0]] + L <= step:
                C_(*compQ.pop(0)); n += 1
        while wi < len(W):
            f = W[wi]; wi += 1
            if f is not None:
                f()
        while compQ and compQ[0][0] < t:
            C_(*compQ.pop(0))
        if t + 1 < NT:
            bar()
        st_(f"T{t}")
    while compQ:
        C_(*compQ.pop(0))
    st_("comps")
    a.vwait_all()
    for t in range(NT):
        a.I(f"s_add_u32 s{sP0[t]}, s{sP0[t]}, {NBT[t] * 64}")
        a.L(f"P2_LOOP{t}")
        a.I(f"s_sub_i32 s{sRem[t]}, s{sN[t]}, s{sP0[t]}")
        a.I(f"s_cmp_le_i32 s{sRem[t]}, 0")
        a.I(f"s_cbranch_scc1 P2_LOOP_END{t}")
        lr = min(nb, 4)
        stageA(t, lr, rX, "L")
        for k in range(lr):
            a.vwait(f"L{k}")
            gather(rX[k], rK[k], sRem[t], 64 * k, f"LB{k}")
        for k in range(lr):
            comp(rX[k], rK[k], sRem[t], 64 * k, f"LB{k}")
        a.vwait_all()
        a.I(f"s_add_u32 s{sP0[t]}, s{sP0[t]}, {lr * 64}")
        a.I(f"s_branch P2_LOOP{t}")
        a.L(f"P2_LOOP_END{t}")
    st_("loop")
    a.I(f"v_lshlrev_b32 v{vT}, 3, v0")
    a.I(f"s_mul_i32 s{sT}, s{sB}, {S * 8}")
    a.I(f"s_add_u32 s{sT + 1}, s{sT}, 8192")
    vMrow = rX[0]
    vRW = rX[2]
    assert rX[1] == vMrow + 2 and rX[3] == vRW + 2
    a.I(f"buffer_load_dwordx2 {v(vMrow, 2)}, v{vT}, {s(sMS, 4)}, s{sT} offen")
    a.I(f"buffer_load_dwordx2 {v(vMrow + 2, 2)}, v{vT}, {s(sMS, 4)}, s{sT + 1} offen")
    a.I(f"s_mov_b32 s{sSave}, 0x200000")
    a.I(f"buffer_load_dwordx2 {v(vRW, 2)}, v{vD8}, {s(sY, 4)}, s{sSave} offen")
    a.I(f"buffer_load_dwordx2 {v(vRW + 2, 2)}, v{vD8 + 1}, {s(sY, 4)}, s{sSave} offen")
    a.I("s_waitcnt lgkmcnt(0)")
    a.I("s_barrier")
    st_("bar3")
    for j in range(2):
        if j == 1:
            a.I(f"s_cmp_ge_u32 s{sWid}, {NW2}")
            a.I("s_cbranch_scc1 P2_FIN")
            a.I(f"v_cmp_gt_u32 vcc, {S - 1024}, v0")
            a.I("s_mov_b64 exec, vcc")
        q = vT + 4; f = vT + 8; up = vT + 12; rw = vT + 16; pk = vT + 20
        a.I(f"v_lshlrev_b32 v{vT + 1}, 2, v0")
        for d in range(4):
            a.I(f"ds_read_b32 v{q + d}, v{vT + 1} offset:{ACC + d * S * 4 + j * 4096}")
        for d in range(4):
            a.I(f"v_bfe_i32 v{up + d}, v{vSH + j}, {8 * d}, 8")
        for d in range(4):
            a.I(f"v_subrev_u32 v{up + d}, s{sKB}, v{up + d}")
        a.I(f"s_cmp_lg_u32 s{sMode}, 0")
        a.I("s_waitcnt lgkmcnt(0)")
        a.I(f"s_cbranch_scc1 P2_EF{j}")
        for d in range(4):
            a.I(f"v_cvt_f32_i32 v{q + d}, v{q + d}")
        a.L(f"P2_EF{j}")
        for d in range(4):
            a.I(f"v_ldexp_f32 v{q + d}, v{q + d}, v{up + d}")
        a.I(f"v_cvt_pk_bf16_f32 v{pk}, v{q}, v{q + 1}")
        a.I(f"v_cvt_pk_bf16_f32 v{pk + 1}, v{q + 2}, v{q + 3}")
        for d in range(4):
            a.I(f"v_dot2_f32_bf16 v{up + d}, v{pk}, s{sWU + d}, 0")
        for d in range(4):
            a.I(f"v_dot2_f32_bf16 v{up + d}, v{pk + 1}, s{sWU + 4 + d}, v{up + d}")
        m01, m23 = vMrow + 2 * j, vMrow + 2 * j + 1
        if j == 0:
            a.I("s_waitcnt vmcnt(0)")
        a.I(f"v_lshlrev_b32 v{rw}, 16, v{vRW + 2 * j}")
        a.I(f"v_and_b32 v{rw + 1}, s{sMaskHi}, v{vRW + 2 * j}")
        a.I(f"v_lshlrev_b32 v{rw + 2}, 16, v{vRW + 2 * j + 1}")
        a.I(f"v_and_b32 v{rw + 3}, s{sMaskHi}, v{vRW + 2 * j + 1}")
        a.I(f"v_lshlrev_b32 v{f}, 16, v{m01}")
        a.I(f"v_and_b32 v{f + 1}, s{sMaskHi}, v{m01}")
        a.I(f"v_lshlrev_b32 v{f + 2}, 16, v{m23}")
        a.I(f"v_and_b32 v{f + 3}, s{sMaskHi}, v{m23}")
        for d in range(4):
            a.I(f"v_cvt_pk_bf16_f32 v{up + d}, 0, v{up + d}")
        for d in range(4):
            a.I(f"v_mul_f32 v{up + d}, v{up + d}, v{rw + d}")
        for d in range(4):
            a.I(f"v_cvt_pk_bf16_f32 v{up + d}, 0, v{up + d}")
        for d in range(4):
            a.I(f"v_add_f32 v{up + d}, v{up + d}, v{f + d}")
        a.I(f"v_cvt_pk_bf16_f32 v{pk}, v{up}, v{up + 1}")
        a.I(f"v_cvt_pk_bf16_f32 v{pk + 1}, v{up + 2}, v{up + 3}")
        a.I(f"buffer_store_dwordx2 {v(pk, 2)}, v{vT}, {s(sOUT, 4)}, s{sT + j} offen")
    a.L("P2_FIN")
    st_("end")
    st_.flush(sWid, 16, 0x9000000, sY, vT + 1)
    a.L("P2_END")
    a.I("s_endpgm")
    return a, lds


HEADER = """; gemnet triplet message passing: one kernel, launched twice (the workgroup size selects the phase)
"""


def kd(name, nv, ns):
    acc = (nv + 3) // 4 * 4
    return f""".amdhsa_kernel {name}
  .amdhsa_next_free_vgpr {nv}
  .amdhsa_next_free_sgpr {ns}
  .amdhsa_accum_offset {acc}
  .amdhsa_group_segment_fixed_size 0
  .amdhsa_kernarg_size 112
  .amdhsa_user_sgpr_count 2
  .amdhsa_user_sgpr_kernarg_segment_ptr 1
  .amdhsa_system_sgpr_workgroup_id_x 1
  .amdhsa_system_sgpr_workgroup_info 1
  .amdhsa_float_denorm_mode_32 3
  .amdhsa_float_denorm_mode_16_64 3
.end_amdhsa_kernel
"""


def build(c):
    p1, lds1 = gen_p1(c)
    p2, lds2 = gen_p2(c)
    n1 = p1.fix_hazards()
    n2 = p2.fix_hazards()
    v1, s1 = p1.max_regs()
    v2, s2 = p2.max_regs()
    out = HEADER
    out += f"; @launch kernel=gp_kernel grid=({c.G1},1,1) block=({c.TPB1},1,1) lds={lds1}\n"
    out += f"; @launch kernel=gp_kernel grid=({NB},1,1) block=(1024,1,1) lds={lds2}\n"
    out += '.amdgcn_target "amdgcn-amd-amdhsa--gfx950"\n.text\n'
    out += ".globl gp_kernel\n.p2align 8\n.type gp_kernel,@function\ngp_kernel:\n"
    out += "    s_and_b32 s4, s3, 0x3f\n"
    out += "    s_cmp_eq_u32 s4, 16\n    s_cbranch_scc1 P2_ENTRY\n"
    out += p1.text() + p2.text()
    out += "TEXT_END:\n"
    out += '.section .rodata,"a"\n.p2align 6\n'
    assert max(v1, v2) <= 128
    out += kd("gp_kernel", max(v1, v2), max(s1, s2))
    info = f"p1: vgpr {v1} sgpr {s1} lds {lds1} nops {n1}; p2: vgpr {v2} sgpr {s2} lds {lds2} nops {n2}; NC {c.NC} CB {c.CB} CPW {c.CPW} EPL {c.EPL}"
    return out, info


if __name__ == "__main__":
    kw = {}
    outp = "standalone__molecular_angular_gemnet__graph.s"
    for arg in sys.argv[1:]:
        k, val = arg.split("=", 1)
        if k == "out":
            outp = val
            continue
        try:
            val = int(val)
        except ValueError:
            pass
        kw[k] = val
    c = Cfg(**kw)
    txt, info = build(c)
    open(outp, "w").write(txt)
    print(info)
```

```python
import sys, os
sys.path.insert(0, os.path.dirname(__file__))
from asmlib import Asm, Alloc, v, s

E = 400000
T = 6400000
NB = 256
S = 1568
MAGIC = 2739138
KFIX = 16

WS_OFFS = 0x6000000
WS_MDT = 0x7000000
WS_MX = 0x7600000
WS_GT = 0x7800000
GT_BYTES = 0x280000


import struct


def f32bits(x):
    return struct.unpack('<I', struct.pack('<f', x))[0]


class Cfg:
    def __init__(self, **kw):
        self.NT = 4
        self.nb = 8
        self.GPT = 5
        self.TPB1 = 640
        self.G1 = 250
        self.ld_in = "nt"
        self.st_rec = ""
        self.ld_rec = ""
        self.nbG = 14
        self.nbR = 14
        self.sub = 4
        self.lead = 3
        self.g0 = 0
        self.lag = 3
        self.cpb = 1
        self.nset = 2
        self.wspread = 5
        self.cpf = 0
        self.cpf2 = 0
        self.order = 0
        self.e0 = 190
        self.nb0 = 6
        self.q1 = 2
        self.scanw = 15
        self.useG = 0
        self.bsh = 11
        self.cps = 1
        self.npf = 0
        self.tbar = 1
        self.aspread = 5
        self.early = 1
        self.kbit = 3
        self.lead2 = 4
        self.stamps = 0
        self.nogather = 0
        self.nocomp = 0
        self.__dict__.update(kw)
        self.TA = max(0, (E - self.NT * (E * self.e0 // 1000)) // max(1, self.NT - 1))
        self.MT = (self.NT << 32) // (E + self.TA)
        self.C = self.TPB1 * self.GPT * 4
        self.NC = (T + self.C - 1) // self.C
        rem = T - (self.NC - 1) * self.C
        assert rem % (self.TPB1 * 4) == 0
        self.LASTG = rem // (self.TPB1 * 4)
        assert not self.useG
        self.CB = self.C * 8
        assert self.C < 65536
        assert self.CB % 16 == 0
        assert self.NC * self.CB <= WS_OFFS
        self.CPW = (self.NC + 15) // 16
        self.EPL = (self.CPW + 63) // 64
        self.CPW = (self.CPW + self.EPL - 1) // self.EPL * self.EPL


def srd(a, d, base_lo, base_hi, nbytes, add=0):
    if add:
        a.I(f"s_add_u32 s{d}, s{base_lo}, {hex(add)}")
        a.I(f"s_addc_u32 s{d + 1}, s{base_hi}, 0")
    else:
        a.I(f"s_mov_b32 s{d}, s{base_lo}")
        a.I(f"s_mov_b32 s{d + 1}, s{base_hi}")
    a.I(f"s_mov_b32 s{d + 2}, {hex(nbytes)}")
    a.I(f"s_mov_b32 s{d + 3}, 0x20000")


class Stamper:
    def __init__(self, a, on, vreg, sreg):
        self.a, self.on, self.v, self.s, self.n = a, on, vreg, sreg, 0
        self.names = []

    def __call__(self, name):
        if not self.on:
            return
        a = self.a
        a.I(f"s_memtime s[{self.s}:{self.s + 1}]")
        a.I("s_waitcnt lgkmcnt(0)")
        a.I(f"v_writelane_b32 v{self.v}, s{self.s}, {self.n}")
        self.names.append(name)
        self.n += 1

    def flush(self, sWid, nwaves, wsoff, ssrd, vtmp):
        if not self.on:
            return
        a = self.a
        a.I("s_mov_b64 exec, -1")
        a.I(f"s_load_dwordx2 s[{self.s}:{self.s + 1}], s[0:1], 104")
        a.I("s_waitcnt lgkmcnt(0)")
        srd(a, ssrd, self.s, self.s + 1, 0x1000000, wsoff)
        a.I(f"s_mul_i32 s{self.s}, s2, {nwaves}")
        a.I(f"s_add_u32 s{self.s}, s{self.s}, s{sWid}")
        a.I(f"s_lshl_b32 s{self.s}, s{self.s}, 8")
        a.I(f"v_and_b32 v{vtmp}, 63, v0")
        a.I(f"v_lshlrev_b32 v{vtmp}, 2, v{vtmp}")
        a.I(f"buffer_store_dword v{self.v}, v{vtmp}, s[{ssrd}:{ssrd + 3}], s{self.s} offen")
        print("stamps:", " ".join(self.names))


def scan(a, regs, op):
    for sh in (1, 2, 4, 8):
        for r in regs:
            a.I(f"{op}_dpp v{r}, v{r}, v{r} row_shr:{sh} row_mask:0xf bank_mask:0xf bound_ctrl:0")
    for r in regs:
        a.I(f"{op}_dpp v{r}, v{r}, v{r} row_bcast:15 row_mask:0xa bank_mask:0xf")
    for r in regs:
        a.I(f"{op}_dpp v{r}, v{r}, v{r} row_bcast:31 row_mask:0xc bank_mask:0xf")


def scan_add(a, regs):
    scan(a, regs, "v_add_u32")


def scan_max(a, regs):
    scan(a, regs, "v_max_u32")


def md_dots(a, m01, m23, W, t):
    for d in range(4):
        a.I(f"v_dot2_f32_bf16 v{t + d}, v{m23}, s{W + 2 * d + 1}, 0")
    for d in range(4):
        a.I(f"v_dot2_f32_bf16 v{t + d}, v{m01}, s{W + 2 * d}, v{t + d}")


def md_pack(a, t, out01, out23):
    a.I(f"v_cvt_pk_bf16_f32 v{out01}, v{t}, v{t + 1}")
    a.I(f"v_cvt_pk_bf16_f32 v{out23}, v{t + 2}, v{t + 3}")


def pack4(a, dst4, tmp):
    for t in range(4):
        a.I(f"s_mov_b32 s{tmp + t}, s{dst4[t]}")
    for d in range(4):
        pk = "s_pack_ll_b32_b16" if d % 2 == 0 else "s_pack_hh_b32_b16"
        a.I(f"{pk} s{dst4[d]}, s{tmp + d // 2}, s{tmp + 2 + d // 2}")


def code_prefetch(a, name, first, last, sP, sWid, vOff, vDst, nmax):
    a.I(f"s_getpc_b64 s[{sP}:{sP + 1}]")
    a.L(f"{name}_PC")
    a.I(f"s_sub_u32 s{sP}, s{sP}, {name}_PC-{first}")
    a.I(f"s_subb_u32 s{sP + 1}, s{sP + 1}, 0")
    a.I(f"v_lshlrev_b32 v{vOff}, 7, v0")
    a.I(f"s_cmp_eq_u32 s{sWid}, 0")
    for j in range(nmax):
        a.I(f"v_min_u32 v{vOff + 1}, {last}-{first}-4, v{vOff}")
        a.I("s_cselect_b64 exec, -1, 0")
        a.vmem(f"global_load_dword v{vDst}, v{vOff + 1}, s[{sP}:{sP + 1}]", "cpf")
        a.I("s_mov_b64 exec, -1")
        a.I(f"v_add_u32 v{vOff}, 0x2000, v{vOff}")


def gen_p1(c):
    a = Asm()
    NT, GPT, TPB, C, NC, CB, G1 = c.NT, c.GPT, c.TPB1, c.C, c.NC, c.CB, c.G1
    NWV = TPB // 64
    MT = c.MT
    CNT = CB
    WT = 4096
    lds = CB + 4096 + 32
    va = Alloc("v", 1, 256)
    vT8 = va.get(); vT16 = va.get()
    vCnt16 = va.get()
    vZ = va.get(2, 2)
    pII = va.get(4 * GPT, 2)
    pIO = va.get(4 * GPT, 2)
    pAN = va.get(2 * GPT, 2)
    pool0 = va.get(0, 2)
    vX = va.get(8 * GPT, 2)
    if not c.useG:
        ME = [vX + 2 * i + 1 for i in range(4 * GPT)]
    elif c.early:
        vME = va.get(4 * GPT, 2)
        ME = [vME + i for i in range(4 * GPT)]
    else:
        ME = [pIO + i for i in range(4 * GPT)]
    vKA = va.get(4 * GPT, 2)
    pool1 = va.get(0, 2)
    vT = va.get(12, 2)
    tt = pool0
    vOne = vT + 8
    vOffA = vT + 4
    assert pool1 - pool0 >= 44
    sChunk, sWid, sMaskHi, sMagic, sNegS2, sO4, sO2, sPre, sRecOff = 3, 4, 5, 6, 7, 8, 9, 10, 11
    sTmp = 14
    sIN, sOUT, sANG, sM = 16, 20, 24, 28
    sW = 32
    sREC, sOFF = 40, 44
    sWt = 48
    sCen = 96
    sPT = 8
    a.I(f"s_cmp_ge_u32 s2, {G1}")
    a.I("s_cbranch_scc1 P1_END")
    a.I(f"s_bfe_u32 s{sWid}, s3, 0x60006")
    st_ = Stamper(a, c.stamps, va.get() if c.stamps else 0, 100)
    if c.stamps:
        a.I(f"v_mov_b32 v{st_.v}, 0")
    st_("start")
    a.I("s_load_dwordx4 s[48:51], s[0:1], 0")
    a.I("s_load_dwordx2 s[52:53], s[0:1], 16")
    a.I("s_load_dwordx4 s[56:59], s[0:1], 32")
    a.I("s_load_dwordx4 s[60:63], s[0:1], 56")
    a.I("s_load_dwordx2 s[64:65], s[0:1], 72")
    a.I("s_load_dwordx2 s[12:13], s[0:1], 104")
    a.I(f"v_lshlrev_b32 v{vT8}, 3, v0")
    a.I(f"v_lshlrev_b32 v{vT16}, 4, v0")
    a.I(f"v_mov_b32 v{vZ}, 0")
    a.I(f"v_mov_b32 v{vZ + 1}, 0")
    a.I(f"v_add_u32 v{vCnt16}, {CNT}, v{vT16}")
    a.I(f"s_mov_b32 s{sChunk}, s2")
    a.I(f"s_mov_b32 s{sMaskHi}, 0xffff0000")
    if c.cpf:
        code_prefetch(a, "P1", "gp1_kernel", "TEXT_END", 66, sWid, vT + 2, vKA + 4 * GPT - 1, c.cpf)

    def zero_counters(lbl):
        if TPB > 256:
            a.I(f"s_cmp_ge_u32 s{sWid}, 4")
            a.I(f"s_cbranch_scc1 {lbl}")
        a.I(f"ds_write_b64 v{vCnt16}, {v(vZ, 2)}")
        a.I(f"ds_write_b64 v{vCnt16}, {v(vZ, 2)} offset:8")
        a.L(lbl)
    zero_counters("P1_Z0")
    a.I("s_waitcnt lgkmcnt(0)")
    srd(a, sIN, 50, 51, T * 4)
    srd(a, sOUT, 52, 53, T * 4)
    srd(a, sANG, 56, 57, T * 2)
    pol = (" " + c.ld_in) if c.ld_in else ""

    def issue_inputs(schunk):
        a.I(f"s_mul_i32 s{sO4}, s{schunk}, {C * 4}")
        a.I(f"s_mul_i32 s{sO2}, s{schunk}, {C * 2}")
        for g in range(GPT):
            a.vmem(f"buffer_load_dwordx4 {v(pII + 4 * g, 4)}, v{vT16}, {s(sIN, 4)}, s{sO4} offen{pol}", f"ii{g}")
            a.vmem(f"buffer_load_dwordx4 {v(pIO + 4 * g, 4)}, v{vT16}, {s(sOUT, 4)}, s{sO4} offen{pol}", f"io{g}")
            a.vmem(f"buffer_load_dwordx2 {v(pAN + 2 * g, 2)}, v{vT8}, {s(sANG, 4)}, s{sO2} offen{pol}", f"an{g}")
            if g + 1 < GPT:
                a.I(f"s_add_u32 s{sO4}, s{sO4}, {TPB * 16}")
                a.I(f"s_add_u32 s{sO2}, s{sO2}, {TPB * 8}")

    issue_inputs(sChunk)
    srd(a, sM, 48, 49, E * 8)
    RPW = (E + G1 - 1) // G1
    NR_ = (RPW + TPB - 1) // TPB
    assert NR_ <= 4
    vMRa = tt
    vMR = tt + 4
    vS = tt + 12
    a.I(f"s_mul_i32 s{sMagic}, s2, {RPW * 8}")
    for r in range(NR_):
        lim = RPW - r * TPB
        a.I(f"v_add_u32 v{vMRa + r}, {r * TPB * 8}, v{vT8}")
        if lim < TPB:
            a.I(f"v_cmp_gt_u32 vcc, {lim}, v0")
            a.I(f"v_mov_b32 v{vT}, 0x7ffffff0")
            a.I(f"v_cndmask_b32 v{vMRa + r}, v{vT}, v{vMRa + r}, vcc")
        a.vmem(f"buffer_load_dwordx2 {v(vMR + 2 * r, 2)}, v{vMRa + r}, {s(sM, 4)}, s{sMagic} offen", f"mr{r}")
    a.I(f"s_mov_b32 s{sTmp}, s60")
    a.I(f"s_mov_b32 s{sTmp + 1}, s61")
    a.I("s_mov_b32 s10, s62")
    a.I("s_mov_b32 s11, s63")
    a.I("s_load_dwordx8 s[40:47], s[64:65], 0")
    a.I(f"s_load_dwordx4 s[{sCen}:{sCen + 3}], s[58:59], 0")
    a.I(f"s_load_dwordx16 s[{sWt}:{sWt + 15}], s[10:11], 0")
    a.I(f"s_load_dwordx16 s[{sWt + 16}:{sWt + 31}], s[10:11], 64")
    a.I(f"s_load_dwordx16 s[{sWt + 32}:{sWt + 47}], s[10:11], 128")
    a.I("s_waitcnt lgkmcnt(0)")
    r = 40
    for d in range(4):
        pk = "s_pack_ll_b32_b16" if d % 2 == 0 else "s_pack_hh_b32_b16"
        a.I(f"{pk} s{sW + 2 * d}, s{r + d // 2}, s{r + 2 + d // 2}")
        a.I(f"{pk} s{sW + 2 * d + 1}, s{r + 4 + d // 2}, s{r + 6 + d // 2}")
    sMDT, sGT = 40, 44
    srd(a, sMDT, 12, 13, E * 8, WS_MDT)
    srd(a, sGT, 12, 13, GT_BYTES, WS_GT)
    NTW = (1024 + G1 - 1) // G1
    EPW = NTW * 64
    while 1024 % NTW:
        NTW += 1
    EPW = NTW * 64
    assert NTW <= NWV
    a.I(f"s_cmp_lt_u32 s{sWid}, {NWV - NTW}")
    a.I("s_cbranch_scc1 P1_TB1")
    a.I(f"s_cmp_ge_u32 s2, {(1024 + NTW - 1) // NTW}")
    a.I("s_cbranch_scc1 P1_TB1")

    def ws_reg(j, l, d):
        base = sWt + 12 * j
        return [base + 2 * l, base + 2 * l + 1, base + 6 + 2 * l, base + 6 + 2 * l + 1][d]
    for j in range(4):
        for l in range(3):
            pack4(a, [ws_reg(j, l, t) for t in range(4)], sPT)
    vIdx = tt + 14
    vFlag = tt + 13
    vDd = tt + 15
    vr = tt + 16
    vRBF = tt + 24
    vg = tt + 28
    vs_ = tt + 40
    a.I(f"s_mul_i32 s{sPT}, s2, {EPW}")
    a.I(f"v_subrev_u32 v{vIdx}, {(NWV - NTW) * 64}, v0")
    a.I(f"v_add_u32 v{vIdx}, s{sPT}, v{vIdx}")
    a.I(f"v_lshlrev_b32 v{vDd}, 16, v{vIdx}")
    for r in range(8):
        if r % 2 == 0:
            a.I(f"s_lshl_b32 s{sPT + r % 4}, s{sCen + r // 2}, 16")
        else:
            a.I(f"s_and_b32 s{sPT + r % 4}, s{sCen + r // 2}, 0xffff0000")
        a.I(f"v_subrev_f32 v{vr + r}, s{sPT + r % 4}, v{vDd}")
    for r in range(8):
        a.I(f"v_cvt_pk_bf16_f32 v{vr + r}, 0, v{vr + r}")
    for r in range(8):
        a.I(f"v_mul_f32 v{vr + r}, v{vr + r}, v{vr + r}")
    for r in range(8):
        a.I(f"v_cvt_pk_bf16_f32 v{vr + r}, 0, v{vr + r}")
    for r in range(8):
        a.I(f"v_mul_f32 v{vr + r}, 0xc1200000, v{vr + r}")
    for r in range(8):
        a.I(f"v_cvt_pk_bf16_f32 v{vr + r}, 0, v{vr + r}")
    for r in range(8):
        a.I(f"v_mul_f32 v{vr + r}, 0x3fb8aa3b, v{vr + r}")
    for r in range(8):
        a.I(f"v_exp_f32 v{vr + r}, v{vr + r}")
    for q in range(4):
        a.I(f"v_cvt_pk_bf16_f32 v{vRBF + q}, v{vr + 2 * q}, v{vr + 2 * q + 1}")
    for q in range(4):
        for l in range(3):
            for d in range(4):
                src2 = "0" if q == 0 else f"v{vg + 4 * l + d}"
                a.I(f"v_dot2_f32_bf16 v{vg + 4 * l + d}, v{vRBF + q}, s{ws_reg(q, l, d)}, {src2}")
    a.I(f"s_load_dwordx16 s[{sWt}:{sWt + 15}], s[{sTmp}:{sTmp + 1}], 0")
    for d in range(4):
        a.I(f"v_add_f32 v{vs_ + d}, |v{vg + d}|, |v{vg + 4 + d}|")
    for d in range(4):
        a.I(f"v_add_f32 v{vs_ + d}, v{vs_ + d}, |v{vg + 8 + d}|")
    a.I(f"v_add_f32 v{vr}, v{vs_}, v{vs_ + 1}")
    a.I(f"v_add_f32 v{vr + 1}, v{vs_ + 2}, v{vs_ + 3}")
    a.I(f"v_add_f32 v{vr}, v{vr}, v{vr + 1}")
    a.I(f"v_cmp_gt_u32 vcc, 0x7f000000, v{vr}")
    for d in range(4):
        a.I(f"v_frexp_exp_i32_f32 v{vs_ + d}, v{vs_ + d}")
    a.I(f"s_movk_i32 s{sPT}, -60")
    for d in range(4):
        a.I(f"v_med3_i32 v{vs_ + d}, v{vs_ + d}, s{sPT}, 60")
    vSH = vDd
    a.I(f"v_and_b32 v{vSH}, 0xff, v{vs_}")
    for d in range(1, 4):
        a.I(f"v_and_b32 v{vr + d}, 0xff, v{vs_ + d}")
        a.I(f"v_lshl_or_b32 v{vSH}, v{vr + d}, {8 * d}, v{vSH}")
    for d in range(4):
        a.I(f"v_sub_u32 v{vs_ + d}, 0, v{vs_ + d}")
    for l in range(3):
        for d in range(4):
            a.I(f"v_ldexp_f32 v{vg + 4 * l + d}, v{vg + 4 * l + d}, v{vs_ + d}")
    a.I(f"v_cndmask_b32 v{vr + 7}, 1, 0, vcc") if False else None
    a.I(f"v_mov_b32 v{vr + 7}, 1")
    a.I(f"v_cndmask_b32 v{vFlag}, v{vr + 7}, v{vZ}, vcc")
    for d in range(4):
        a.I(f"v_cvt_pk_bf16_f32 v{vr + d}, v{vg + d}, v{vg + 4 + d}")
    a.I(f"v_cvt_pk_bf16_f32 v{vr + 4}, v{vg + 8}, v{vg + 9}")
    a.I(f"v_cvt_pk_bf16_f32 v{vr + 5}, v{vg + 10}, v{vg + 11}")
    a.I("s_waitcnt lgkmcnt(0)")
    for q in range(4):
        pack4(a, [sWt + 4 * q + t for t in range(4)], sPT)
    for q in range(4):
        for d in range(4):
            src2 = "0" if q == 0 else f"v{vs_ + d}"
            a.I(f"v_dot2_f32_bf16 v{vs_ + d}, v{vRBF + q}, s{sWt + q * 4 + d}, {src2}")
    a.I(f"v_lshlrev_b32 v{vg}, 5, v{vIdx}")
    a.I(f"v_lshlrev_b32 v{vg + 1}, 3, v{vIdx}")
    a.I(f"s_mov_b32 s{sPT + 1}, 0x200000")
    a.I(f"v_mov_b32 v{vr + 6}, v{vSH}")
    a.I(f"v_mov_b32 v{vr + 7}, v{vFlag}")
    a.I(f"v_cvt_pk_bf16_f32 v{vg + 2}, v{vs_}, v{vs_ + 1}")
    a.I(f"v_cvt_pk_bf16_f32 v{vg + 3}, v{vs_ + 2}, v{vs_ + 3}")
    a.I(f"buffer_store_dwordx4 {v(vr, 4)}, v{vg}, {s(sGT, 4)}, 0 offen")
    a.I(f"buffer_store_dwordx4 {v(vr + 4, 4)}, v{vg}, {s(sGT, 4)}, 0 offen offset:16")
    a.I(f"buffer_store_dwordx2 {v(vg + 2, 2)}, v{vg + 1}, {s(sGT, 4)}, s{sPT + 1} offen")
    a.L("P1_TB1")
    a.vwait_all()
    vMx = tt + 12
    vSm = tt + 13
    a.I(f"v_mov_b32 v{vMx}, 0")
    a.I(f"v_mov_b32 v{vSm}, 0")
    a.I(f"s_mov_b32 s{sPT}, 0x7fff0000")
    for r in range(NR_):
        md_dots(a, vMR + 2 * r, vMR + 2 * r + 1, sW, vT + 4 * (r % 2))
        md_pack(a, vT + 4 * (r % 2), vMR + 2 * r, vMR + 2 * r + 1)
        a.I(f"buffer_store_dwordx2 {v(vMR + 2 * r, 2)}, v{vMRa + r}, {s(sMDT, 4)}, s{sMagic} offen")
        for h in range(2):
            a.I(f"v_lshlrev_b32 v{vT + 8}, 16, v{vMR + 2 * r + h}")
            a.I(f"v_and_b32 v{vT + 9}, s{sPT}, v{vMR + 2 * r + h}")
            a.I(f"v_and_b32 v{vT + 8}, s{sPT}, v{vT + 8}")
            a.I(f"v_max3_u32 v{vMx}, v{vMx}, v{vT + 8}, v{vT + 9}")
            a.I(f"v_add_f32 v{vSm}, v{vSm}, v{vT + 9}")
            a.I(f"v_add_f32 v{vSm}, v{vSm}, v{vT + 8}")
    scan_max(a, [vMx])
    scan(a, [vSm], "v_add_f32")
    srd(a, sGT, 12, 13, 0x10000, WS_MX)
    a.I(f"s_mul_i32 s{sPT}, s2, {NWV}")
    a.I(f"s_add_u32 s{sPT}, s{sPT}, s{sWid}")
    a.I(f"s_lshl_b32 s{sPT}, s{sPT}, 2")
    a.I(f"s_mov_b64 exec, 0x8000000000000000") if False else None
    a.I(f"v_readlane_b32 s{sPT + 1}, v{vMx}, 63")
    a.I(f"v_readlane_b32 s{sPT + 2}, v{vSm}, 63")
    a.I(f"s_add_u32 s{sPT + 3}, s{sPT}, 0x4000")
    a.I(f"v_mov_b32 v{vMx}, s{sPT + 1}")
    a.I(f"v_mov_b32 v{vSm}, s{sPT + 2}")
    a.I("s_mov_b64 exec, 1")
    a.I(f"buffer_store_dword v{vMx}, v{vZ}, {s(sGT, 4)}, s{sPT} offen")
    a.I(f"buffer_store_dword v{vSm}, v{vZ}, {s(sGT, 4)}, s{sPT + 3} offen")
    a.I("s_mov_b64 exec, -1")
    a.I("s_nop 4")
    srd(a, sREC, 12, 13, NC * CB)
    srd(a, sOFF, 12, 13, 128 * NC * 32, WS_OFFS)
    sMT = 13
    a.I(f"s_mov_b32 s{sMT}, {MT}")
    sCnt = 12
    a.I(f"s_mov_b32 s{sCnt}, {CNT}")
    a.I(f"s_mov_b32 s{sMagic}, {MAGIC}")
    a.I(f"s_mov_b32 s{sNegS2}, {-(S // 2)}")
    a.I("s_waitcnt vmcnt(0) lgkmcnt(0)")
    st_("tables")
    ncopy = (CB + TPB * 16 - 1) // (TPB * 16)
    a.vm = []
    for g in range(GPT):
        a.vm += [f"ii{g}", f"io{g}", f"an{g}"]
    a.vm += (["offst"] if c.early else []) + ["cp"] * ncopy
    a.L("P1_LOOP")
    a.I("s_barrier")
    st_("top")
    a.I(f"s_cmp_eq_u32 s{sChunk}, {NC - 1}")
    a.I(f"s_cselect_b32 s{sPre}, {c.LASTG}, {GPT}")
    G = c.useG
    a.I(f"v_mov_b32 v{vOne}, 1")
    for g in range(GPT):
        a.vwait(f"an{g}")
        for k in range(4):
            i = 4 * g + k
            a.I(f"v_mul_hi_u32_u24 v{vT + k}, s{sMagic}, v{pIO + i}")
            if c.TA:
                a.I(f"v_add_u32 v{vT + 4 + k}, {c.TA}, v{pII + i}")
                a.I(f"v_mul_hi_u32_u24 v{vT + 4 + k}, s{sMT}, v{vT + 4 + k}")
            else:
                a.I(f"v_mul_hi_u32_u24 v{vT + 4 + k}, s{sMT}, v{pII + i}")
        for k in range(4):
            i = 4 * g + k
            a.I(f"v_lshl_add_u32 v{vKA + i}, v{vT + k}, 4, s{sCnt}")
            a.I(f"v_lshlrev_b32 v{vX + 2 * i}, 3, v{pII + i}")
            a.I(f"v_lshlrev_b32 v{vT + k}, 3, v{vT + k}")
            a.I(f"v_lshlrev_b32 v{ME[i]}, 2, v{pIO + i}")
            a.I(f"v_lshl_add_u32 v{vKA + i}, v{vT + 4 + k}, 2, v{vKA + i}")
            a.I(f"v_mad_i32_i24 v{ME[i]}, v{vT + k}, s{sNegS2}, v{ME[i]}")
            an = pAN + 2 * g + k // 2
            if k % 2 == 0:
                a.I(f"v_lshl_or_b32 v{ME[i]}, v{an}, 16, v{ME[i]}")
            else:
                a.I(f"v_and_or_b32 v{ME[i]}, v{an}, s{sMaskHi}, v{ME[i]}")
            if c.useG:
                a.I(f"v_mov_b32 v{vX + 2 * i + 1}, v{ME[i]}")
        if G:
            for k in range(4):
                i = 4 * g + k
                a.I(f"v_cmp_eq_u32 vcc, 0, v{vT + 4 + k}")
                a.I(f"v_mov_b32 v{vT + 8 + k}, 8")
                a.I("s_mov_b64 exec, vcc")
                a.vmem(f"buffer_load_dwordx2 {v(vX + 2 * i, 2)}, v{vX + 2 * i}, {s(sM, 4)}, 0 offen", f"md{i}")
                a.I(f"v_mov_b32 v{vT + 8 + k}, 12")
                a.I("s_mov_b64 exec, -1")
        if g >= c.LASTG:
            a.I(f"s_cmp_le_u32 s{sPre}, {g}")
            a.I(f"s_cbranch_scc1 P1_HS{g}")
        for k in range(4):
            i = 4 * g + k
            a.I(f"ds_add_rtn_u32 v{pII + i}, v{vKA + i}, v{vOne}")
        if g >= c.LASTG:
            a.L(f"P1_HS{g}")
    st_("hist_issued")
    a.I("s_waitcnt lgkmcnt(0)")
    for i in range(4 * GPT):
        a.I(f"v_lshl_or_b32 v{vKA + i}, v{pII + i}, 17, v{vKA + i}")
    if c.early:
        a.I(f"s_add_u32 s{sTmp}, s{sChunk}, {G1}")
        issue_inputs(sTmp)
    a.I("s_waitcnt lgkmcnt(0)")
    a.I("s_barrier")
    st_("barB")
    n0 = vT
    pA, pB, iA, iB = vT + 4, vT + 5, vT + 6, vT + 7
    x = vT + 8
    sS = 48
    sTot = 64
    if TPB > 256:
        a.I(f"s_cmp_ge_u32 s{sWid}, 4")
        a.I("s_cbranch_scc1 P1_S1")
    a.I(f"ds_read_b128 {v(n0, 4)}, v{vCnt16}")
    a.I("s_waitcnt lgkmcnt(0)")
    a.I(f"v_lshl_or_b32 v{pA}, v{n0 + 1}, 16, v{n0}")
    a.I(f"v_lshl_or_b32 v{pB}, v{n0 + 3}, 16, v{n0 + 2}")
    a.I(f"v_mov_b32 v{iA}, v{pA}")
    a.I(f"v_mov_b32 v{iB}, v{pB}")
    scan_add(a, [iA, iB])
    a.I(f"v_readlane_b32 s{sS}, v{iA}, 63")
    a.I(f"v_readlane_b32 s{sS + 1}, v{iB}, 63")
    a.I(f"s_lshl_b32 s{sTmp + 1}, s{sWid}, 3")
    a.I(f"s_add_u32 s{sTmp + 1}, s{sTmp + 1}, s{sCnt}")
    a.I(f"v_mov_b32 v{x + 2}, s{sTmp + 1}")
    a.I(f"v_mov_b32 v{x}, s{sS}")
    a.I(f"v_mov_b32 v{x + 1}, s{sS + 1}")
    a.I(f"ds_write_b64 v{x + 2}, {v(x, 2)} offset:{WT}")
    a.I("s_waitcnt lgkmcnt(0)")
    a.L("P1_S1")
    a.I("s_barrier")
    if TPB > 256:
        a.I(f"s_cmp_ge_u32 s{sWid}, 4")
        a.I("s_cbranch_scc1 P1_S2")
    a.I(f"v_and_b32 v{x}, 7, v0")
    a.I(f"v_lshl_add_u32 v{x}, v{x}, 2, s{sCnt}")
    a.I(f"ds_read_b32 v{x}, v{x} offset:{WT}")
    a.I(f"v_sub_u32 v{iA}, v{iA}, v{pA}")
    a.I(f"v_sub_u32 v{iB}, v{iB}, v{pB}")
    a.I("s_waitcnt lgkmcnt(0)")
    for l in range(8):
        a.I(f"v_readlane_b32 s{sS + l}, v{x}, {l}")
    a.I(f"s_add_u32 s{sS + 8}, s{sS}, s{sS + 2}")
    a.I(f"s_add_u32 s{sS + 8}, s{sS + 8}, s{sS + 4}")
    a.I(f"s_add_u32 s{sS + 8}, s{sS + 8}, s{sS + 6}")
    a.I(f"s_add_u32 s{sS + 9}, s{sS + 1}, s{sS + 3}")
    a.I(f"s_add_u32 s{sS + 9}, s{sS + 9}, s{sS + 5}")
    a.I(f"s_add_u32 s{sS + 9}, s{sS + 9}, s{sS + 7}")
    a.I(f"s_mov_b32 s{sS + 10}, 0")
    a.I(f"s_mov_b32 s{sS + 11}, 0")
    for w in range(3):
        a.I(f"s_cmp_gt_u32 s{sWid}, {w}")
        a.I(f"s_cselect_b32 s{sS + 2 * w}, s{sS + 2 * w}, 0")
        a.I(f"s_cselect_b32 s{sS + 2 * w + 1}, s{sS + 2 * w + 1}, 0")
        a.I(f"s_add_u32 s{sS + 10}, s{sS + 10}, s{sS + 2 * w}")
        a.I(f"s_add_u32 s{sS + 11}, s{sS + 11}, s{sS + 2 * w + 1}")
    assert TPB == 256 or c.LASTG == GPT
    a.I(f"s_add_u32 s{sTot}, s{sS + 8}, s{sS + 9}")
    a.I(f"s_lshr_b32 s{sS + 12}, s{sTot}, 16")
    a.I(f"s_and_b32 s{sTot}, s{sTot}, 0xffff")
    a.I(f"s_add_u32 s{sTot}, s{sTot}, s{sS + 12}")
    a.I(f"s_lshl_b32 s{sTot}, s{sTot}, 3")
    a.I(f"s_and_b32 s{sS}, s{sS + 8}, 0xffff")
    a.I(f"s_lshr_b32 s{sS + 1}, s{sS + 8}, 16")
    a.I(f"s_add_u32 s{sS + 1}, s{sS + 1}, s{sS}")
    a.I(f"s_and_b32 s{sS + 2}, s{sS + 9}, 0xffff")
    a.I(f"s_add_u32 s{sS + 2}, s{sS + 2}, s{sS + 1}")
    a.I(f"s_lshl_b32 s{sS}, s{sS}, 16")
    a.I(f"s_add_u32 s{sS + 10}, s{sS + 10}, s{sS}")
    a.I(f"s_lshl_b32 s{sS + 2}, s{sS + 2}, 16")
    a.I(f"s_add_u32 s{sS + 11}, s{sS + 11}, s{sS + 1}")
    a.I(f"s_add_u32 s{sS + 11}, s{sS + 11}, s{sS + 2}")
    a.I(f"v_add_u32 v{iA}, s{sS + 10}, v{iA}")
    a.I(f"v_add_u32 v{iB}, s{sS + 11}, v{iB}")
    a.I(f"v_and_b32 v{x}, 0xffff, v{iA}")
    a.I(f"v_lshrrev_b32 v{x + 1}, 16, v{iA}")
    a.I(f"v_and_b32 v{x + 2}, 0xffff, v{iB}")
    a.I(f"v_lshrrev_b32 v{x + 3}, 16, v{iB}")
    for t in range(4):
        a.I(f"v_lshl_or_b32 v{n0 + t}, v{n0 + t}, 16, v{x + t}")
    a.I(f"ds_write_b128 v{vCnt16}, {v(x, 4)}")
    a.I("s_waitcnt lgkmcnt(0)")
    a.L("P1_S2")
    a.I(f"v_lshrrev_b32 v{vOffA}, 1, v0")
    a.I(f"s_mov_b32 s{sTmp}, {NC * 32}")
    a.I(f"v_mul_lo_u32 v{vOffA}, v{vOffA}, s{sTmp}")
    a.I(f"v_and_b32 v{vOffA + 1}, 1, v0")
    a.I(f"v_lshl_add_u32 v{vOffA}, v{vOffA + 1}, 4, v{vOffA}")
    a.I(f"s_lshl_b32 s{sTmp + 1}, s{sChunk}, 5")
    a.vmem(f"buffer_store_dwordx4 {v(n0, 4)}, v{vOffA}, {s(sOFF, 4)}, s{sTmp + 1} offen", "offst")
    a.I("s_barrier")
    st_("scan")
    def sc_read(g):
        for k in range(4):
            i = 4 * g + k
            tb = vT + 4 * (g % 2) + k
            a.I(f"v_and_b32 v{tb}, 0x1ffff, v{vKA + i}")
            a.I(f"ds_read_b32 v{tb}, v{tb}")

    def sc_write(g):
        for k in range(4):
            i = 4 * g + k
            tb = vT + 4 * (g % 2) + k
            a.I(f"v_lshrrev_b32 v{vKA + i}, 17, v{vKA + i}")
            a.I(f"v_add_lshl_u32 v{vKA + i}, v{vKA + i}, v{tb}, 3")
            a.I(f"ds_write_b64 v{vKA + i}, {v(vX + 2 * i, 2)}")
    assert c.LASTG == GPT
    sc_read(0)
    for g in range(GPT):
        if g + 1 < GPT:
            sc_read(g + 1)
            a.I(f"s_waitcnt lgkmcnt({4 if g == 0 else 8})")
        else:
            a.I(f"s_waitcnt lgkmcnt({4 if g else 0})")
        sc_write(g)
    a.L("P1_SCAT_DONE")
    if G:
        a.vwait(f"md{4 * GPT - 1}")
    a.I("s_waitcnt lgkmcnt(0)")
    st_("scat")
    a.I("s_barrier")
    st_("barE")
    if not c.early:
        a.I(f"s_add_u32 s{sTmp}, s{sChunk}, {G1}")
        issue_inputs(sTmp)
    st_("pref_issued")
    zero_counters("P1_Z1")
    a.I(f"s_mul_i32 s{sRecOff}, s{sChunk}, {CB}")
    bufs = list(range(pool0, pool1 - 3, 4))
    assert len(bufs) >= ncopy
    spol = (" " + c.st_rec) if c.st_rec else ""
    step = TPB * 16
    per = 65536 // step
    for q in range(1, (ncopy + per - 1) // per):
        a.I(f"v_add_u32 v{vT + q}, {q * per * step}, v{vT16}")
    for i in range(ncopy):
        q = i // per
        base, off = (vT16 if q == 0 else vT + q), (i % per) * step
        a.I(f"ds_read_b128 {v(bufs[i], 4)}, v{base} offset:{off}")
    for i in range(ncopy):
        n_out = ncopy - 1 - i
        a.I(f"s_waitcnt lgkmcnt({min(n_out, 15)})")
        guard = (i + 1) * step > C * 8 or c.LASTG < GPT
        if guard:
            a.I(f"s_sub_i32 s{sTmp}, s{sTot}, {i * step}")
            a.I(f"v_cmp_gt_i32 vcc, s{sTmp}, v{vT16}")
            a.I("s_mov_b64 exec, vcc")
        a.vmem(f"buffer_store_dwordx4 {v(bufs[i], 4)}, v{vT16}, {s(sREC, 4)}, s{sRecOff} offen{spol}", "cp")
        if guard:
            a.I("s_mov_b64 exec, -1")
        a.I(f"s_add_u32 s{sRecOff}, s{sRecOff}, {step}")
    st_("copy")
    a.I(f"s_add_u32 s{sChunk}, s{sChunk}, {G1}")
    a.I(f"s_cmp_lt_u32 s{sChunk}, {NC}")
    a.I("s_cbranch_scc1 P1_LOOP")
    st_.flush(sWid, NWV, 0x8000000, 92, vT)
    a.L("P1_END")
    a.I("s_endpgm")
    return a, lds


def merge(A, B):
    out = []
    la, lb = len(A), len(B)
    ia = ib = 0
    while ia < la or ib < lb:
        if ib >= lb or (ia < la and ia * lb <= ib * la):
            out.append(A[ia]); ia += 1
        else:
            out.append(B[ib]); ib += 1
    return out


def gen_p2(c):
    a = Asm()
    NT, NC, CB, EPL, CPW, nb = c.NT, c.NC, c.CB, c.EPL, c.CPW, c.nb
    SUB = c.sub
    BSH = c.bsh
    NMX = c.G1 * (c.TPB1 // 64)
    MT, TA = c.MT, c.TA
    NBT = [c.nb0 if t == 0 else nb for t in range(NT)]
    tlo = [0] + [next(i for i in range(max(0, -(-(t << 32) // MT) - TA - 2), E) if ((i + TA) * MT) >> 32 == t) for t in range(1, NT)]
    bin0 = [(tlo[t] * 8) >> BSH for t in range(NT)]
    binN = [(((tlo[t + 1] - 1) if t + 1 < NT else E - 1) * 8 >> BSH) - bin0[t] + 1 for t in range(NT)]
    NBIN = 512
    assert max(binN) <= NBIN
    ACC = 0
    GB = 4 * S * 4
    GA = GB + S * 8
    MISC = GA + S * 16
    CNT2 = MISC + 256
    MARKS = CNT2 + 2 * NBIN * 4
    MW = SUB * 256
    assert MW % 512 == 0
    SORT = MARKS + 16 * MW
    lds = SORT + nb * 1024 * 8
    assert lds <= 163840, lds
    va = Alloc("v", 1, 128)
    vMk4 = va.get(); vMk8 = va.get()
    vLaneR = va.get()
    vP = [va.get(EPL) for _ in range(NT)]
    vDl = [va.get(EPL) for _ in range(NT)]
    vA = va.get()
    vSrt = va.get()
    vSH = va.get(2, 2)
    vD8 = va.get(2, 2)
    vZ = va.get(2, 2)
    rX = [va.get(2, 2) for _ in range(nb)]
    sX_ = [[va.get(2, 2) for _ in range(nb)] for _ in range(2)]
    rK = [va.get() for _ in range(nb)]
    sM_ = [[va.get() for _ in range(nb)] for _ in range(2)]
    vT = va.get(24, 2)
    sREC, sMDT, sXs, sY = 16, 20, 24, 28
    sB, sWid, sMode, sMkBase, sKB, sScale, sT, sOff, sMaskHi = 4, 5, 6, 7, 8, 9, 14, 15, 3
    sPtr = 32
    sSave = 42
    sOUT, sMS = 44, 48
    sWU = 56
    sN = [72 + t for t in range(4)]
    sP0 = [76 + t for t in range(4)]
    sCar = [80 + t for t in range(4)]
    sRem = [84 + t for t in range(4)]
    sSR = [88, 89]
    NW2 = (S - 1024 + 63) // 64

    a.L("P2_ENTRY")
    a.I(f"s_cmp_ge_u32 s2, {NB}")
    a.I("s_cbranch_scc1 P2_END")
    a.I(f"s_bfe_u32 s{sWid}, s3, 0x60006")
    st_ = Stamper(a, c.stamps, va.get() if c.stamps else 0, 100)
    if c.stamps:
        a.I(f"v_mov_b32 v{st_.v}, 0")
    st_("start")
    a.I(f"s_load_dwordx2 s[{sPtr}:{sPtr + 1}], s[0:1], 104")
    a.I(f"s_load_dwordx2 s[{sPtr + 2}:{sPtr + 3}], s[0:1], 24")
    a.I(f"s_load_dwordx4 s[{sPtr + 4}:{sPtr + 7}], s[0:1], 80")
    a.I(f"s_load_dwordx2 s[52:53], s[0:1], 0")
    a.I(f"s_and_b32 s{sB}, s2, 7")
    a.I(f"s_lshl_b32 s{sB}, s{sB}, 5")
    a.I(f"s_lshr_b32 s{sT}, s2, 3")
    a.I(f"s_add_u32 s{sB}, s{sB}, s{sT}")
    a.I(f"s_mov_b32 s{sMaskHi}, 0xffff0000")
    vLane = vT + 23
    a.I(f"v_and_b32 v{vLane}, 63, v0")
    if c.cpf2:
        code_prefetch(a, "P2", "gp2_kernel", "TEXT_END", 54, sWid, vT + 4, rK[0], c.cpf2)
    vC = vT + 2
    a.I(f"v_mul_u32_u24 v{vC}, {EPL}, v{vLane}")
    a.I(f"s_mul_i32 s{sT}, s{sWid}, {CPW}")
    a.I(f"v_add_u32 v{vC}, s{sT}, v{vC}")
    a.I(f"s_lshr_b32 s{sT}, s{sB}, 1")
    a.I(f"s_mul_i32 s{sT}, s{sT}, {NC * 32}")
    a.I(f"s_and_b32 s{sOff}, s{sB}, 1")
    a.I(f"s_lshl_b32 s{sOff}, s{sOff}, 4")
    a.I(f"s_add_u32 s{sT}, s{sT}, s{sOff}")
    a.I(f"v_lshlrev_b32 v{vT + 3}, 5, v{vC}")
    a.I(f"s_mul_i32 s{sOff}, s{sB}, {S * 2}")
    vE0 = vT + 1
    a.I(f"v_lshlrev_b32 v{vE0}, 1, v0")
    a.I(f"v_lshlrev_b32 v{vA}, 4, v0")
    a.I("s_waitcnt lgkmcnt(0)")
    srd(a, sXs, sPtr, sPtr + 1, 128 * NC * 32, WS_OFFS)
    vEnt = vT + 4
    for e in range(EPL):
        a.vmem(f"buffer_load_dwordx4 {v(vEnt + 4 * e, 4)}, v{vT + 3}, {s(sXs, 4)}, s{sT} offen offset:{32 * e}", f"ent{e}")
    srd(a, sY, sPtr + 2, sPtr + 3, E * 2)
    vD = vSH
    a.vmem(f"buffer_load_ushort v{vD}, v{vE0}, {s(sY, 4)}, s{sOff} offen", "d0")
    a.vmem(f"buffer_load_ushort v{vD + 1}, v{vE0}, {s(sY, 4)}, s{sOff} offen offset:2048", "d1")
    assert NMX <= 4096
    srd(a, sXs, sPtr, sPtr + 1, NMX * 4, WS_MX)
    vMxv = sX_[1][0]
    assert sX_[1][1] == vMxv + 2
    a.vmem(f"buffer_load_dwordx4 {v(vMxv, 4)}, v{vA}, {s(sXs, 4)}, 0 offen", "mx0")
    vSmv = sX_[1][2]
    assert sX_[1][3] == vSmv + 2
    srd(a, sXs, sPtr, sPtr + 1, NMX * 4, WS_MX + 0x4000)
    a.vmem(f"buffer_load_dwordx4 {v(vSmv, 4)}, v{vA}, {s(sXs, 4)}, 0 offen", "mx")
    a.I(f"s_load_dwordx8 s[64:71], s[{sPtr + 4}:{sPtr + 5}], 0")
    srd(a, sMDT, sPtr, sPtr + 1, E * 8, WS_MDT)
    srd(a, sREC, sPtr, sPtr + 1, NC * CB)
    srd(a, sOUT, sPtr + 6, sPtr + 7, E * 8)
    srd(a, sMS, 52, 53, E * 8)
    for i in range(4):
        a.I(f"v_mov_b32 v{vT + 16 + i}, 0")
    a.I(f"v_mov_b32 v{vZ}, 0")
    a.I(f"v_mov_b32 v{vZ + 1}, 0")
    nz = (4 * S * 4) // 16
    a.I(f"ds_write_b128 v{vA}, {v(vT + 16, 4)}")
    a.I(f"v_cmp_gt_u32 vcc, {nz - 1024}, v0")
    a.I(f"v_lshlrev_b32 v{vT}, 2, v0")
    a.I(f"v_add_u32 v{vT}, {CNT2}, v{vT}")
    a.I(f"ds_write_b32 v{vT}, v{vZ}")
    a.I("s_mov_b64 exec, vcc")
    a.I(f"ds_write_b128 v{vA}, {v(vT + 16, 4)} offset:16384")
    a.I("s_mov_b64 exec, -1")
    a.I(f"v_lshlrev_b32 v{vLaneR}, 3, v{vLane}")
    a.I(f"v_lshlrev_b32 v{vSrt}, 3, v0")
    a.I(f"v_add_u32 v{vSrt}, {SORT}, v{vSrt}")
    a.I(f"s_mul_i32 s{sMkBase}, s{sWid}, {MW}")
    a.I(f"s_add_u32 s{sMkBase}, s{sMkBase}, {MARKS}")
    a.I(f"v_lshl_add_u32 v{vMk4}, v{vLane}, 2, s{sMkBase}")
    a.I(f"v_lshl_add_u32 v{vMk8}, v{vLane}, 3, s{sMkBase}")
    srd(a, sY, sPtr, sPtr + 1, GT_BYTES, WS_GT)
    a.vwait(f"ent{EPL - 1}")
    st_("ent")
    vn = vT + 12
    vsum = vT + 20
    assert EPL <= 2
    for e in range(EPL):
        if e:
            a.I(f"v_add_u32 v{vC}, 1, v{vC}")
        a.I(f"v_cmp_gt_u32 vcc, {NC}, v{vC}")
        a.I(f"v_cmp_gt_u32 s[{sSave}:{sSave + 1}], {CPW // EPL}, v{vLane}")
        a.I(f"s_mov_b32 s{sT}, {CB}")
        a.I(f"s_and_b64 vcc, vcc, s[{sSave}:{sSave + 1}]")
        a.I(f"v_mul_lo_u32 v{vsum}, v{vC}, s{sT}")
        for t in range(NT):
            d = vEnt + 4 * e + t
            n_ = vn + t * EPL + e
            a.I(f"v_lshrrev_b32 v{n_}, 16, v{d}")
            a.I(f"v_and_b32 v{d}, 0xffff, v{d}")
            a.I(f"v_cndmask_b32 v{n_}, 0, v{n_}, vcc")
            a.I(f"v_lshl_add_u32 v{vDl[t] + e}, v{d}, 3, v{vsum}")
    for t in range(NT):
        if EPL == 2:
            a.I(f"v_add_u32 v{vEnt + t}, v{vn + 2 * t}, v{vn + 2 * t + 1}")
        else:
            a.I(f"v_mov_b32 v{vEnt + t}, v{vn + t}")
        a.I(f"v_mov_b32 v{vP[t]}, v{vEnt + t}")
    scan_add(a, [vP[t] for t in range(NT)])
    for t in range(NT):
        a.I(f"v_readlane_b32 s{sN[t]}, v{vP[t]}, 63")
    for t in range(NT):
        a.I(f"v_sub_u32 v{vP[t]}, v{vP[t]}, v{vEnt + t}")
        if EPL == 2:
            a.I(f"v_add_u32 v{vP[t] + 1}, v{vP[t]}, v{vn + 2 * t}")
    for t in range(NT):
        for e in range(EPL):
            a.I(f"v_lshlrev_b32 v{vsum}, 3, v{vP[t] + e}")
            a.I(f"v_cmp_ne_u32 vcc, 0, v{vn + t * EPL + e}")
            a.I(f"v_sub_u32 v{vDl[t] + e}, v{vDl[t] + e}, v{vsum}")
            a.I(f"v_cndmask_b32 v{vP[t] + e}, -1, v{vP[t] + e}, vcc")
    sTotN = sKB
    a.I(f"s_mov_b32 s{sTotN}, 0")
    for t in range(NT):
        a.I(f"s_mov_b32 s{sP0[t]}, 0")
        a.I(f"s_mov_b32 s{sCar[t]}, 0")
        a.I(f"s_mov_b32 s{sRem[t]}, s{sN[t]}")
        a.I(f"s_add_u32 s{sTotN}, s{sTotN}, s{sN[t]}")
    tA = [vT + 4, vT + 8]
    tB = [vT + 12, vT + 16]

    def table_loads():
        for j in range(2):
            a.vwait(f"d{j}")
            a.I(f"v_lshlrev_b32 v{vT + 20 + j}, 5, v{vD + j}")
            a.I(f"v_lshlrev_b32 v{vD8 + j}, 3, v{vD + j}")
            a.vmem(f"buffer_load_dwordx4 {v(tA[j], 4)}, v{vT + 20 + j}, {s(sY, 4)}, 0 offen", f"ta{j}")
            a.vmem(f"buffer_load_dwordx4 {v(tB[j], 4)}, v{vT + 20 + j}, {s(sY, 4)}, 0 offen offset:16", f"ts{j}")

    ldpol = (" " + c.ld_rec) if c.ld_rec else ""

    def set_exec_s(sreg, off):
        if off:
            a.I(f"s_sub_i32 s{sT}, s{sreg}, {off}")
            a.I(f"s_max_i32 s{sT}, s{sT}, 0")
        else:
            a.I(f"s_max_i32 s{sT}, s{sreg}, 0")
        a.I(f"s_bfm_b64 exec, s{sT}, 0")
        a.I(f"s_cmp_ge_i32 s{sT}, 64")
        a.I("s_cselect_b64 exec, -1, exec")

    def stageA_p(t, n_tot, regs, tagp):
        P = []
        k0 = 0
        while k0 < n_tot:
            n = min(SUB, n_tot - k0)

            def p(k0=k0, n=n):
                for i in range((n * 256 + 511) // 512):
                    a.I(f"ds_write_b64 v{vMk8}, {v(vZ, 2)} offset:{i * 512}")
                a.I(f"s_add_u32 s{sOff}, s{sP0[t]}, {k0 * 64}")
                for e in range(EPL):
                    a.I(f"v_subrev_u32 v{vA}, s{sOff}, v{vP[t] + e}")
                    a.I(f"v_cmp_gt_u32 vcc, {n * 64}, v{vA}")
                    a.I(f"v_lshl_add_u32 v{vA}, v{vA}, 2, s{sMkBase}")
                    a.I("s_mov_b64 exec, vcc")
                    a.I(f"ds_write_b32 v{vA}, v{vDl[t] + e}")
                    a.I("s_mov_b64 exec, -1")
                for k in range(n):
                    a.I(f"ds_read_b32 v{regs[k0 + k]}, v{vMk4} offset:{k * 256}")
                a.I(f"s_lshl_b32 s{sOff}, s{sOff}, 3")
                a.I("s_waitcnt lgkmcnt(0)")
                scan_max(a, [regs[k0 + k] for k in range(n)])
                for k in range(k0, k0 + n):
                    r = regs[k]
                    a.I(f"v_max_u32 v{r}, s{sCar[t]}, v{r}")
                    a.I(f"v_readlane_b32 s{sCar[t]}, v{r}, 63")
                    a.I(f"v_add3_u32 v{r}, v{r}, v{vLaneR}, s{sOff}")
                    a.I(f"s_add_u32 s{sOff}, s{sOff}, 512")
                    set_exec_s(sRem[t], 64 * k)
                    a.vmem(f"buffer_load_dwordx2 {v(r, 2)}, v{r}, {s(sREC, 4)}, 0 offen{ldpol}", f"{tagp}{k}")
                    a.I("s_mov_b64 exec, -1")
            P.append(p)
            k0 += n
        return P

    def stageA(t, n_tot, regs, tagp):
        for p in stageA_p(t, n_tot, regs, tagp):
            p()

    def gather(r, m, sreg, off, tag):
        set_exec_s(sreg, off)
        a.I(f"v_mov_b32 v{m}, v{r + 1}")
        a.vmem(f"buffer_load_dwordx2 {v(r, 2)}, v{r}, {s(sMDT, 4)}, 0 offen", tag)
        a.I("s_mov_b64 exec, -1")

    lblc = [0]

    def comp(r, meta, sreg, off, tag):
        n = lblc[0]; lblc[0] += 1
        m01, m23 = r, r + 1
        t = vT
        a16, a8, a4 = t, t + 1, t + 2
        af, r0, r2 = t + 3, t + 4, t + 5
        Gq = t + 8
        Gb = t + 12
        c01, c2l, c2h = t + 6, t + 7, t + 14
        md = t + 16
        g = t + 20
        set_exec_s(sreg, off)
        a.I(f"s_cbranch_execz P2_SK{n}")
        a.I(f"v_and_b32 v{a4}, 0xffff, v{meta}")
        a.I(f"v_add_u32 v{a8}, v{a4}, v{a4}")
        a.I(f"v_add_u32 v{a16}, v{a8}, v{a8}")
        a.I(f"ds_read_b64 {v(Gb, 2)}, v{a8} offset:{GB}")
        a.I(f"ds_read_b128 {v(Gq, 4)}, v{a16} offset:{GA}")
        a.I(f"v_and_b32 v{af}, s{sMaskHi}, v{meta}")
        a.I(f"v_mul_f32 v{r0}, 0.15915494, v{af}")
        a.I(f"v_mul_f32 v{r2}, 0x40400000, v{af}")
        a.I(f"v_cos_f32 v{r0}, v{r0}")
        a.I(f"v_cvt_pk_bf16_f32 v{r2}, 0, v{r2}")
        a.I(f"v_mul_f32 v{r2}, 0.15915494, v{r2}")
        a.I(f"v_mul_f32 v{af}, v{r0}, v{r0}")
        a.I(f"v_cos_f32 v{r2}, v{r2}")
        a.I(f"v_fma_f32 v{af}, v{af}, 2.0, -1.0")
        a.I(f"v_cvt_pk_bf16_f32 v{c01}, v{r0}, v{af}")
        a.I(f"v_cvt_pk_bf16_f32 v{c2l}, v{r2}, 0")
        a.I(f"v_cvt_pk_bf16_f32 v{c2h}, 0, v{r2}")
        a.I("s_waitcnt lgkmcnt(1)")
        for d in range(4):
            a.I(f"v_dot2_f32_bf16 v{g + d}, v{Gb + d // 2}, v{c2l if d % 2 == 0 else c2h}, 0")
        a.I("s_waitcnt lgkmcnt(0)")
        for d in range(4):
            a.I(f"v_dot2_f32_bf16 v{g + d}, v{Gq + d}, v{c01}, v{g + d}")
        a.vwait(tag, trim=False)
        a.I(f"v_lshlrev_b32 v{md}, 16, v{m01}")
        a.I(f"v_and_b32 v{md + 1}, s{sMaskHi}, v{m01}")
        a.I(f"v_lshlrev_b32 v{md + 2}, 16, v{m23}")
        a.I(f"v_and_b32 v{md + 3}, s{sMaskHi}, v{m23}")
        a.I(f"s_cmp_lg_u32 s{sMode}, 0")
        for d in range(4):
            a.I(f"v_mul_f32 v{md + d}, v{md + d}, v{g + d}")
        a.I(f"s_cbranch_scc1 P2_FL{n}")
        for d in range(4):
            a.I(f"v_cvt_rpi_i32_f32 v{g + d}, v{md + d}")
            a.I(f"ds_add_u32 v{a4}, v{g + d} offset:{ACC + d * S * 4}")
        a.I(f"s_branch P2_SK{n}")
        a.L(f"P2_FL{n}")
        for d in range(4):
            a.I(f"ds_add_f32 v{a4}, v{md + d} offset:{ACC + d * S * 4}")
        a.L(f"P2_SK{n}")
        a.I("s_mov_b64 exec, -1")
        a.vwait(tag)

    def misc_and_scale():
        a.vwait("mx")
        a.I(f"v_max3_u32 v{vMxv}, v{vMxv}, v{vMxv + 1}, v{vMxv + 2}")
        a.I(f"v_max_u32 v{vMxv}, v{vMxv}, v{vMxv + 3}")
        a.I(f"v_add_f32 v{vSmv}, v{vSmv}, v{vSmv + 1}")
        a.I(f"v_add_f32 v{vSmv + 2}, v{vSmv + 2}, v{vSmv + 3}")
        a.I(f"v_add_f32 v{vSmv}, v{vSmv}, v{vSmv + 2}")
        a.vwait("ts1")
        a.I(f"v_cmp_gt_u32 vcc, {S - 1024}, v0")
        a.I(f"v_cndmask_b32 v{tB[1] + 3}, 0, v{tB[1] + 3}, vcc")
        a.I(f"v_or_b32 v{vMxv + 1}, v{tB[0] + 3}, v{tB[1] + 3}")
        a.I(f"v_lshlrev_b32 v{vMxv + 1}, 31, v{vMxv + 1}")
        a.I(f"v_or_b32 v{vMxv}, v{vMxv}, v{vMxv + 1}")
        scan_max(a, [vMxv])
        scan(a, [vSmv], "v_add_f32")
        a.I(f"v_readlane_b32 s{sT}, v{vMxv}, 63")
        a.I(f"v_readlane_b32 s{sScale}, v{vSmv}, 63")
        a.I(f"s_lshl_b32 s{sOff}, s{sWid}, 3")
        a.I(f"s_add_u32 s{sOff}, s{sOff}, {MISC}")
        a.I(f"v_mov_b32 v{vMxv}, s{sTotN}")
        a.I(f"v_mov_b32 v{vMxv + 1}, s{sT}")
        a.I(f"v_mov_b32 v{vMxv + 2}, s{sOff}")
        a.I(f"v_mov_b32 v{vSmv}, s{sScale}")
        a.I(f"v_lshrrev_b32 v{vMxv + 3}, 1, v{vMxv + 2}")
        a.I("s_mov_b64 exec, 1")
        a.I(f"ds_write_b64 v{vMxv + 2}, {v(vMxv, 2)}")
        a.I(f"ds_write_b32 v{vMxv + 3}, v{vSmv} offset:{MISC + 192 - MISC // 2}")
        a.I("s_mov_b64 exec, -1")
        a.I("s_waitcnt lgkmcnt(0)")
        st_("pre")
        a.I("s_barrier")
        st_("bar")
        a.I(f"v_and_b32 v{vMxv + 2}, 15, v0")
        a.I(f"v_lshlrev_b32 v{vMxv + 3}, 2, v{vMxv + 2}")
        a.I(f"v_lshlrev_b32 v{vMxv + 2}, 3, v{vMxv + 2}")
        a.I(f"v_add_u32 v{vMxv + 2}, {MISC}, v{vMxv + 2}")
        a.I(f"ds_read_b32 v{vSmv}, v{vMxv + 3} offset:{MISC + 192}")
        a.I(f"ds_read_b64 {v(vMxv, 2)}, v{vMxv + 2}")
        for h in range(2):
            for d in range(4):
                pk = "s_pack_ll_b32_b16" if d % 2 == 0 else "s_pack_hh_b32_b16"
                a.I(f"{pk} s{sWU + h * 4 + d}, s{64 + 4 * h + d // 2}, s{64 + 4 * h + 2 + d // 2}")
        a.I("s_waitcnt lgkmcnt(0)")
        for sh in (1, 2, 4, 8):
            a.I(f"v_add_u32_dpp v{vMxv}, v{vMxv}, v{vMxv} row_shr:{sh} row_mask:0xf bank_mask:0xf bound_ctrl:0")
            a.I(f"v_max_u32_dpp v{vMxv + 1}, v{vMxv + 1}, v{vMxv + 1} row_shr:{sh} row_mask:0xf bank_mask:0xf bound_ctrl:0")
            a.I(f"v_add_f32_dpp v{vSmv}, v{vSmv}, v{vSmv} row_shr:{sh} row_mask:0xf bank_mask:0xf bound_ctrl:0")
        a.I(f"v_mul_f32 v{vSmv}, {hex(f32bits(128.0 / (4 * E)))}, v{vSmv}")
        a.I(f"v_readlane_b32 s{sT}, v{vMxv}, 15")
        a.I(f"v_readlane_b32 s{sOff}, v{vMxv + 1}, 15")
        a.I(f"v_readlane_b32 s{sScale}, v{vSmv}, 15")
        a.I(f"s_or_b32 s{sT}, s{sT}, 1")
        a.I(f"s_flbit_i32_b32 s{sT}, s{sT}")
        a.I(f"s_sub_u32 s{sT}, s{sT}, 2")
        a.I(f"s_min_u32 s{sT}, s{sT}, 22")
        a.I(f"s_cmp_ge_u32 s{sOff}, 0x7f000000")
        a.I(f"s_cselect_b32 s{sMode}, 1, 0")
        a.I(f"s_cmp_gt_u32 s{sOff}, s{sScale}")
        a.I(f"s_cselect_b32 s{sMode}, 1, s{sMode}")
        a.I(f"s_cmp_lt_u32 s{sT}, 12")
        a.I(f"s_cselect_b32 s{sMode}, 1, s{sMode}")
        a.I(f"s_lshr_b32 s{sOff}, s{sOff}, 23")
        a.I(f"s_max_u32 s{sOff}, s{sOff}, 70")
        a.I(f"s_min_u32 s{sOff}, s{sOff}, 190")
        a.I(f"s_add_u32 s{sKB}, s{sT}, 126")
        a.I(f"s_sub_i32 s{sKB}, s{sKB}, s{sOff}")
        a.I(f"s_cmp_lg_u32 s{sMode}, 0")
        a.I(f"s_cselect_b32 s{sKB}, 0, s{sKB}")
        a.I(f"s_add_u32 s{sScale}, s{sKB}, 127")
        a.I(f"s_lshl_b32 s{sScale}, s{sScale}, 23")
        x0, x1 = vT + 20, vT + 21
        for j in range(2):
            for r in [tA[j] + q for q in range(4)] + [tB[j], tB[j] + 1]:
                a.I(f"v_lshlrev_b32 v{x0}, 16, v{r}")
                a.I(f"v_and_b32 v{x1}, s{sMaskHi}, v{r}")
                a.I(f"v_mul_f32 v{x0}, s{sScale}, v{x0}")
                a.I(f"v_mul_f32 v{x1}, s{sScale}, v{x1}")
                a.I(f"v_cvt_pk_bf16_f32 v{r}, v{x0}, v{x1}")
            a.I(f"v_mov_b32 v{vSH + j}, v{tB[j] + 2}")
        a.I(f"v_lshlrev_b32 v{vT}, 4, v0")
        a.I(f"v_lshlrev_b32 v{vT + 1}, 3, v0")
        a.I(f"ds_write_b128 v{vT}, {v(tA[0], 4)} offset:{GA}")
        a.I(f"ds_write_b64 v{vT + 1}, {v(tB[0], 2)} offset:{GB}")
        a.I(f"v_cmp_gt_u32 vcc, {S - 1024}, v0")
        a.I("s_mov_b64 exec, vcc")
        a.I(f"ds_write_b128 v{vT}, {v(tA[1], 4)} offset:{GA + 16384}")
        a.I(f"ds_write_b64 v{vT + 1}, {v(tB[1], 2)} offset:{GB + 8192}")
        a.I("s_mov_b64 exec, -1")

    vOne = vT + 22

    def S1(t):
        cb = CNT2 + (t % 2) * NBIN * 4 - bin0[t] * 4
        a.I(f"v_mov_b32 v{vOne}, 1")
        a.I(f"s_mov_b32 s{sSave}, {cb}")
        for k in range(nb):
            a.vwait(f"R{t}_{k}")
            set_exec_s(sRem[t], 64 * k)
            a.I(f"v_lshrrev_b32 v{vA}, {BSH}, v{rX[k]}")
            a.I(f"v_lshl_add_u32 v{vA}, v{vA}, 2, s{sSave}")
            a.I(f"ds_add_rtn_u32 v{rK[k]}, v{vA}, v{vOne}")
            a.I("s_mov_b64 exec, -1")
        a.I("s_waitcnt lgkmcnt(0)")

    def S2(t):
        n = lblc[0]; lblc[0] += 1
        a.I(f"s_cmp_lg_u32 s{sWid}, {c.scanw}")
        a.I(f"s_cbranch_scc1 P2_NS{n}")
        x = vT
        a.I(f"v_lshlrev_b32 v{x + 10}, 2, v{vLaneR}")
        a.I(f"v_add_u32 v{x + 10}, {CNT2 + (t % 2) * NBIN * 4}, v{x + 10}")
        a.I(f"ds_read_b128 {v(x, 4)}, v{x + 10}")
        a.I(f"ds_read_b128 {v(x + 4, 4)}, v{x + 10} offset:16")
        a.I("s_waitcnt lgkmcnt(0)")
        for q in range(1, 8):
            a.I(f"v_add_u32 v{x + q}, v{x + q}, v{x + q - 1}")
        a.I(f"v_mov_b32 v{x + 8}, v{x + 7}")
        scan_add(a, [x + 8])
        a.I(f"v_readlane_b32 s{sT}, v{x + 8}, 63")
        a.I(f"v_sub_u32 v{x + 8}, v{x + 8}, v{x + 7}")
        for q in range(7, 0, -1):
            a.I(f"v_add_u32 v{x + q}, v{x + q - 1}, v{x + 8}")
        a.I(f"v_mov_b32 v{x}, v{x + 8}")
        a.I(f"ds_write_b128 v{x + 10}, {v(x, 4)}")
        a.I(f"ds_write_b128 v{x + 10}, {v(x + 4, 4)} offset:16")
        a.I(f"v_mov_b32 v{x + 9}, s{sT}")
        a.I(f"v_mov_b32 v{x + 11}, {MISC + 128 + 4 * (t % 2)}")
        a.I(f"ds_write_b32 v{x + 11}, v{x + 9}")
        a.I("s_waitcnt lgkmcnt(0)")
        a.L(f"P2_NS{n}")

    def S3(t):
        cb = CNT2 + (t % 2) * NBIN * 4 - bin0[t] * 4
        a.I(f"s_mov_b32 s{sSave}, {cb}")
        a.I(f"s_mov_b32 s{sSave + 1}, {SORT}")
        a.I(f"v_mov_b32 v{vT + 8}, {MISC + 128 + 4 * (t % 2)}")
        a.I(f"ds_read_b32 v{vT + 8}, v{vT + 8}")
        for k in range(nb):
            a.I(f"v_lshrrev_b32 v{vT + 10 + k}, {BSH}, v{rX[k]}")
            a.I(f"v_lshl_add_u32 v{vT + 10 + k}, v{vT + 10 + k}, 2, s{sSave}")
            set_exec_s(sRem[t], 64 * k)
            a.I(f"ds_read_b32 v{vT + 10 + k}, v{vT + 10 + k}")
            a.I("s_mov_b64 exec, -1")
        a.I(f"s_waitcnt lgkmcnt({nb})")
        a.I(f"v_readfirstlane_b32 s{sSR[t % 2]}, v{vT + 8}")
        a.I(f"s_lshl_b32 s{sOff}, s{sWid}, 6")
        a.I(f"s_sub_i32 s{sSR[t % 2]}, s{sSR[t % 2]}, s{sOff}")
        for k in range(nb):
            a.I(f"s_waitcnt lgkmcnt({nb - 1})")
            a.I(f"v_add_u32 v{vT + 10 + k}, v{vT + 10 + k}, v{rK[k]}")
            a.I(f"v_lshl_add_u32 v{vT + 10 + k}, v{vT + 10 + k}, 3, s{sSave + 1}")
            set_exec_s(sRem[t], 64 * k)
            a.I(f"ds_write_b64 v{vT + 10 + k}, {v(rX[k], 2)}")
            a.I("s_mov_b64 exec, -1")

    def S4(t):
        p = t % 2
        a.I(f"v_lshlrev_b32 v{vA}, 2, v0")
        a.I(f"v_cmp_gt_u32 vcc, {NBIN}, v0")
        a.I(f"v_add_u32 v{vA}, {CNT2 + p * NBIN * 4}, v{vA}")
        a.I("s_mov_b64 exec, vcc")
        a.I(f"ds_write_b32 v{vA}, v{vZ}")
        a.I("s_mov_b64 exec, -1")
        for k in range(nb):
            a.I(f"ds_read_b64 {v(sX_[p][k], 2)}, v{vSrt} offset:{k * 8192}")
        a.I("s_waitcnt lgkmcnt(0)")

    def cnt_of(t, k):
        return (sRem[0], 64 * k) if t == 0 else (sSR[t % 2], 1024 * k)

    def G_(t, k):
        p = t % 2
        if t == 0:
            a.vwait(f"R0_{k}")
        gather(sX_[p][k], sM_[p][k], *cnt_of(t, k), f"B{t}_{k}")

    def C_(t, k):
        p = t % 2
        comp(sX_[p][k], sM_[p][k], *cnt_of(t, k), f"B{t}_{k}")

    def bar():
        a.I("s_waitcnt lgkmcnt(0)")
        a.I("s_barrier")

    assert nb * 8192 <= 65536
    assert vT + 10 + nb <= vT + 22
    L = c.lead
    if c.order == 0:
        stageA(0, NBT[0], sX_[0], "R0_")
        table_loads()
        if NT > 1:
            stageA(1, nb, rX, "R1_")
    else:
        table_loads()
        stageA(0, NBT[0], sX_[0], "R0_")
        if c.order == 2 and NT > 1:
            stageA(1, nb, rX, "R1_")
        misc_and_scale()
        if c.order == 1 and NT > 1:
            stageA(1, nb, rX, "R1_")
    compQ = []
    step = 0
    gstep = {}
    for t in range(NT):
        W = []
        if t == 0 and c.order == 0:
            W.append(misc_and_scale)
        if t + 1 < NT:
            def s3w(t=t):
                while compQ and compQ[0][0] < t:
                    C_(*compQ.pop(0))
                S3(t + 1)
            W += [lambda t=t: S1(t + 1), bar, lambda t=t: S2(t + 1), None, bar, s3w]
            if t + 2 < NT:
                W += [lambda: a.I("s_waitcnt lgkmcnt(0)")] + stageA_p(t + 2, nb, rX, f"R{t + 2}_")
        elif t == 0:
            W.append(bar)
        if t > 0:
            S4(t)
        ready = t > 0
        nbar = 0
        wi = 0
        for k in range(NBT[t]):
            G_(t, k)
            gstep[(t, k)] = step
            compQ.append((t, k))
            step += 1
            tgt = min(len(W), -(-len(W) * (k + 1) // min(c.wspread, NBT[t])))
            while wi < tgt:
                f = W[wi]; wi += 1
                if f is not None:
                    f()
                if f is bar:
                    ready = True
            n = 0
            while ready and compQ and n < c.cps and gstep[compQ[0]] + L <= step:
                C_(*compQ.pop(0)); n += 1
        while wi < len(W):
            f = W[wi]; wi += 1
            if f is not None:
                f()
        while compQ and compQ[0][0] < t:
            C_(*compQ.pop(0))
        if t + 1 < NT:
            bar()
        st_(f"T{t}")
    while compQ:
        C_(*compQ.pop(0))
    st_("comps")
    a.vwait_all()
    for t in range(NT):
        a.I(f"s_add_u32 s{sP0[t]}, s{sP0[t]}, {NBT[t] * 64}")
        a.L(f"P2_LOOP{t}")
        a.I(f"s_sub_i32 s{sRem[t]}, s{sN[t]}, s{sP0[t]}")
        a.I(f"s_cmp_le_i32 s{sRem[t]}, 0")
        a.I(f"s_cbranch_scc1 P2_LOOP_END{t}")
        lr = min(nb, 4)
        stageA(t, lr, rX, "L")
        for k in range(lr):
            a.vwait(f"L{k}")
            gather(rX[k], rK[k], sRem[t], 64 * k, f"LB{k}")
        for k in range(lr):
            comp(rX[k], rK[k], sRem[t], 64 * k, f"LB{k}")
        a.vwait_all()
        a.I(f"s_add_u32 s{sP0[t]}, s{sP0[t]}, {lr * 64}")
        a.I(f"s_branch P2_LOOP{t}")
        a.L(f"P2_LOOP_END{t}")
    st_("loop")
    a.I(f"v_lshlrev_b32 v{vT}, 3, v0")
    a.I(f"s_mul_i32 s{sT}, s{sB}, {S * 8}")
    a.I(f"s_add_u32 s{sT + 1}, s{sT}, 8192")
    vMrow = rX[0]
    vRW = rX[2]
    assert rX[1] == vMrow + 2 and rX[3] == vRW + 2
    a.I(f"buffer_load_dwordx2 {v(vMrow, 2)}, v{vT}, {s(sMS, 4)}, s{sT} offen")
    a.I(f"buffer_load_dwordx2 {v(vMrow + 2, 2)}, v{vT}, {s(sMS, 4)}, s{sT + 1} offen")
    a.I(f"s_mov_b32 s{sSave}, 0x200000")
    a.I(f"buffer_load_dwordx2 {v(vRW, 2)}, v{vD8}, {s(sY, 4)}, s{sSave} offen")
    a.I(f"buffer_load_dwordx2 {v(vRW + 2, 2)}, v{vD8 + 1}, {s(sY, 4)}, s{sSave} offen")
    a.I("s_waitcnt lgkmcnt(0)")
    a.I("s_barrier")
    st_("bar3")
    for j in range(2):
        if j == 1:
            a.I(f"s_cmp_ge_u32 s{sWid}, {NW2}")
            a.I("s_cbranch_scc1 P2_FIN")
            a.I(f"v_cmp_gt_u32 vcc, {S - 1024}, v0")
            a.I("s_mov_b64 exec, vcc")
        q = vT + 4; f = vT + 8; up = vT + 12; rw = vT + 16; pk = vT + 20
        a.I(f"v_lshlrev_b32 v{vT + 1}, 2, v0")
        for d in range(4):
            a.I(f"ds_read_b32 v{q + d}, v{vT + 1} offset:{ACC + d * S * 4 + j * 4096}")
        for d in range(4):
            a.I(f"v_bfe_i32 v{up + d}, v{vSH + j}, {8 * d}, 8")
        for d in range(4):
            a.I(f"v_subrev_u32 v{up + d}, s{sKB}, v{up + d}")
        a.I(f"s_cmp_lg_u32 s{sMode}, 0")
        a.I("s_waitcnt lgkmcnt(0)")
        a.I(f"s_cbranch_scc1 P2_EF{j}")
        for d in range(4):
            a.I(f"v_cvt_f32_i32 v{q + d}, v{q + d}")
        a.L(f"P2_EF{j}")
        for d in range(4):
            a.I(f"v_ldexp_f32 v{q + d}, v{q + d}, v{up + d}")
        a.I(f"v_cvt_pk_bf16_f32 v{pk}, v{q}, v{q + 1}")
        a.I(f"v_cvt_pk_bf16_f32 v{pk + 1}, v{q + 2}, v{q + 3}")
        for d in range(4):
            a.I(f"v_dot2_f32_bf16 v{up + d}, v{pk}, s{sWU + d}, 0")
        for d in range(4):
            a.I(f"v_dot2_f32_bf16 v{up + d}, v{pk + 1}, s{sWU + 4 + d}, v{up + d}")
        m01, m23 = vMrow + 2 * j, vMrow + 2 * j + 1
        if j == 0:
            a.I("s_waitcnt vmcnt(0)")
        a.I(f"v_lshlrev_b32 v{rw}, 16, v{vRW + 2 * j}")
        a.I(f"v_and_b32 v{rw + 1}, s{sMaskHi}, v{vRW + 2 * j}")
        a.I(f"v_lshlrev_b32 v{rw + 2}, 16, v{vRW + 2 * j + 1}")
        a.I(f"v_and_b32 v{rw + 3}, s{sMaskHi}, v{vRW + 2 * j + 1}")
        a.I(f"v_lshlrev_b32 v{f}, 16, v{m01}")
        a.I(f"v_and_b32 v{f + 1}, s{sMaskHi}, v{m01}")
        a.I(f"v_lshlrev_b32 v{f + 2}, 16, v{m23}")
        a.I(f"v_and_b32 v{f + 3}, s{sMaskHi}, v{m23}")
        for d in range(4):
            a.I(f"v_cvt_pk_bf16_f32 v{up + d}, 0, v{up + d}")
        for d in range(4):
            a.I(f"v_mul_f32 v{up + d}, v{up + d}, v{rw + d}")
        for d in range(4):
            a.I(f"v_cvt_pk_bf16_f32 v{up + d}, 0, v{up + d}")
        for d in range(4):
            a.I(f"v_add_f32 v{up + d}, v{up + d}, v{f + d}")
        a.I(f"v_cvt_pk_bf16_f32 v{pk}, v{up}, v{up + 1}")
        a.I(f"v_cvt_pk_bf16_f32 v{pk + 1}, v{up + 2}, v{up + 3}")
        a.I(f"buffer_store_dwordx2 {v(pk, 2)}, v{vT}, {s(sOUT, 4)}, s{sT + j} offen")
    a.L("P2_FIN")
    st_("end")
    st_.flush(sWid, 16, 0x9000000, sY, vT + 1)
    a.L("P2_END")
    a.I("s_endpgm")
    return a, lds


HEADER = """; gemnet triplet message passing: one kernel, launched twice (the workgroup size selects the phase)
"""


def kd(name, nv, ns):
    acc = (nv + 3) // 4 * 4
    return f""".amdhsa_kernel {name}
  .amdhsa_next_free_vgpr {nv}
  .amdhsa_next_free_sgpr {ns}
  .amdhsa_accum_offset {acc}
  .amdhsa_group_segment_fixed_size 0
  .amdhsa_kernarg_size 112
  .amdhsa_user_sgpr_count 2
  .amdhsa_user_sgpr_kernarg_segment_ptr 1
  .amdhsa_system_sgpr_workgroup_id_x 1
  .amdhsa_system_sgpr_workgroup_info 1
  .amdhsa_float_denorm_mode_32 3
  .amdhsa_float_denorm_mode_16_64 3
.end_amdhsa_kernel
"""


def build(c):
    p1, lds1 = gen_p1(c)
    p2, lds2 = gen_p2(c)
    n1 = p1.fix_hazards()
    n2 = p2.fix_hazards()
    v1, s1 = p1.max_regs()
    v2, s2 = p2.max_regs()
    out = HEADER
    out += f"; @launch kernel=gp_kernel grid=({c.G1},1,1) block=({c.TPB1},1,1) lds={lds1}\n"
    out += f"; @launch kernel=gp_kernel grid=({NB},1,1) block=(1024,1,1) lds={lds2}\n"
    out += '.amdgcn_target "amdgcn-amd-amdhsa--gfx950"\n.text\n'
    out += ".globl gp_kernel\n.p2align 8\n.type gp_kernel,@function\ngp_kernel:\n"
    out += "    s_and_b32 s4, s3, 0x3f\n"
    out += "    s_cmp_eq_u32 s4, 16\n    s_cbranch_scc1 P2_ENTRY\n"
    out += p1.text() + p2.text()
    out += "TEXT_END:\n"
    out += '.section .rodata,"a"\n.p2align 6\n'
    assert max(v1, v2) <= 128
    out += kd("gp_kernel", max(v1, v2), max(s1, s2))
    info = f"p1: vgpr {v1} sgpr {s1} lds {lds1} nops {n1}; p2: vgpr {v2} sgpr {s2} lds {lds2} nops {n2}; NC {c.NC} CB {c.CB} CPW {c.CPW} EPL {c.EPL}"
    return out, info


if __name__ == "__main__":
    kw = {}
    outp = "standalone__molecular_angular_gemnet__graph.s"
    for arg in sys.argv[1:]:
        k, val = arg.split("=", 1)
        if k == "out":
            outp = val
            continue
        try:
            val = int(val)
        except ValueError:
            pass
        kw[k] = val
    c = Cfg(**kw)
    txt, info = build(c)
    open(outp, "w").write(txt)
    print(info)
```

```python
import sys, os
sys.path.insert(0, os.path.dirname(__file__))
from asmlib import Asm, Alloc, v, s

E = 400000
T = 6400000
NB = 256
S = 1568
MAGIC = 2739138
KFIX = 16

WS_OFFS = 0x6000000
WS_MDT = 0x7000000
WS_MX = 0x7600000
WS_GT = 0x7800000
GT_BYTES = 0x280000


import struct


def f32bits(x):
    return struct.unpack('<I', struct.pack('<f', x))[0]


class Cfg:
    def __init__(self, **kw):
        self.NT = 4
        self.nb = 8
        self.GPT = 5
        self.TPB1 = 640
        self.G1 = 250
        self.ld_in = "nt"
        self.st_rec = ""
        self.ld_rec = ""
        self.nbG = 14
        self.nbR = 14
        self.sub = 4
        self.lead = 3
        self.g0 = 0
        self.lag = 3
        self.cpb = 1
        self.nset = 2
        self.wspread = 5
        self.cpf = 0
        self.cpf2 = 0
        self.order = 0
        self.e0 = 190
        self.nb0 = 6
        self.q1 = 2
        self.scanw = 15
        self.useG = 0
        self.bsh = 11
        self.cps = 1
        self.npf = 0
        self.tbar = 1
        self.aspread = 5
        self.early = 1
        self.kbit = 3
        self.lead2 = 4
        self.stamps = 0
        self.nogather = 0
        self.nocomp = 0
        self.__dict__.update(kw)
        self.TA = max(0, (E - self.NT * (E * self.e0 // 1000)) // max(1, self.NT - 1))
        self.MT = (self.NT << 32) // (E + self.TA)
        self.C = self.TPB1 * self.GPT * 4
        self.NC = (T + self.C - 1) // self.C
        rem = T - (self.NC - 1) * self.C
        assert rem % (self.TPB1 * 4) == 0
        self.LASTG = rem // (self.TPB1 * 4)
        assert not self.useG
        self.CB = self.C * 8
        assert self.C < 65536
        assert self.CB % 16 == 0
        assert self.NC * self.CB <= WS_OFFS
        self.CPW = (self.NC + 15) // 16
        self.EPL = (self.CPW + 63) // 64
        self.CPW = (self.CPW + self.EPL - 1) // self.EPL * self.EPL


def srd(a, d, base_lo, base_hi, nbytes, add=0):
    if add:
        a.I(f"s_add_u32 s{d}, s{base_lo}, {hex(add)}")
        a.I(f"s_addc_u32 s{d + 1}, s{base_hi}, 0")
    else:
        a.I(f"s_mov_b32 s{d}, s{base_lo}")
        a.I(f"s_mov_b32 s{d + 1}, s{base_hi}")
    a.I(f"s_mov_b32 s{d + 2}, {hex(nbytes)}")
    a.I(f"s_mov_b32 s{d + 3}, 0x20000")


class Stamper:
    def __init__(self, a, on, vreg, sreg):
        self.a, self.on, self.v, self.s, self.n = a, on, vreg, sreg, 0
        self.names = []

    def __call__(self, name):
        if not self.on:
            return
        a = self.a
        a.I(f"s_memtime s[{self.s}:{self.s + 1}]")
        a.I("s_waitcnt lgkmcnt(0)")
        a.I(f"v_writelane_b32 v{self.v}, s{self.s}, {self.n}")
        self.names.append(name)
        self.n += 1

    def flush(self, sWid, nwaves, wsoff, ssrd, vtmp):
        if not self.on:
            return
        a = self.a
        a.I("s_mov_b64 exec, -1")
        a.I(f"s_load_dwordx2 s[{self.s}:{self.s + 1}], s[0:1], 104")
        a.I("s_waitcnt lgkmcnt(0)")
        srd(a, ssrd, self.s, self.s + 1, 0x1000000, wsoff)
        a.I(f"s_mul_i32 s{self.s}, s2, {nwaves}")
        a.I(f"s_add_u32 s{self.s}, s{self.s}, s{sWid}")
        a.I(f"s_lshl_b32 s{self.s}, s{self.s}, 8")
        a.I(f"v_and_b32 v{vtmp}, 63, v0")
        a.I(f"v_lshlrev_b32 v{vtmp}, 2, v{vtmp}")
        a.I(f"buffer_store_dword v{self.v}, v{vtmp}, s[{ssrd}:{ssrd + 3}], s{self.s} offen")
        print("stamps:", " ".join(self.names))


def scan(a, regs, op):
    for sh in (1, 2, 4, 8):
        for r in regs:
            a.I(f"{op}_dpp v{r}, v{r}, v{r} row_shr:{sh} row_mask:0xf bank_mask:0xf bound_ctrl:0")
    for r in regs:
        a.I(f"{op}_dpp v{r}, v{r}, v{r} row_bcast:15 row_mask:0xa bank_mask:0xf")
    for r in regs:
        a.I(f"{op}_dpp v{r}, v{r}, v{r} row_bcast:31 row_mask:0xc bank_mask:0xf")


def scan_add(a, regs):
    scan(a, regs, "v_add_u32")


def scan_max(a, regs):
    scan(a, regs, "v_max_u32")


def md_dots(a, m01, m23, W, t):
    for d in range(4):
        a.I(f"v_dot2_f32_bf16 v{t + d}, v{m23}, s{W + 2 * d + 1}, 0")
    for d in range(4):
        a.I(f"v_dot2_f32_bf16 v{t + d}, v{m01}, s{W + 2 * d}, v{t + d}")


def md_pack(a, t, out01, out23):
    a.I(f"v_cvt_pk_bf16_f32 v{out01}, v{t}, v{t + 1}")
    a.I(f"v_cvt_pk_bf16_f32 v{out23}, v{t + 2}, v{t + 3}")


def pack4(a, dst4, tmp):
    for t in range(4):
        a.I(f"s_mov_b32 s{tmp + t}, s{dst4[t]}")
    for d in range(4):
        pk = "s_pack_ll_b32_b16" if d % 2 == 0 else "s_pack_hh_b32_b16"
        a.I(f"{pk} s{dst4[d]}, s{tmp + d // 2}, s{tmp + 2 + d // 2}")


def code_prefetch(a, name, first, last, sP, sWid, vOff, vDst, nmax):
    a.I(f"s_getpc_b64 s[{sP}:{sP + 1}]")
    a.L(f"{name}_PC")
    a.I(f"s_sub_u32 s{sP}, s{sP}, {name}_PC-{first}")
    a.I(f"s_subb_u32 s{sP + 1}, s{sP + 1}, 0")
    a.I(f"v_lshlrev_b32 v{vOff}, 7, v0")
    a.I(f"s_cmp_eq_u32 s{sWid}, 0")
    for j in range(nmax):
        a.I(f"v_min_u32 v{vOff + 1}, {last}-{first}-4, v{vOff}")
        a.I("s_cselect_b64 exec, -1, 0")
        a.vmem(f"global_load_dword v{vDst}, v{vOff + 1}, s[{sP}:{sP + 1}]", "cpf")
        a.I("s_mov_b64 exec, -1")
        a.I(f"v_add_u32 v{vOff}, 0x2000, v{vOff}")


def gen_p1(c):
    a = Asm()
    NT, GPT, TPB, C, NC, CB, G1 = c.NT, c.GPT, c.TPB1, c.C, c.NC, c.CB, c.G1
    NWV = TPB // 64
    MT = c.MT
    CNT = CB
    WT = 4096
    lds = CB + 4096 + 32
    va = Alloc("v", 1, 256)
    vT8 = va.get(); vT16 = va.get(); vOne = va.get()
    vCnt16 = va.get()
    vOffA = va.get()
    vZ = va.get(4, 2)
    pII = va.get(4 * GPT, 2)
    pIO = va.get(4 * GPT, 2)
    pAN = va.get(2 * GPT, 2)
    pool0 = va.get(0, 2)
    vX = va.get(8 * GPT, 2)
    if not c.useG:
        ME = [vX + 2 * i + 1 for i in range(4 * GPT)]
    elif c.early:
        vME = va.get(4 * GPT, 2)
        ME = [vME + i for i in range(4 * GPT)]
    else:
        ME = [pIO + i for i in range(4 * GPT)]
    vKA = va.get(4 * GPT, 2)
    vRK = va.get(4 * GPT, 2)
    pool1 = va.get(0, 2)
    vT = va.get(12, 2)
    tt = pool0
    assert pool1 - pool0 >= 44
    sChunk, sWid, sMaskHi, sMagic, sNegS2, sO4, sO2, sPre, sRecOff = 3, 4, 5, 6, 7, 8, 9, 10, 11
    sTmp = 14
    sIN, sOUT, sANG, sM = 16, 20, 24, 28
    sW = 32
    sREC, sOFF = 40, 44
    sWt = 48
    sCen = 96
    sPT = 8
    a.I(f"s_cmp_ge_u32 s2, {G1}")
    a.I("s_cbranch_scc1 P1_END")
    st_ = Stamper(a, c.stamps, va.get() if c.stamps else 0, 100)
    if c.stamps:
        a.I(f"v_mov_b32 v{st_.v}, 0")
    st_("start")
    a.I("s_load_dwordx4 s[48:51], s[0:1], 0")
    a.I("s_load_dwordx2 s[52:53], s[0:1], 16")
    a.I("s_load_dwordx4 s[56:59], s[0:1], 32")
    a.I("s_load_dwordx4 s[60:63], s[0:1], 56")
    a.I("s_load_dwordx2 s[64:65], s[0:1], 72")
    a.I("s_load_dwordx2 s[12:13], s[0:1], 104")
    a.I(f"v_lshlrev_b32 v{vT8}, 3, v0")
    a.I(f"v_lshlrev_b32 v{vT16}, 4, v0")
    a.I(f"v_mov_b32 v{vZ}, 0")
    a.I(f"v_mov_b32 v{vZ + 1}, 0")
    a.I(f"v_mov_b32 v{vZ + 2}, 0")
    a.I(f"v_mov_b32 v{vZ + 3}, 0")
    a.I(f"v_mov_b32 v{vOne}, 1")
    a.I(f"v_add_u32 v{vCnt16}, {CNT}, v{vT16}")
    a.I(f"v_lshrrev_b32 v{vT}, 6, v0")
    a.I(f"v_readfirstlane_b32 s{sWid}, v{vT}")
    a.I(f"s_mov_b32 s{sChunk}, s2")
    a.I(f"s_mov_b32 s{sMaskHi}, 0xffff0000")
    if c.cpf:
        code_prefetch(a, "P1", "gp1_kernel", "TEXT_END", 66, sWid, vT + 2, vRK + 4 * GPT - 1, c.cpf)

    def zero_counters(lbl):
        if TPB > 256:
            a.I(f"s_cmp_ge_u32 s{sWid}, 4")
            a.I(f"s_cbranch_scc1 {lbl}")
        a.I(f"ds_write_b128 v{vCnt16}, {v(vZ, 4)}")
        a.L(lbl)
    zero_counters("P1_Z0")
    a.I(f"v_lshrrev_b32 v{vOffA}, 1, v0")
    a.I(f"s_mov_b32 s{sTmp}, {NC * 32}")
    a.I(f"v_mul_lo_u32 v{vOffA}, v{vOffA}, s{sTmp}")
    a.I(f"v_and_b32 v{vT}, 1, v0")
    a.I(f"v_lshl_add_u32 v{vOffA}, v{vT}, 4, v{vOffA}")
    a.I("s_waitcnt lgkmcnt(0)")
    srd(a, sIN, 50, 51, T * 4)
    srd(a, sOUT, 52, 53, T * 4)
    srd(a, sANG, 56, 57, T * 2)
    pol = (" " + c.ld_in) if c.ld_in else ""

    def issue_inputs(schunk):
        a.I(f"s_mul_i32 s{sO4}, s{schunk}, {C * 4}")
        a.I(f"s_mul_i32 s{sO2}, s{schunk}, {C * 2}")
        for g in range(GPT):
            a.vmem(f"buffer_load_dwordx4 {v(pII + 4 * g, 4)}, v{vT16}, {s(sIN, 4)}, s{sO4} offen{pol}", f"ii{g}")
            a.vmem(f"buffer_load_dwordx4 {v(pIO + 4 * g, 4)}, v{vT16}, {s(sOUT, 4)}, s{sO4} offen{pol}", f"io{g}")
            a.vmem(f"buffer_load_dwordx2 {v(pAN + 2 * g, 2)}, v{vT8}, {s(sANG, 4)}, s{sO2} offen{pol}", f"an{g}")
            if g + 1 < GPT:
                a.I(f"s_add_u32 s{sO4}, s{sO4}, {TPB * 16}")
                a.I(f"s_add_u32 s{sO2}, s{sO2}, {TPB * 8}")

    issue_inputs(sChunk)
    srd(a, sM, 48, 49, E * 8)
    RPW = (E + G1 - 1) // G1
    NR_ = (RPW + TPB - 1) // TPB
    assert NR_ <= 4
    vMRa = tt
    vMR = tt + 4
    vS = tt + 12
    a.I(f"s_mul_i32 s{sMagic}, s2, {RPW * 8}")
    for r in range(NR_):
        lim = RPW - r * TPB
        a.I(f"v_add_u32 v{vMRa + r}, {r * TPB * 8}, v{vT8}")
        if lim < TPB:
            a.I(f"v_cmp_gt_u32 vcc, {lim}, v0")
            a.I(f"v_mov_b32 v{vT}, 0x7ffffff0")
            a.I(f"v_cndmask_b32 v{vMRa + r}, v{vT}, v{vMRa + r}, vcc")
        a.vmem(f"buffer_load_dwordx2 {v(vMR + 2 * r, 2)}, v{vMRa + r}, {s(sM, 4)}, s{sMagic} offen", f"mr{r}")
    a.I(f"s_mov_b32 s{sTmp}, s60")
    a.I(f"s_mov_b32 s{sTmp + 1}, s61")
    a.I("s_mov_b32 s10, s62")
    a.I("s_mov_b32 s11, s63")
    a.I("s_load_dwordx8 s[40:47], s[64:65], 0")
    a.I(f"s_load_dwordx4 s[{sCen}:{sCen + 3}], s[58:59], 0")
    a.I(f"s_load_dwordx16 s[{sWt}:{sWt + 15}], s[10:11], 0")
    a.I(f"s_load_dwordx16 s[{sWt + 16}:{sWt + 31}], s[10:11], 64")
    a.I(f"s_load_dwordx16 s[{sWt + 32}:{sWt + 47}], s[10:11], 128")
    a.I("s_waitcnt lgkmcnt(0)")
    r = 40
    for d in range(4):
        pk = "s_pack_ll_b32_b16" if d % 2 == 0 else "s_pack_hh_b32_b16"
        a.I(f"{pk} s{sW + 2 * d}, s{r + d // 2}, s{r + 2 + d // 2}")
        a.I(f"{pk} s{sW + 2 * d + 1}, s{r + 4 + d // 2}, s{r + 6 + d // 2}")
    sMDT, sGT = 40, 44
    srd(a, sMDT, 12, 13, E * 8, WS_MDT)
    srd(a, sGT, 12, 13, GT_BYTES, WS_GT)
    NTW = (1024 + G1 - 1) // G1
    EPW = NTW * 64
    while 1024 % NTW:
        NTW += 1
    EPW = NTW * 64
    assert NTW <= NWV
    a.I(f"s_cmp_lt_u32 s{sWid}, {NWV - NTW}")
    a.I("s_cbranch_scc1 P1_TB1")
    a.I(f"s_cmp_ge_u32 s2, {(1024 + NTW - 1) // NTW}")
    a.I("s_cbranch_scc1 P1_TB1")

    def ws_reg(j, l, d):
        base = sWt + 12 * j
        return [base + 2 * l, base + 2 * l + 1, base + 6 + 2 * l, base + 6 + 2 * l + 1][d]
    for j in range(4):
        for l in range(3):
            pack4(a, [ws_reg(j, l, t) for t in range(4)], sPT)
    vIdx = tt + 14
    vFlag = tt + 13
    vDd = tt + 15
    vr = tt + 16
    vRBF = tt + 24
    vg = tt + 28
    vs_ = tt + 40
    a.I(f"s_mul_i32 s{sPT}, s2, {EPW}")
    a.I(f"v_subrev_u32 v{vIdx}, {(NWV - NTW) * 64}, v0")
    a.I(f"v_add_u32 v{vIdx}, s{sPT}, v{vIdx}")
    a.I(f"v_lshlrev_b32 v{vDd}, 16, v{vIdx}")
    for r in range(8):
        if r % 2 == 0:
            a.I(f"s_lshl_b32 s{sPT + r % 4}, s{sCen + r // 2}, 16")
        else:
            a.I(f"s_and_b32 s{sPT + r % 4}, s{sCen + r // 2}, 0xffff0000")
        a.I(f"v_subrev_f32 v{vr + r}, s{sPT + r % 4}, v{vDd}")
    for r in range(8):
        a.I(f"v_cvt_pk_bf16_f32 v{vr + r}, 0, v{vr + r}")
    for r in range(8):
        a.I(f"v_mul_f32 v{vr + r}, v{vr + r}, v{vr + r}")
    for r in range(8):
        a.I(f"v_cvt_pk_bf16_f32 v{vr + r}, 0, v{vr + r}")
    for r in range(8):
        a.I(f"v_mul_f32 v{vr + r}, 0xc1200000, v{vr + r}")
    for r in range(8):
        a.I(f"v_cvt_pk_bf16_f32 v{vr + r}, 0, v{vr + r}")
    for r in range(8):
        a.I(f"v_mul_f32 v{vr + r}, 0x3fb8aa3b, v{vr + r}")
    for r in range(8):
        a.I(f"v_exp_f32 v{vr + r}, v{vr + r}")
    for q in range(4):
        a.I(f"v_cvt_pk_bf16_f32 v{vRBF + q}, v{vr + 2 * q}, v{vr + 2 * q + 1}")
    for q in range(4):
        for l in range(3):
            for d in range(4):
                src2 = "0" if q == 0 else f"v{vg + 4 * l + d}"
                a.I(f"v_dot2_f32_bf16 v{vg + 4 * l + d}, v{vRBF + q}, s{ws_reg(q, l, d)}, {src2}")
    a.I(f"s_load_dwordx16 s[{sWt}:{sWt + 15}], s[{sTmp}:{sTmp + 1}], 0")
    for d in range(4):
        a.I(f"v_add_f32 v{vs_ + d}, |v{vg + d}|, |v{vg + 4 + d}|")
    for d in range(4):
        a.I(f"v_add_f32 v{vs_ + d}, v{vs_ + d}, |v{vg + 8 + d}|")
    a.I(f"v_add_f32 v{vr}, v{vs_}, v{vs_ + 1}")
    a.I(f"v_add_f32 v{vr + 1}, v{vs_ + 2}, v{vs_ + 3}")
    a.I(f"v_add_f32 v{vr}, v{vr}, v{vr + 1}")
    a.I(f"v_cmp_gt_u32 vcc, 0x7f000000, v{vr}")
    for d in range(4):
        a.I(f"v_frexp_exp_i32_f32 v{vs_ + d}, v{vs_ + d}")
    a.I(f"s_movk_i32 s{sPT}, -60")
    for d in range(4):
        a.I(f"v_med3_i32 v{vs_ + d}, v{vs_ + d}, s{sPT}, 60")
    vSH = vDd
    a.I(f"v_and_b32 v{vSH}, 0xff, v{vs_}")
    for d in range(1, 4):
        a.I(f"v_and_b32 v{vr + d}, 0xff, v{vs_ + d}")
        a.I(f"v_lshl_or_b32 v{vSH}, v{vr + d}, {8 * d}, v{vSH}")
    for d in range(4):
        a.I(f"v_sub_u32 v{vs_ + d}, 0, v{vs_ + d}")
    for l in range(3):
        for d in range(4):
            a.I(f"v_ldexp_f32 v{vg + 4 * l + d}, v{vg + 4 * l + d}, v{vs_ + d}")
    a.I(f"v_cndmask_b32 v{vr + 7}, 1, 0, vcc") if False else None
    a.I(f"v_mov_b32 v{vr + 7}, 1")
    a.I(f"v_cndmask_b32 v{vFlag}, v{vr + 7}, v{vZ}, vcc")
    for d in range(4):
        a.I(f"v_cvt_pk_bf16_f32 v{vr + d}, v{vg + d}, v{vg + 4 + d}")
    a.I(f"v_cvt_pk_bf16_f32 v{vr + 4}, v{vg + 8}, v{vg + 9}")
    a.I(f"v_cvt_pk_bf16_f32 v{vr + 5}, v{vg + 10}, v{vg + 11}")
    a.I("s_waitcnt lgkmcnt(0)")
    for q in range(4):
        pack4(a, [sWt + 4 * q + t for t in range(4)], sPT)
    for q in range(4):
        for d in range(4):
            src2 = "0" if q == 0 else f"v{vs_ + d}"
            a.I(f"v_dot2_f32_bf16 v{vs_ + d}, v{vRBF + q}, s{sWt + q * 4 + d}, {src2}")
    a.I(f"v_lshlrev_b32 v{vg}, 5, v{vIdx}")
    a.I(f"v_lshlrev_b32 v{vg + 1}, 3, v{vIdx}")
    a.I(f"s_mov_b32 s{sPT + 1}, 0x200000")
    a.I(f"v_mov_b32 v{vr + 6}, v{vSH}")
    a.I(f"v_mov_b32 v{vr + 7}, v{vFlag}")
    a.I(f"v_cvt_pk_bf16_f32 v{vg + 2}, v{vs_}, v{vs_ + 1}")
    a.I(f"v_cvt_pk_bf16_f32 v{vg + 3}, v{vs_ + 2}, v{vs_ + 3}")
    a.I(f"buffer_store_dwordx4 {v(vr, 4)}, v{vg}, {s(sGT, 4)}, 0 offen")
    a.I(f"buffer_store_dwordx4 {v(vr + 4, 4)}, v{vg}, {s(sGT, 4)}, 0 offen offset:16")
    a.I(f"buffer_store_dwordx2 {v(vg + 2, 2)}, v{vg + 1}, {s(sGT, 4)}, s{sPT + 1} offen")
    a.L("P1_TB1")
    a.vwait_all()
    vMx = tt + 12
    vSm = tt + 13
    a.I(f"v_mov_b32 v{vMx}, 0")
    a.I(f"v_mov_b32 v{vSm}, 0")
    a.I(f"s_mov_b32 s{sPT}, 0x7fff0000")
    for r in range(NR_):
        md_dots(a, vMR + 2 * r, vMR + 2 * r + 1, sW, vT + 4 * (r % 2))
        md_pack(a, vT + 4 * (r % 2), vMR + 2 * r, vMR + 2 * r + 1)
        a.I(f"buffer_store_dwordx2 {v(vMR + 2 * r, 2)}, v{vMRa + r}, {s(sMDT, 4)}, s{sMagic} offen")
        for h in range(2):
            a.I(f"v_lshlrev_b32 v{vT + 8}, 16, v{vMR + 2 * r + h}")
            a.I(f"v_and_b32 v{vT + 9}, s{sPT}, v{vMR + 2 * r + h}")
            a.I(f"v_and_b32 v{vT + 8}, s{sPT}, v{vT + 8}")
            a.I(f"v_max3_u32 v{vMx}, v{vMx}, v{vT + 8}, v{vT + 9}")
            a.I(f"v_add_f32 v{vSm}, v{vSm}, v{vT + 9}")
            a.I(f"v_add_f32 v{vSm}, v{vSm}, v{vT + 8}")
    scan_max(a, [vMx])
    scan(a, [vSm], "v_add_f32")
    srd(a, sGT, 12, 13, 0x10000, WS_MX)
    a.I(f"s_mul_i32 s{sPT}, s2, {NWV}")
    a.I(f"s_add_u32 s{sPT}, s{sPT}, s{sWid}")
    a.I(f"s_lshl_b32 s{sPT}, s{sPT}, 2")
    a.I(f"s_mov_b64 exec, 0x8000000000000000") if False else None
    a.I(f"v_readlane_b32 s{sPT + 1}, v{vMx}, 63")
    a.I(f"v_readlane_b32 s{sPT + 2}, v{vSm}, 63")
    a.I(f"s_add_u32 s{sPT + 3}, s{sPT}, 0x4000")
    a.I(f"v_mov_b32 v{vMx}, s{sPT + 1}")
    a.I(f"v_mov_b32 v{vSm}, s{sPT + 2}")
    a.I("s_mov_b64 exec, 1")
    a.I(f"buffer_store_dword v{vMx}, v{vZ}, {s(sGT, 4)}, s{sPT} offen")
    a.I(f"buffer_store_dword v{vSm}, v{vZ}, {s(sGT, 4)}, s{sPT + 3} offen")
    a.I("s_mov_b64 exec, -1")
    a.I("s_nop 4")
    srd(a, sREC, 12, 13, NC * CB)
    srd(a, sOFF, 12, 13, 128 * NC * 32, WS_OFFS)
    sMT = 13
    a.I(f"s_mov_b32 s{sMT}, {MT}")
    sCnt = 12
    a.I(f"s_mov_b32 s{sCnt}, {CNT}")
    a.I(f"s_mov_b32 s{sMagic}, {MAGIC}")
    a.I(f"s_mov_b32 s{sNegS2}, {-(S // 2)}")
    a.I("s_waitcnt vmcnt(0) lgkmcnt(0)")
    st_("tables")
    ncopy = (CB + TPB * 16 - 1) // (TPB * 16)
    a.vm = []
    for g in range(GPT):
        a.vm += [f"ii{g}", f"io{g}", f"an{g}"]
    a.vm += (["offst"] if c.early else []) + ["cp"] * ncopy
    a.L("P1_LOOP")
    a.I("s_barrier")
    st_("top")
    a.I(f"s_cmp_eq_u32 s{sChunk}, {NC - 1}")
    a.I(f"s_cselect_b32 s{sPre}, {c.LASTG}, {GPT}")
    G = c.useG
    for g in range(GPT):
        a.vwait(f"an{g}")
        for k in range(4):
            i = 4 * g + k
            a.I(f"v_mul_hi_u32_u24 v{vT + k}, s{sMagic}, v{pIO + i}")
            if c.TA:
                a.I(f"v_add_u32 v{vT + 4 + k}, {c.TA}, v{pII + i}")
                a.I(f"v_mul_hi_u32_u24 v{vT + 4 + k}, s{sMT}, v{vT + 4 + k}")
            else:
                a.I(f"v_mul_hi_u32_u24 v{vT + 4 + k}, s{sMT}, v{pII + i}")
        for k in range(4):
            i = 4 * g + k
            a.I(f"v_lshl_add_u32 v{vKA + i}, v{vT + k}, 4, s{sCnt}")
            a.I(f"v_lshlrev_b32 v{vX + 2 * i}, 3, v{pII + i}")
            a.I(f"v_lshlrev_b32 v{vT + k}, 3, v{vT + k}")
            a.I(f"v_lshlrev_b32 v{ME[i]}, 2, v{pIO + i}")
            a.I(f"v_lshl_add_u32 v{vKA + i}, v{vT + 4 + k}, 2, v{vKA + i}")
            a.I(f"v_mad_i32_i24 v{ME[i]}, v{vT + k}, s{sNegS2}, v{ME[i]}")
            an = pAN + 2 * g + k // 2
            if k % 2 == 0:
                a.I(f"v_lshl_or_b32 v{ME[i]}, v{an}, 16, v{ME[i]}")
            else:
                a.I(f"v_and_or_b32 v{ME[i]}, v{an}, s{sMaskHi}, v{ME[i]}")
            if c.useG:
                a.I(f"v_mov_b32 v{vX + 2 * i + 1}, v{ME[i]}")
        if G:
            for k in range(4):
                i = 4 * g + k
                a.I(f"v_cmp_eq_u32 vcc, 0, v{vT + 4 + k}")
                a.I(f"v_mov_b32 v{vT + 8 + k}, 8")
                a.I("s_mov_b64 exec, vcc")
                a.vmem(f"buffer_load_dwordx2 {v(vX + 2 * i, 2)}, v{vX + 2 * i}, {s(sM, 4)}, 0 offen", f"md{i}")
                a.I(f"v_mov_b32 v{vT + 8 + k}, 12")
                a.I("s_mov_b64 exec, -1")
        if g >= c.LASTG:
            a.I(f"s_cmp_le_u32 s{sPre}, {g}")
            a.I(f"s_cbranch_scc1 P1_HS{g}")
        for k in range(4):
            i = 4 * g + k
            a.I(f"ds_add_rtn_u32 v{vRK + i}, v{vKA + i}, v{(vT + 8 + k) if G else vOne}")
        if g >= c.LASTG:
            a.L(f"P1_HS{g}")
    st_("hist_issued")
    if c.early:
        a.I(f"s_add_u32 s{sTmp}, s{sChunk}, {G1}")
        issue_inputs(sTmp)
    a.I("s_waitcnt lgkmcnt(0)")
    a.I("s_barrier")
    st_("barB")
    n0 = vT
    pA, pB, iA, iB = vT + 4, vT + 5, vT + 6, vT + 7
    x = vT + 8
    sS = 48
    sTot = 64
    if TPB > 256:
        a.I(f"s_cmp_ge_u32 s{sWid}, 4")
        a.I("s_cbranch_scc1 P1_S1")
    a.I(f"ds_read_b128 {v(n0, 4)}, v{vCnt16}")
    a.I("s_waitcnt lgkmcnt(0)")
    a.I(f"v_lshl_or_b32 v{pA}, v{n0 + 1}, 16, v{n0}")
    a.I(f"v_lshl_or_b32 v{pB}, v{n0 + 3}, 16, v{n0 + 2}")
    a.I(f"v_mov_b32 v{iA}, v{pA}")
    a.I(f"v_mov_b32 v{iB}, v{pB}")
    scan_add(a, [iA, iB])
    a.I(f"v_readlane_b32 s{sS}, v{iA}, 63")
    a.I(f"v_readlane_b32 s{sS + 1}, v{iB}, 63")
    a.I(f"s_lshl_b32 s{sTmp + 1}, s{sWid}, 3")
    a.I(f"s_add_u32 s{sTmp + 1}, s{sTmp + 1}, s{sCnt}")
    a.I(f"v_mov_b32 v{x + 2}, s{sTmp + 1}")
    a.I(f"v_mov_b32 v{x}, s{sS}")
    a.I(f"v_mov_b32 v{x + 1}, s{sS + 1}")
    a.I(f"ds_write_b64 v{x + 2}, {v(x, 2)} offset:{WT}")
    a.I("s_waitcnt lgkmcnt(0)")
    a.L("P1_S1")
    a.I("s_barrier")
    if TPB > 256:
        a.I(f"s_cmp_ge_u32 s{sWid}, 4")
        a.I("s_cbranch_scc1 P1_S2")
    a.I(f"v_and_b32 v{x}, 7, v0")
    a.I(f"v_lshl_add_u32 v{x}, v{x}, 2, s{sCnt}")
    a.I(f"ds_read_b32 v{x}, v{x} offset:{WT}")
    a.I(f"v_sub_u32 v{iA}, v{iA}, v{pA}")
    a.I(f"v_sub_u32 v{iB}, v{iB}, v{pB}")
    a.I("s_waitcnt lgkmcnt(0)")
    for l in range(8):
        a.I(f"v_readlane_b32 s{sS + l}, v{x}, {l}")
    a.I(f"s_add_u32 s{sS + 8}, s{sS}, s{sS + 2}")
    a.I(f"s_add_u32 s{sS + 8}, s{sS + 8}, s{sS + 4}")
    a.I(f"s_add_u32 s{sS + 8}, s{sS + 8}, s{sS + 6}")
    a.I(f"s_add_u32 s{sS + 9}, s{sS + 1}, s{sS + 3}")
    a.I(f"s_add_u32 s{sS + 9}, s{sS + 9}, s{sS + 5}")
    a.I(f"s_add_u32 s{sS + 9}, s{sS + 9}, s{sS + 7}")
    a.I(f"s_mov_b32 s{sS + 10}, 0")
    a.I(f"s_mov_b32 s{sS + 11}, 0")
    for w in range(3):
        a.I(f"s_cmp_gt_u32 s{sWid}, {w}")
        a.I(f"s_cselect_b32 s{sS + 2 * w}, s{sS + 2 * w}, 0")
        a.I(f"s_cselect_b32 s{sS + 2 * w + 1}, s{sS + 2 * w + 1}, 0")
        a.I(f"s_add_u32 s{sS + 10}, s{sS + 10}, s{sS + 2 * w}")
        a.I(f"s_add_u32 s{sS + 11}, s{sS + 11}, s{sS + 2 * w + 1}")
    assert TPB == 256 or c.LASTG == GPT
    a.I(f"s_add_u32 s{sTot}, s{sS + 8}, s{sS + 9}")
    a.I(f"s_lshr_b32 s{sS + 12}, s{sTot}, 16")
    a.I(f"s_and_b32 s{sTot}, s{sTot}, 0xffff")
    a.I(f"s_add_u32 s{sTot}, s{sTot}, s{sS + 12}")
    a.I(f"s_lshl_b32 s{sTot}, s{sTot}, 3")
    a.I(f"s_and_b32 s{sS}, s{sS + 8}, 0xffff")
    a.I(f"s_lshr_b32 s{sS + 1}, s{sS + 8}, 16")
    a.I(f"s_add_u32 s{sS + 1}, s{sS + 1}, s{sS}")
    a.I(f"s_and_b32 s{sS + 2}, s{sS + 9}, 0xffff")
    a.I(f"s_add_u32 s{sS + 2}, s{sS + 2}, s{sS + 1}")
    a.I(f"s_lshl_b32 s{sS}, s{sS}, 16")
    a.I(f"s_add_u32 s{sS + 10}, s{sS + 10}, s{sS}")
    a.I(f"s_lshl_b32 s{sS + 2}, s{sS + 2}, 16")
    a.I(f"s_add_u32 s{sS + 11}, s{sS + 11}, s{sS + 1}")
    a.I(f"s_add_u32 s{sS + 11}, s{sS + 11}, s{sS + 2}")
    a.I(f"v_add_u32 v{iA}, s{sS + 10}, v{iA}")
    a.I(f"v_add_u32 v{iB}, s{sS + 11}, v{iB}")
    a.I(f"v_and_b32 v{x}, 0xffff, v{iA}")
    a.I(f"v_lshrrev_b32 v{x + 1}, 16, v{iA}")
    a.I(f"v_and_b32 v{x + 2}, 0xffff, v{iB}")
    a.I(f"v_lshrrev_b32 v{x + 3}, 16, v{iB}")
    for t in range(4):
        a.I(f"v_lshl_or_b32 v{n0 + t}, v{n0 + t}, 16, v{x + t}")
    a.I(f"ds_write_b128 v{vCnt16}, {v(x, 4)}")
    a.I("s_waitcnt lgkmcnt(0)")
    a.L("P1_S2")
    a.I(f"s_lshl_b32 s{sTmp + 1}, s{sChunk}, 5")
    a.vmem(f"buffer_store_dwordx4 {v(n0, 4)}, v{vOffA}, {s(sOFF, 4)}, s{sTmp + 1} offen", "offst")
    a.I("s_barrier")
    st_("scan")
    for g in range(GPT):
        if g >= c.LASTG:
            a.I(f"s_cmp_le_u32 s{sPre}, {g}")
            a.I("s_cbranch_scc1 P1_SCAT_DONE")
        for k in range(4):
            i = 4 * g + k
            if G:
                a.I(f"v_and_b32 v{vT + 8 + k}, 12, v{vKA + i}")
            a.I(f"ds_read_b32 v{vKA + i}, v{vKA + i}")
        if G:
            for k in range(4):
                i = 4 * g + k
                xx = vX + 2 * i
                a.I(f"v_cmp_eq_u32 s[{sS + 2 * k}:{sS + 2 * k + 1}], 0, v{vT + 8 + k}")
                a.vwait(f"md{i}", trim=(g < c.LASTG))
                md_dots(a, xx, xx + 1, sW, vT + 4 * (k % 2))
                a.I(f"s_mov_b64 exec, s[{sS + 2 * k}:{sS + 2 * k + 1}]")
                md_pack(a, vT + 4 * (k % 2), xx, xx + 1)
                a.I("s_mov_b64 exec, -1")
        a.I("s_waitcnt lgkmcnt(0)")
        for k in range(4):
            i = 4 * g + k
            a.I(f"v_add_lshl_u32 v{vKA + i}, v{vRK + i}, v{vKA + i}, 3")
            if G:
                a.I(f"ds_write2_b32 v{vKA + i}, v{vX + 2 * i}, v{vX + 2 * i + 1} offset0:0 offset1:1")
            else:
                a.I(f"ds_write_b64 v{vKA + i}, {v(vX + 2 * i, 2)}")
            if G:
                a.I(f"s_mov_b64 exec, s[{sS + 2 * k}:{sS + 2 * k + 1}]")
                a.I(f"ds_write_b32 v{vKA + i}, v{ME[i]} offset:8")
                a.I("s_mov_b64 exec, -1")
    a.L("P1_SCAT_DONE")
    if G:
        a.vwait(f"md{4 * GPT - 1}")
    a.I("s_waitcnt lgkmcnt(0)")
    st_("scat")
    a.I("s_barrier")
    st_("barE")
    if not c.early:
        a.I(f"s_add_u32 s{sTmp}, s{sChunk}, {G1}")
        issue_inputs(sTmp)
    st_("pref_issued")
    zero_counters("P1_Z1")
    a.I(f"s_mul_i32 s{sRecOff}, s{sChunk}, {CB}")
    bufs = list(range(pool0, pool1 - 3, 4))
    assert len(bufs) >= ncopy
    spol = (" " + c.st_rec) if c.st_rec else ""
    step = TPB * 16
    per = 65536 // step
    for q in range(1, (ncopy + per - 1) // per):
        a.I(f"v_add_u32 v{vT + q}, {q * per * step}, v{vT16}")
    for i in range(ncopy):
        q = i // per
        base, off = (vT16 if q == 0 else vT + q), (i % per) * step
        a.I(f"ds_read_b128 {v(bufs[i], 4)}, v{base} offset:{off}")
    for i in range(ncopy):
        n_out = ncopy - 1 - i
        a.I(f"s_waitcnt lgkmcnt({min(n_out, 15)})")
        guard = (i + 1) * step > C * 8 or c.LASTG < GPT
        if guard:
            a.I(f"s_sub_i32 s{sTmp}, s{sTot}, {i * step}")
            a.I(f"v_cmp_gt_i32 vcc, s{sTmp}, v{vT16}")
            a.I("s_mov_b64 exec, vcc")
        a.vmem(f"buffer_store_dwordx4 {v(bufs[i], 4)}, v{vT16}, {s(sREC, 4)}, s{sRecOff} offen{spol}", "cp")
        if guard:
            a.I("s_mov_b64 exec, -1")
        a.I(f"s_add_u32 s{sRecOff}, s{sRecOff}, {step}")
    st_("copy")
    a.I(f"s_add_u32 s{sChunk}, s{sChunk}, {G1}")
    a.I(f"s_cmp_lt_u32 s{sChunk}, {NC}")
    a.I("s_cbranch_scc1 P1_LOOP")
    st_.flush(sWid, NWV, 0x8000000, 92, vT)
    a.L("P1_END")
    a.I("s_endpgm")
    return a, lds


def merge(A, B):
    out = []
    la, lb = len(A), len(B)
    ia = ib = 0
    while ia < la or ib < lb:
        if ib >= lb or (ia < la and ia * lb <= ib * la):
            out.append(A[ia]); ia += 1
        else:
            out.append(B[ib]); ib += 1
    return out


def gen_p2(c):
    a = Asm()
    NT, NC, CB, EPL, CPW, nb = c.NT, c.NC, c.CB, c.EPL, c.CPW, c.nb
    SUB = c.sub
    BSH = c.bsh
    NMX = c.G1 * (c.TPB1 // 64)
    MT, TA = c.MT, c.TA
    NBT = [c.nb0 if t == 0 else nb for t in range(NT)]
    tlo = [0] + [next(i for i in range(max(0, -(-(t << 32) // MT) - TA - 2), E) if ((i + TA) * MT) >> 32 == t) for t in range(1, NT)]
    bin0 = [(tlo[t] * 8) >> BSH for t in range(NT)]
    binN = [(((tlo[t + 1] - 1) if t + 1 < NT else E - 1) * 8 >> BSH) - bin0[t] + 1 for t in range(NT)]
    NBIN = 512
    assert max(binN) <= NBIN
    ACC = 0
    GB = 4 * S * 4
    GA = GB + S * 8
    MISC = GA + S * 16
    CNT2 = MISC + 256
    MARKS = CNT2 + 2 * NBIN * 4
    MW = SUB * 256
    assert MW % 512 == 0
    SORT = MARKS + 16 * MW
    lds = SORT + nb * 1024 * 8
    assert lds <= 163840, lds
    va = Alloc("v", 1, 128)
    vMk4 = va.get(); vMk8 = va.get()
    vLaneR = va.get()
    vP = [va.get(EPL) for _ in range(NT)]
    vDl = [va.get(EPL) for _ in range(NT)]
    vA = va.get()
    vSrt = va.get()
    vSH = va.get(2, 2)
    vD8 = va.get(2, 2)
    vZ = va.get(2, 2)
    rX = [va.get(2, 2) for _ in range(nb)]
    sX_ = [[va.get(2, 2) for _ in range(nb)] for _ in range(2)]
    rK = [va.get() for _ in range(nb)]
    sM_ = [[va.get() for _ in range(nb)] for _ in range(2)]
    vT = va.get(24, 2)
    sREC, sMDT, sXs, sY = 16, 20, 24, 28
    sB, sWid, sMode, sMkBase, sKB, sScale, sT, sOff, sMaskHi = 4, 5, 6, 7, 8, 9, 14, 15, 3
    sPtr = 32
    sSave = 42
    sOUT, sMS = 44, 48
    sWU = 56
    sN = [72 + t for t in range(4)]
    sP0 = [76 + t for t in range(4)]
    sCar = [80 + t for t in range(4)]
    sRem = [84 + t for t in range(4)]
    sSR = [88, 89]
    NW2 = (S - 1024 + 63) // 64

    a.I(f"s_cmp_ge_u32 s2, {NB}")
    a.I("s_cbranch_scc1 P2_END")
    st_ = Stamper(a, c.stamps, va.get() if c.stamps else 0, 100)
    if c.stamps:
        a.I(f"v_mov_b32 v{st_.v}, 0")
    st_("start")
    a.I(f"s_load_dwordx2 s[{sPtr}:{sPtr + 1}], s[0:1], 104")
    a.I(f"s_load_dwordx2 s[{sPtr + 2}:{sPtr + 3}], s[0:1], 24")
    a.I(f"s_load_dwordx4 s[{sPtr + 4}:{sPtr + 7}], s[0:1], 80")
    a.I(f"s_load_dwordx2 s[52:53], s[0:1], 0")
    a.I(f"s_and_b32 s{sB}, s2, 7")
    a.I(f"s_lshl_b32 s{sB}, s{sB}, 5")
    a.I(f"s_lshr_b32 s{sT}, s2, 3")
    a.I(f"s_add_u32 s{sB}, s{sB}, s{sT}")
    a.I(f"s_mov_b32 s{sMaskHi}, 0xffff0000")
    vLane = vT + 23
    a.I(f"v_and_b32 v{vLane}, 63, v0")
    a.I(f"v_lshrrev_b32 v{vT}, 6, v0")
    a.I(f"v_readfirstlane_b32 s{sWid}, v{vT}")
    if c.cpf2:
        code_prefetch(a, "P2", "gp2_kernel", "TEXT_END", 54, sWid, vT + 4, rK[0], c.cpf2)
    vC = vT + 2
    a.I(f"v_mul_u32_u24 v{vC}, {EPL}, v{vLane}")
    a.I(f"s_mul_i32 s{sT}, s{sWid}, {CPW}")
    a.I(f"v_add_u32 v{vC}, s{sT}, v{vC}")
    a.I(f"s_lshr_b32 s{sT}, s{sB}, 1")
    a.I(f"s_mul_i32 s{sT}, s{sT}, {NC * 32}")
    a.I(f"s_and_b32 s{sOff}, s{sB}, 1")
    a.I(f"s_lshl_b32 s{sOff}, s{sOff}, 4")
    a.I(f"s_add_u32 s{sT}, s{sT}, s{sOff}")
    a.I(f"v_lshlrev_b32 v{vT + 3}, 5, v{vC}")
    a.I(f"s_mul_i32 s{sOff}, s{sB}, {S * 2}")
    vE0 = vT + 1
    a.I(f"v_lshlrev_b32 v{vE0}, 1, v0")
    a.I(f"v_lshlrev_b32 v{vA}, 4, v0")
    a.I("s_waitcnt lgkmcnt(0)")
    srd(a, sXs, sPtr, sPtr + 1, 128 * NC * 32, WS_OFFS)
    vEnt = vT + 4
    for e in range(EPL):
        a.vmem(f"buffer_load_dwordx4 {v(vEnt + 4 * e, 4)}, v{vT + 3}, {s(sXs, 4)}, s{sT} offen offset:{32 * e}", f"ent{e}")
    srd(a, sY, sPtr + 2, sPtr + 3, E * 2)
    vD = vSH
    a.vmem(f"buffer_load_ushort v{vD}, v{vE0}, {s(sY, 4)}, s{sOff} offen", "d0")
    a.vmem(f"buffer_load_ushort v{vD + 1}, v{vE0}, {s(sY, 4)}, s{sOff} offen offset:2048", "d1")
    assert NMX <= 4096
    srd(a, sXs, sPtr, sPtr + 1, NMX * 4, WS_MX)
    vMxv = sX_[1][0]
    assert sX_[1][1] == vMxv + 2
    a.vmem(f"buffer_load_dwordx4 {v(vMxv, 4)}, v{vA}, {s(sXs, 4)}, 0 offen", "mx0")
    vSmv = sX_[1][2]
    assert sX_[1][3] == vSmv + 2
    srd(a, sXs, sPtr, sPtr + 1, NMX * 4, WS_MX + 0x4000)
    a.vmem(f"buffer_load_dwordx4 {v(vSmv, 4)}, v{vA}, {s(sXs, 4)}, 0 offen", "mx")
    a.I(f"s_load_dwordx8 s[64:71], s[{sPtr + 4}:{sPtr + 5}], 0")
    srd(a, sMDT, sPtr, sPtr + 1, E * 8, WS_MDT)
    srd(a, sREC, sPtr, sPtr + 1, NC * CB)
    srd(a, sOUT, sPtr + 6, sPtr + 7, E * 8)
    srd(a, sMS, 52, 53, E * 8)
    for i in range(4):
        a.I(f"v_mov_b32 v{vT + 16 + i}, 0")
    a.I(f"v_mov_b32 v{vZ}, 0")
    a.I(f"v_mov_b32 v{vZ + 1}, 0")
    nz = (4 * S * 4) // 16
    a.I(f"ds_write_b128 v{vA}, {v(vT + 16, 4)}")
    a.I(f"v_cmp_gt_u32 vcc, {nz - 1024}, v0")
    a.I(f"v_lshlrev_b32 v{vT}, 2, v0")
    a.I(f"v_add_u32 v{vT}, {CNT2}, v{vT}")
    a.I(f"ds_write_b32 v{vT}, v{vZ}")
    a.I("s_mov_b64 exec, vcc")
    a.I(f"ds_write_b128 v{vA}, {v(vT + 16, 4)} offset:16384")
    a.I("s_mov_b64 exec, -1")
    a.I(f"v_lshlrev_b32 v{vLaneR}, 3, v{vLane}")
    a.I(f"v_lshlrev_b32 v{vSrt}, 3, v0")
    a.I(f"v_add_u32 v{vSrt}, {SORT}, v{vSrt}")
    a.I(f"s_mul_i32 s{sMkBase}, s{sWid}, {MW}")
    a.I(f"s_add_u32 s{sMkBase}, s{sMkBase}, {MARKS}")
    a.I(f"v_lshl_add_u32 v{vMk4}, v{vLane}, 2, s{sMkBase}")
    a.I(f"v_lshl_add_u32 v{vMk8}, v{vLane}, 3, s{sMkBase}")
    srd(a, sY, sPtr, sPtr + 1, GT_BYTES, WS_GT)
    a.vwait(f"ent{EPL - 1}")
    st_("ent")
    vn = vT + 12
    vsum = vT + 20
    assert EPL <= 2
    for e in range(EPL):
        if e:
            a.I(f"v_add_u32 v{vC}, 1, v{vC}")
        a.I(f"v_cmp_gt_u32 vcc, {NC}, v{vC}")
        a.I(f"v_cmp_gt_u32 s[{sSave}:{sSave + 1}], {CPW // EPL}, v{vLane}")
        a.I(f"s_mov_b32 s{sT}, {CB}")
        a.I(f"s_and_b64 vcc, vcc, s[{sSave}:{sSave + 1}]")
        a.I(f"v_mul_lo_u32 v{vsum}, v{vC}, s{sT}")
        for t in range(NT):
            d = vEnt + 4 * e + t
            n_ = vn + t * EPL + e
            a.I(f"v_lshrrev_b32 v{n_}, 16, v{d}")
            a.I(f"v_and_b32 v{d}, 0xffff, v{d}")
            a.I(f"v_cndmask_b32 v{n_}, 0, v{n_}, vcc")
            a.I(f"v_lshl_add_u32 v{vDl[t] + e}, v{d}, 3, v{vsum}")
    for t in range(NT):
        if EPL == 2:
            a.I(f"v_add_u32 v{vEnt + t}, v{vn + 2 * t}, v{vn + 2 * t + 1}")
        else:
            a.I(f"v_mov_b32 v{vEnt + t}, v{vn + t}")
        a.I(f"v_mov_b32 v{vP[t]}, v{vEnt + t}")
    scan_add(a, [vP[t] for t in range(NT)])
    for t in range(NT):
        a.I(f"v_readlane_b32 s{sN[t]}, v{vP[t]}, 63")
    for t in range(NT):
        a.I(f"v_sub_u32 v{vP[t]}, v{vP[t]}, v{vEnt + t}")
        if EPL == 2:
            a.I(f"v_add_u32 v{vP[t] + 1}, v{vP[t]}, v{vn + 2 * t}")
    for t in range(NT):
        for e in range(EPL):
            a.I(f"v_lshlrev_b32 v{vsum}, 3, v{vP[t] + e}")
            a.I(f"v_cmp_ne_u32 vcc, 0, v{vn + t * EPL + e}")
            a.I(f"v_sub_u32 v{vDl[t] + e}, v{vDl[t] + e}, v{vsum}")
            a.I(f"v_cndmask_b32 v{vP[t] + e}, -1, v{vP[t] + e}, vcc")
    sTotN = sKB
    a.I(f"s_mov_b32 s{sTotN}, 0")
    for t in range(NT):
        a.I(f"s_mov_b32 s{sP0[t]}, 0")
        a.I(f"s_mov_b32 s{sCar[t]}, 0")
        a.I(f"s_mov_b32 s{sRem[t]}, s{sN[t]}")
        a.I(f"s_add_u32 s{sTotN}, s{sTotN}, s{sN[t]}")
    tA = [vT + 4, vT + 8]
    tB = [vT + 12, vT + 16]

    def table_loads():
        for j in range(2):
            a.vwait(f"d{j}")
            a.I(f"v_lshlrev_b32 v{vT + 20 + j}, 5, v{vD + j}")
            a.I(f"v_lshlrev_b32 v{vD8 + j}, 3, v{vD + j}")
            a.vmem(f"buffer_load_dwordx4 {v(tA[j], 4)}, v{vT + 20 + j}, {s(sY, 4)}, 0 offen", f"ta{j}")
            a.vmem(f"buffer_load_dwordx4 {v(tB[j], 4)}, v{vT + 20 + j}, {s(sY, 4)}, 0 offen offset:16", f"ts{j}")

    ldpol = (" " + c.ld_rec) if c.ld_rec else ""

    def set_exec_s(sreg, off):
        if off:
            a.I(f"s_sub_i32 s{sT}, s{sreg}, {off}")
            a.I(f"s_max_i32 s{sT}, s{sT}, 0")
        else:
            a.I(f"s_max_i32 s{sT}, s{sreg}, 0")
        a.I(f"s_bfm_b64 exec, s{sT}, 0")
        a.I(f"s_cmp_ge_i32 s{sT}, 64")
        a.I("s_cselect_b64 exec, -1, exec")

    def stageA_p(t, n_tot, regs, tagp):
        P = []
        k0 = 0
        while k0 < n_tot:
            n = min(SUB, n_tot - k0)

            def p(k0=k0, n=n):
                for i in range((n * 256 + 511) // 512):
                    a.I(f"ds_write_b64 v{vMk8}, {v(vZ, 2)} offset:{i * 512}")
                a.I(f"s_add_u32 s{sOff}, s{sP0[t]}, {k0 * 64}")
                for e in range(EPL):
                    a.I(f"v_subrev_u32 v{vA}, s{sOff}, v{vP[t] + e}")
                    a.I(f"v_cmp_gt_u32 vcc, {n * 64}, v{vA}")
                    a.I(f"v_lshl_add_u32 v{vA}, v{vA}, 2, s{sMkBase}")
                    a.I("s_mov_b64 exec, vcc")
                    a.I(f"ds_write_b32 v{vA}, v{vDl[t] + e}")
                    a.I("s_mov_b64 exec, -1")
                for k in range(n):
                    a.I(f"ds_read_b32 v{regs[k0 + k]}, v{vMk4} offset:{k * 256}")
                a.I(f"s_lshl_b32 s{sOff}, s{sOff}, 3")
                a.I("s_waitcnt lgkmcnt(0)")
                scan_max(a, [regs[k0 + k] for k in range(n)])
                for k in range(k0, k0 + n):
                    r = regs[k]
                    a.I(f"v_max_u32 v{r}, s{sCar[t]}, v{r}")
                    a.I(f"v_readlane_b32 s{sCar[t]}, v{r}, 63")
                    a.I(f"v_add3_u32 v{r}, v{r}, v{vLaneR}, s{sOff}")
                    a.I(f"s_add_u32 s{sOff}, s{sOff}, 512")
                    set_exec_s(sRem[t], 64 * k)
                    a.vmem(f"buffer_load_dwordx2 {v(r, 2)}, v{r}, {s(sREC, 4)}, 0 offen{ldpol}", f"{tagp}{k}")
                    a.I("s_mov_b64 exec, -1")
            P.append(p)
            k0 += n
        return P

    def stageA(t, n_tot, regs, tagp):
        for p in stageA_p(t, n_tot, regs, tagp):
            p()

    def gather(r, m, sreg, off, tag):
        set_exec_s(sreg, off)
        a.I(f"v_mov_b32 v{m}, v{r + 1}")
        a.vmem(f"buffer_load_dwordx2 {v(r, 2)}, v{r}, {s(sMDT, 4)}, 0 offen", tag)
        a.I("s_mov_b64 exec, -1")

    lblc = [0]

    def comp(r, meta, sreg, off, tag):
        n = lblc[0]; lblc[0] += 1
        m01, m23 = r, r + 1
        t = vT
        a16, a8, a4 = t, t + 1, t + 2
        af, r0, r2 = t + 3, t + 4, t + 5
        Gq = t + 8
        Gb = t + 12
        c01, c2l, c2h = t + 6, t + 7, t + 14
        md = t + 16
        g = t + 20
        set_exec_s(sreg, off)
        a.I(f"s_cbranch_execz P2_SK{n}")
        a.I(f"v_and_b32 v{a4}, 0xffff, v{meta}")
        a.I(f"v_add_u32 v{a8}, v{a4}, v{a4}")
        a.I(f"v_add_u32 v{a16}, v{a8}, v{a8}")
        a.I(f"ds_read_b64 {v(Gb, 2)}, v{a8} offset:{GB}")
        a.I(f"ds_read_b128 {v(Gq, 4)}, v{a16} offset:{GA}")
        a.I(f"v_and_b32 v{af}, s{sMaskHi}, v{meta}")
        a.I(f"v_mul_f32 v{r0}, 0.15915494, v{af}")
        a.I(f"v_mul_f32 v{r2}, 0x40400000, v{af}")
        a.I(f"v_cos_f32 v{r0}, v{r0}")
        a.I(f"v_cvt_pk_bf16_f32 v{r2}, 0, v{r2}")
        a.I(f"v_mul_f32 v{r2}, 0.15915494, v{r2}")
        a.I(f"v_mul_f32 v{af}, v{r0}, v{r0}")
        a.I(f"v_cos_f32 v{r2}, v{r2}")
        a.I(f"v_fma_f32 v{af}, v{af}, 2.0, -1.0")
        a.I(f"v_cvt_pk_bf16_f32 v{c01}, v{r0}, v{af}")
        a.I(f"v_cvt_pk_bf16_f32 v{c2l}, v{r2}, 0")
        a.I(f"v_cvt_pk_bf16_f32 v{c2h}, 0, v{r2}")
        a.I("s_waitcnt lgkmcnt(1)")
        for d in range(4):
            a.I(f"v_dot2_f32_bf16 v{g + d}, v{Gb + d // 2}, v{c2l if d % 2 == 0 else c2h}, 0")
        a.I("s_waitcnt lgkmcnt(0)")
        for d in range(4):
            a.I(f"v_dot2_f32_bf16 v{g + d}, v{Gq + d}, v{c01}, v{g + d}")
        a.vwait(tag, trim=False)
        a.I(f"v_lshlrev_b32 v{md}, 16, v{m01}")
        a.I(f"v_and_b32 v{md + 1}, s{sMaskHi}, v{m01}")
        a.I(f"v_lshlrev_b32 v{md + 2}, 16, v{m23}")
        a.I(f"v_and_b32 v{md + 3}, s{sMaskHi}, v{m23}")
        a.I(f"s_cmp_lg_u32 s{sMode}, 0")
        for d in range(4):
            a.I(f"v_mul_f32 v{md + d}, v{md + d}, v{g + d}")
        a.I(f"s_cbranch_scc1 P2_FL{n}")
        for d in range(4):
            a.I(f"v_cvt_rpi_i32_f32 v{g + d}, v{md + d}")
            a.I(f"ds_add_u32 v{a4}, v{g + d} offset:{ACC + d * S * 4}")
        a.I(f"s_branch P2_SK{n}")
        a.L(f"P2_FL{n}")
        for d in range(4):
            a.I(f"ds_add_f32 v{a4}, v{md + d} offset:{ACC + d * S * 4}")
        a.L(f"P2_SK{n}")
        a.I("s_mov_b64 exec, -1")
        a.vwait(tag)

    def misc_and_scale():
        a.vwait("mx")
        a.I(f"v_max3_u32 v{vMxv}, v{vMxv}, v{vMxv + 1}, v{vMxv + 2}")
        a.I(f"v_max_u32 v{vMxv}, v{vMxv}, v{vMxv + 3}")
        a.I(f"v_add_f32 v{vSmv}, v{vSmv}, v{vSmv + 1}")
        a.I(f"v_add_f32 v{vSmv + 2}, v{vSmv + 2}, v{vSmv + 3}")
        a.I(f"v_add_f32 v{vSmv}, v{vSmv}, v{vSmv + 2}")
        a.vwait("ts1")
        a.I(f"v_cmp_gt_u32 vcc, {S - 1024}, v0")
        a.I(f"v_cndmask_b32 v{tB[1] + 3}, 0, v{tB[1] + 3}, vcc")
        a.I(f"v_or_b32 v{vMxv + 1}, v{tB[0] + 3}, v{tB[1] + 3}")
        a.I(f"v_lshlrev_b32 v{vMxv + 1}, 31, v{vMxv + 1}")
        a.I(f"v_or_b32 v{vMxv}, v{vMxv}, v{vMxv + 1}")
        scan_max(a, [vMxv])
        scan(a, [vSmv], "v_add_f32")
        a.I(f"v_readlane_b32 s{sT}, v{vMxv}, 63")
        a.I(f"v_readlane_b32 s{sScale}, v{vSmv}, 63")
        a.I(f"s_lshl_b32 s{sOff}, s{sWid}, 3")
        a.I(f"s_add_u32 s{sOff}, s{sOff}, {MISC}")
        a.I(f"v_mov_b32 v{vMxv}, s{sTotN}")
        a.I(f"v_mov_b32 v{vMxv + 1}, s{sT}")
        a.I(f"v_mov_b32 v{vMxv + 2}, s{sOff}")
        a.I(f"v_mov_b32 v{vSmv}, s{sScale}")
        a.I(f"v_lshrrev_b32 v{vMxv + 3}, 1, v{vMxv + 2}")
        a.I("s_mov_b64 exec, 1")
        a.I(f"ds_write_b64 v{vMxv + 2}, {v(vMxv, 2)}")
        a.I(f"ds_write_b32 v{vMxv + 3}, v{vSmv} offset:{MISC + 192 - MISC // 2}")
        a.I("s_mov_b64 exec, -1")
        a.I("s_waitcnt lgkmcnt(0)")
        st_("pre")
        a.I("s_barrier")
        st_("bar")
        a.I(f"v_and_b32 v{vMxv + 2}, 15, v0")
        a.I(f"v_lshlrev_b32 v{vMxv + 3}, 2, v{vMxv + 2}")
        a.I(f"v_lshlrev_b32 v{vMxv + 2}, 3, v{vMxv + 2}")
        a.I(f"v_add_u32 v{vMxv + 2}, {MISC}, v{vMxv + 2}")
        a.I(f"ds_read_b32 v{vSmv}, v{vMxv + 3} offset:{MISC + 192}")
        a.I(f"ds_read_b64 {v(vMxv, 2)}, v{vMxv + 2}")
        for h in range(2):
            for d in range(4):
                pk = "s_pack_ll_b32_b16" if d % 2 == 0 else "s_pack_hh_b32_b16"
                a.I(f"{pk} s{sWU + h * 4 + d}, s{64 + 4 * h + d // 2}, s{64 + 4 * h + 2 + d // 2}")
        a.I("s_waitcnt lgkmcnt(0)")
        for sh in (1, 2, 4, 8):
            a.I(f"v_add_u32_dpp v{vMxv}, v{vMxv}, v{vMxv} row_shr:{sh} row_mask:0xf bank_mask:0xf bound_ctrl:0")
            a.I(f"v_max_u32_dpp v{vMxv + 1}, v{vMxv + 1}, v{vMxv + 1} row_shr:{sh} row_mask:0xf bank_mask:0xf bound_ctrl:0")
            a.I(f"v_add_f32_dpp v{vSmv}, v{vSmv}, v{vSmv} row_shr:{sh} row_mask:0xf bank_mask:0xf bound_ctrl:0")
        a.I(f"v_mul_f32 v{vSmv}, {hex(f32bits(128.0 / (4 * E)))}, v{vSmv}")
        a.I(f"v_readlane_b32 s{sT}, v{vMxv}, 15")
        a.I(f"v_readlane_b32 s{sOff}, v{vMxv + 1}, 15")
        a.I(f"v_readlane_b32 s{sScale}, v{vSmv}, 15")
        a.I(f"s_or_b32 s{sT}, s{sT}, 1")
        a.I(f"s_flbit_i32_b32 s{sT}, s{sT}")
        a.I(f"s_sub_u32 s{sT}, s{sT}, 2")
        a.I(f"s_min_u32 s{sT}, s{sT}, 22")
        a.I(f"s_cmp_ge_u32 s{sOff}, 0x7f000000")
        a.I(f"s_cselect_b32 s{sMode}, 1, 0")
        a.I(f"s_cmp_gt_u32 s{sOff}, s{sScale}")
        a.I(f"s_cselect_b32 s{sMode}, 1, s{sMode}")
        a.I(f"s_cmp_lt_u32 s{sT}, 12")
        a.I(f"s_cselect_b32 s{sMode}, 1, s{sMode}")
        a.I(f"s_lshr_b32 s{sOff}, s{sOff}, 23")
        a.I(f"s_max_u32 s{sOff}, s{sOff}, 70")
        a.I(f"s_min_u32 s{sOff}, s{sOff}, 190")
        a.I(f"s_add_u32 s{sKB}, s{sT}, 126")
        a.I(f"s_sub_i32 s{sKB}, s{sKB}, s{sOff}")
        a.I(f"s_cmp_lg_u32 s{sMode}, 0")
        a.I(f"s_cselect_b32 s{sKB}, 0, s{sKB}")
        a.I(f"s_add_u32 s{sScale}, s{sKB}, 127")
        a.I(f"s_lshl_b32 s{sScale}, s{sScale}, 23")
        x0, x1 = vT + 20, vT + 21
        for j in range(2):
            for r in [tA[j] + q for q in range(4)] + [tB[j], tB[j] + 1]:
                a.I(f"v_lshlrev_b32 v{x0}, 16, v{r}")
                a.I(f"v_and_b32 v{x1}, s{sMaskHi}, v{r}")
                a.I(f"v_mul_f32 v{x0}, s{sScale}, v{x0}")
                a.I(f"v_mul_f32 v{x1}, s{sScale}, v{x1}")
                a.I(f"v_cvt_pk_bf16_f32 v{r}, v{x0}, v{x1}")
            a.I(f"v_mov_b32 v{vSH + j}, v{tB[j] + 2}")
        a.I(f"v_lshlrev_b32 v{vT}, 4, v0")
        a.I(f"v_lshlrev_b32 v{vT + 1}, 3, v0")
        a.I(f"ds_write_b128 v{vT}, {v(tA[0], 4)} offset:{GA}")
        a.I(f"ds_write_b64 v{vT + 1}, {v(tB[0], 2)} offset:{GB}")
        a.I(f"v_cmp_gt_u32 vcc, {S - 1024}, v0")
        a.I("s_mov_b64 exec, vcc")
        a.I(f"ds_write_b128 v{vT}, {v(tA[1], 4)} offset:{GA + 16384}")
        a.I(f"ds_write_b64 v{vT + 1}, {v(tB[1], 2)} offset:{GB + 8192}")
        a.I("s_mov_b64 exec, -1")

    vOne = vT + 22

    def S1(t):
        cb = CNT2 + (t % 2) * NBIN * 4 - bin0[t] * 4
        a.I(f"v_mov_b32 v{vOne}, 1")
        a.I(f"s_mov_b32 s{sSave}, {cb}")
        for k in range(nb):
            a.vwait(f"R{t}_{k}")
            set_exec_s(sRem[t], 64 * k)
            a.I(f"v_lshrrev_b32 v{vA}, {BSH}, v{rX[k]}")
            a.I(f"v_lshl_add_u32 v{vA}, v{vA}, 2, s{sSave}")
            a.I(f"ds_add_rtn_u32 v{rK[k]}, v{vA}, v{vOne}")
            a.I("s_mov_b64 exec, -1")
        a.I("s_waitcnt lgkmcnt(0)")

    def S2(t):
        n = lblc[0]; lblc[0] += 1
        a.I(f"s_cmp_lg_u32 s{sWid}, {c.scanw}")
        a.I(f"s_cbranch_scc1 P2_NS{n}")
        x = vT
        a.I(f"v_lshlrev_b32 v{x + 10}, 2, v{vLaneR}")
        a.I(f"v_add_u32 v{x + 10}, {CNT2 + (t % 2) * NBIN * 4}, v{x + 10}")
        a.I(f"ds_read_b128 {v(x, 4)}, v{x + 10}")
        a.I(f"ds_read_b128 {v(x + 4, 4)}, v{x + 10} offset:16")
        a.I("s_waitcnt lgkmcnt(0)")
        for q in range(1, 8):
            a.I(f"v_add_u32 v{x + q}, v{x + q}, v{x + q - 1}")
        a.I(f"v_mov_b32 v{x + 8}, v{x + 7}")
        scan_add(a, [x + 8])
        a.I(f"v_readlane_b32 s{sT}, v{x + 8}, 63")
        a.I(f"v_sub_u32 v{x + 8}, v{x + 8}, v{x + 7}")
        for q in range(7, 0, -1):
            a.I(f"v_add_u32 v{x + q}, v{x + q - 1}, v{x + 8}")
        a.I(f"v_mov_b32 v{x}, v{x + 8}")
        a.I(f"ds_write_b128 v{x + 10}, {v(x, 4)}")
        a.I(f"ds_write_b128 v{x + 10}, {v(x + 4, 4)} offset:16")
        a.I(f"v_mov_b32 v{x + 9}, s{sT}")
        a.I(f"v_mov_b32 v{x + 11}, {MISC + 128 + 4 * (t % 2)}")
        a.I(f"ds_write_b32 v{x + 11}, v{x + 9}")
        a.I("s_waitcnt lgkmcnt(0)")
        a.L(f"P2_NS{n}")

    def S3(t):
        cb = CNT2 + (t % 2) * NBIN * 4 - bin0[t] * 4
        a.I(f"s_mov_b32 s{sSave}, {cb}")
        a.I(f"s_mov_b32 s{sSave + 1}, {SORT}")
        a.I(f"v_mov_b32 v{vT + 8}, {MISC + 128 + 4 * (t % 2)}")
        a.I(f"ds_read_b32 v{vT + 8}, v{vT + 8}")
        for k in range(nb):
            a.I(f"v_lshrrev_b32 v{vT + 10 + k}, {BSH}, v{rX[k]}")
            a.I(f"v_lshl_add_u32 v{vT + 10 + k}, v{vT + 10 + k}, 2, s{sSave}")
            set_exec_s(sRem[t], 64 * k)
            a.I(f"ds_read_b32 v{vT + 10 + k}, v{vT + 10 + k}")
            a.I("s_mov_b64 exec, -1")
        a.I(f"s_waitcnt lgkmcnt({nb})")
        a.I(f"v_readfirstlane_b32 s{sSR[t % 2]}, v{vT + 8}")
        a.I(f"s_lshl_b32 s{sOff}, s{sWid}, 6")
        a.I(f"s_sub_i32 s{sSR[t % 2]}, s{sSR[t % 2]}, s{sOff}")
        for k in range(nb):
            a.I(f"s_waitcnt lgkmcnt({nb - 1})")
            a.I(f"v_add_u32 v{vT + 10 + k}, v{vT + 10 + k}, v{rK[k]}")
            a.I(f"v_lshl_add_u32 v{vT + 10 + k}, v{vT + 10 + k}, 3, s{sSave + 1}")
            set_exec_s(sRem[t], 64 * k)
            a.I(f"ds_write_b64 v{vT + 10 + k}, {v(rX[k], 2)}")
            a.I("s_mov_b64 exec, -1")

    def S4(t):
        p = t % 2
        a.I(f"v_lshlrev_b32 v{vA}, 2, v0")
        a.I(f"v_cmp_gt_u32 vcc, {NBIN}, v0")
        a.I(f"v_add_u32 v{vA}, {CNT2 + p * NBIN * 4}, v{vA}")
        a.I("s_mov_b64 exec, vcc")
        a.I(f"ds_write_b32 v{vA}, v{vZ}")
        a.I("s_mov_b64 exec, -1")
        for k in range(nb):
            a.I(f"ds_read_b64 {v(sX_[p][k], 2)}, v{vSrt} offset:{k * 8192}")
        a.I("s_waitcnt lgkmcnt(0)")

    def cnt_of(t, k):
        return (sRem[0], 64 * k) if t == 0 else (sSR[t % 2], 1024 * k)

    def G_(t, k):
        p = t % 2
        if t == 0:
            a.vwait(f"R0_{k}")
        gather(sX_[p][k], sM_[p][k], *cnt_of(t, k), f"B{t}_{k}")

    def C_(t, k):
        p = t % 2
        comp(sX_[p][k], sM_[p][k], *cnt_of(t, k), f"B{t}_{k}")

    def bar():
        a.I("s_waitcnt lgkmcnt(0)")
        a.I("s_barrier")

    assert nb * 8192 <= 65536
    assert vT + 10 + nb <= vT + 22
    L = c.lead
    if c.order == 0:
        stageA(0, NBT[0], sX_[0], "R0_")
        st_("A0")
        table_loads()
        st_("tl")
        if NT > 1:
            stageA(1, nb, rX, "R1_")
        st_("A1")
    else:
        table_loads()
        stageA(0, NBT[0], sX_[0], "R0_")
        if c.order == 2 and NT > 1:
            stageA(1, nb, rX, "R1_")
        misc_and_scale()
        if c.order == 1 and NT > 1:
            stageA(1, nb, rX, "R1_")
    compQ = []
    step = 0
    gstep = {}
    for t in range(NT):
        W = []
        if t == 0 and c.order == 0:
            W.append(misc_and_scale)
        if t + 1 < NT:
            def s3w(t=t):
                while compQ and compQ[0][0] < t:
                    C_(*compQ.pop(0))
                S3(t + 1)
            W += [lambda t=t: S1(t + 1), bar, lambda t=t: S2(t + 1), None, bar, s3w]
            if t + 2 < NT:
                W += [lambda: a.I("s_waitcnt lgkmcnt(0)")] + stageA_p(t + 2, nb, rX, f"R{t + 2}_")
        elif t == 0:
            W.append(bar)
        if t > 0:
            S4(t)
        ready = t > 0
        nbar = 0
        wi = 0
        for k in range(NBT[t]):
            G_(t, k)
            gstep[(t, k)] = step
            compQ.append((t, k))
            step += 1
            tgt = min(len(W), -(-len(W) * (k + 1) // min(c.wspread, NBT[t])))
            while wi < tgt:
                f = W[wi]; wi += 1
                if f is not None:
                    f()
                    if t <= 1:
                        st_(f"w{t}_{wi}")
                if f is bar:
                    ready = True
            n = 0
            while ready and compQ and n < c.cps and gstep[compQ[0]] + L <= step:
                C_(*compQ.pop(0)); n += 1
        while wi < len(W):
            f = W[wi]; wi += 1
            if f is not None:
                f()
        while compQ and compQ[0][0] < t:
            C_(*compQ.pop(0))
        if t + 1 < NT:
            bar()
        st_(f"T{t}")
    while compQ:
        C_(*compQ.pop(0))
    st_("comps")
    a.vwait_all()
    for t in range(NT):
        a.I(f"s_add_u32 s{sP0[t]}, s{sP0[t]}, {NBT[t] * 64}")
        a.L(f"P2_LOOP{t}")
        a.I(f"s_sub_i32 s{sRem[t]}, s{sN[t]}, s{sP0[t]}")
        a.I(f"s_cmp_le_i32 s{sRem[t]}, 0")
        a.I(f"s_cbranch_scc1 P2_LOOP_END{t}")
        lr = min(nb, 4)
        stageA(t, lr, rX, "L")
        for k in range(lr):
            a.vwait(f"L{k}")
            gather(rX[k], rK[k], sRem[t], 64 * k, f"LB{k}")
        for k in range(lr):
            comp(rX[k], rK[k], sRem[t], 64 * k, f"LB{k}")
        a.vwait_all()
        a.I(f"s_add_u32 s{sP0[t]}, s{sP0[t]}, {lr * 64}")
        a.I(f"s_branch P2_LOOP{t}")
        a.L(f"P2_LOOP_END{t}")
    st_("loop")
    a.I(f"v_lshlrev_b32 v{vT}, 3, v0")
    a.I(f"s_mul_i32 s{sT}, s{sB}, {S * 8}")
    a.I(f"s_add_u32 s{sT + 1}, s{sT}, 8192")
    vMrow = rX[0]
    vRW = rX[2]
    assert rX[1] == vMrow + 2 and rX[3] == vRW + 2
    a.I(f"buffer_load_dwordx2 {v(vMrow, 2)}, v{vT}, {s(sMS, 4)}, s{sT} offen")
    a.I(f"buffer_load_dwordx2 {v(vMrow + 2, 2)}, v{vT}, {s(sMS, 4)}, s{sT + 1} offen")
    a.I(f"s_mov_b32 s{sSave}, 0x200000")
    a.I(f"buffer_load_dwordx2 {v(vRW, 2)}, v{vD8}, {s(sY, 4)}, s{sSave} offen")
    a.I(f"buffer_load_dwordx2 {v(vRW + 2, 2)}, v{vD8 + 1}, {s(sY, 4)}, s{sSave} offen")
    a.I("s_waitcnt lgkmcnt(0)")
    a.I("s_barrier")
    st_("bar3")
    for j in range(2):
        if j == 1:
            a.I(f"s_cmp_ge_u32 s{sWid}, {NW2}")
            a.I("s_cbranch_scc1 P2_FIN")
            a.I(f"v_cmp_gt_u32 vcc, {S - 1024}, v0")
            a.I("s_mov_b64 exec, vcc")
        q = vT + 4; f = vT + 8; up = vT + 12; rw = vT + 16; pk = vT + 20
        a.I(f"v_lshlrev_b32 v{vT + 1}, 2, v0")
        for d in range(4):
            a.I(f"ds_read_b32 v{q + d}, v{vT + 1} offset:{ACC + d * S * 4 + j * 4096}")
        for d in range(4):
            a.I(f"v_bfe_i32 v{up + d}, v{vSH + j}, {8 * d}, 8")
        for d in range(4):
            a.I(f"v_subrev_u32 v{up + d}, s{sKB}, v{up + d}")
        a.I(f"s_cmp_lg_u32 s{sMode}, 0")
        a.I("s_waitcnt lgkmcnt(0)")
        a.I(f"s_cbranch_scc1 P2_EF{j}")
        for d in range(4):
            a.I(f"v_cvt_f32_i32 v{q + d}, v{q + d}")
        a.L(f"P2_EF{j}")
        for d in range(4):
            a.I(f"v_ldexp_f32 v{q + d}, v{q + d}, v{up + d}")
        a.I(f"v_cvt_pk_bf16_f32 v{pk}, v{q}, v{q + 1}")
        a.I(f"v_cvt_pk_bf16_f32 v{pk + 1}, v{q + 2}, v{q + 3}")
        for d in range(4):
            a.I(f"v_dot2_f32_bf16 v{up + d}, v{pk}, s{sWU + d}, 0")
        for d in range(4):
            a.I(f"v_dot2_f32_bf16 v{up + d}, v{pk + 1}, s{sWU + 4 + d}, v{up + d}")
        m01, m23 = vMrow + 2 * j, vMrow + 2 * j + 1
        if j == 0:
            a.I("s_waitcnt vmcnt(0)")
        a.I(f"v_lshlrev_b32 v{rw}, 16, v{vRW + 2 * j}")
        a.I(f"v_and_b32 v{rw + 1}, s{sMaskHi}, v{vRW + 2 * j}")
        a.I(f"v_lshlrev_b32 v{rw + 2}, 16, v{vRW + 2 * j + 1}")
        a.I(f"v_and_b32 v{rw + 3}, s{sMaskHi}, v{vRW + 2 * j + 1}")
        a.I(f"v_lshlrev_b32 v{f}, 16, v{m01}")
        a.I(f"v_and_b32 v{f + 1}, s{sMaskHi}, v{m01}")
        a.I(f"v_lshlrev_b32 v{f + 2}, 16, v{m23}")
        a.I(f"v_and_b32 v{f + 3}, s{sMaskHi}, v{m23}")
        for d in range(4):
            a.I(f"v_cvt_pk_bf16_f32 v{up + d}, 0, v{up + d}")
        for d in range(4):
            a.I(f"v_mul_f32 v{up + d}, v{up + d}, v{rw + d}")
        for d in range(4):
            a.I(f"v_cvt_pk_bf16_f32 v{up + d}, 0, v{up + d}")
        for d in range(4):
            a.I(f"v_add_f32 v{up + d}, v{up + d}, v{f + d}")
        a.I(f"v_cvt_pk_bf16_f32 v{pk}, v{up}, v{up + 1}")
        a.I(f"v_cvt_pk_bf16_f32 v{pk + 1}, v{up + 2}, v{up + 3}")
        a.I(f"buffer_store_dwordx2 {v(pk, 2)}, v{vT}, {s(sOUT, 4)}, s{sT + j} offen")
    a.L("P2_FIN")
    st_("end")
    st_.flush(sWid, 16, 0x9000000, sY, vT + 1)
    a.L("P2_END")
    a.I("s_endpgm")
    return a, lds


HEADER = """; gemnet triplet message passing: two launches
;  gp2: one workgroup per bucket: accumulates its triplets in LDS and writes the output rows
"""


def kd(name, nv, ns):
    acc = (nv + 3) // 4 * 4
    return f""".amdhsa_kernel {name}
  .amdhsa_next_free_vgpr {nv}
  .amdhsa_next_free_sgpr {ns}
  .amdhsa_accum_offset {acc}
  .amdhsa_group_segment_fixed_size 0
  .amdhsa_kernarg_size 112
  .amdhsa_user_sgpr_count 2
  .amdhsa_user_sgpr_kernarg_segment_ptr 1
  .amdhsa_system_sgpr_workgroup_id_x 1
  .amdhsa_float_denorm_mode_32 3
  .amdhsa_float_denorm_mode_16_64 3
.end_amdhsa_kernel
"""


def build(c):
    p1, lds1 = gen_p1(c)
    p2, lds2 = gen_p2(c)
    n1 = p1.fix_hazards()
    n2 = p2.fix_hazards()
    v1, s1 = p1.max_regs()
    v2, s2 = p2.max_regs()
    out = HEADER
    out += f"; @launch kernel=gp1_kernel grid=({c.G1},1,1) block=({c.TPB1},1,1) lds={lds1}\n"
    out += f"; @launch kernel=gp2_kernel grid=({NB},1,1) block=(1024,1,1) lds={lds2}\n"
    out += '.amdgcn_target "amdgcn-amd-amdhsa--gfx950"\n.text\n'
    for name, k in (("gp1_kernel", p1), ("gp2_kernel", p2)):
        out += f".globl {name}\n.p2align 8\n.type {name},@function\n{name}:\n" + k.text()
    out += "TEXT_END:\n"
    out += '.section .rodata,"a"\n.p2align 6\n'
    out += kd("gp1_kernel", v1, s1)
    out += ".p2align 6\n"
    out += kd("gp2_kernel", v2, s2)
    info = f"p1: vgpr {v1} sgpr {s1} lds {lds1} nops {n1}; p2: vgpr {v2} sgpr {s2} lds {lds2} nops {n2}; NC {c.NC} CB {c.CB} CPW {c.CPW} EPL {c.EPL}"
    return out, info


if __name__ == "__main__":
    kw = {}
    outp = "standalone__molecular_angular_gemnet__graph.s"
    for arg in sys.argv[1:]:
        k, val = arg.split("=", 1)
        if k == "out":
            outp = val
            continue
        try:
            val = int(val)
        except ValueError:
            pass
        kw[k] = val
    c = Cfg(**kw)
    txt, info = build(c)
    open(outp, "w").write(txt)
    print(info)
```

```python
import sys, os
sys.path.insert(0, os.path.dirname(__file__))
from asmlib import Asm, Alloc, v, s

E = 400000
T = 6400000
NB = 256
S = 1568
MAGIC = 2739138
KFIX = 16

WS_OFFS = 0x6000000
WS_MDT = 0x7000000
WS_MX = 0x7600000
WS_GT = 0x7800000
GT_BYTES = 0x280000


import struct


def f32bits(x):
    return struct.unpack('<I', struct.pack('<f', x))[0]


class Cfg:
    def __init__(self, **kw):
        self.NT = 4
        self.nb = 8
        self.GPT = 5
        self.TPB1 = 640
        self.G1 = 250
        self.ld_in = "nt"
        self.st_rec = ""
        self.ld_rec = ""
        self.nbG = 14
        self.nbR = 14
        self.sub = 4
        self.lead = 2
        self.g0 = 0
        self.lag = 3
        self.cpb = 1
        self.nset = 2
        self.wspread = 5
        self.aorder = 0
        self.rscan = 0
        self.agap = 2
        self.cpf = 0
        self.cpf2 = 0
        self.order = 0
        self.e0 = 190
        self.nb0 = 6
        self.q1 = 2
        self.scanw = 15
        self.useG = 0
        self.bsh = 11
        self.cps = 1
        self.npf = 0
        self.tbar = 1
        self.aspread = 5
        self.early = 1
        self.kbit = 3
        self.lead2 = 4
        self.stamps = 0
        self.nogather = 0
        self.nocomp = 0
        self.__dict__.update(kw)
        self.TA = max(0, (E - self.NT * (E * self.e0 // 1000)) // max(1, self.NT - 1))
        self.MT = (self.NT << 32) // (E + self.TA)
        self.C = self.TPB1 * self.GPT * 4
        self.NC = (T + self.C - 1) // self.C
        rem = T - (self.NC - 1) * self.C
        assert rem % (self.TPB1 * 4) == 0
        self.LASTG = rem // (self.TPB1 * 4)
        assert not self.useG
        self.CB = self.C * 8
        assert self.C < 65536
        assert self.CB % 16 == 0
        assert self.NC * self.CB <= WS_OFFS
        self.CPW = (self.NC + 15) // 16
        self.EPL = (self.CPW + 63) // 64
        self.CPW = (self.CPW + self.EPL - 1) // self.EPL * self.EPL


def srd(a, d, base_lo, base_hi, nbytes, add=0):
    if add:
        a.I(f"s_add_u32 s{d}, s{base_lo}, {hex(add)}")
        a.I(f"s_addc_u32 s{d + 1}, s{base_hi}, 0")
    else:
        a.I(f"s_mov_b32 s{d}, s{base_lo}")
        a.I(f"s_mov_b32 s{d + 1}, s{base_hi}")
    a.I(f"s_mov_b32 s{d + 2}, {hex(nbytes)}")
    a.I(f"s_mov_b32 s{d + 3}, 0x20000")


class Stamper:
    def __init__(self, a, on, vreg, sreg):
        self.a, self.on, self.v, self.s, self.n = a, on, vreg, sreg, 0
        self.names = []

    def __call__(self, name):
        if not self.on:
            return
        a = self.a
        a.I(f"s_memtime s[{self.s}:{self.s + 1}]")
        a.I("s_waitcnt lgkmcnt(0)")
        a.I(f"v_writelane_b32 v{self.v}, s{self.s}, {self.n}")
        self.names.append(name)
        self.n += 1

    def flush(self, sWid, nwaves, wsoff, ssrd, vtmp):
        if not self.on:
            return
        a = self.a
        a.I("s_mov_b64 exec, -1")
        a.I(f"s_load_dwordx2 s[{self.s}:{self.s + 1}], s[0:1], 104")
        a.I("s_waitcnt lgkmcnt(0)")
        srd(a, ssrd, self.s, self.s + 1, 0x1000000, wsoff)
        a.I(f"s_mul_i32 s{self.s}, s2, {nwaves}")
        a.I(f"s_add_u32 s{self.s}, s{self.s}, s{sWid}")
        a.I(f"s_lshl_b32 s{self.s}, s{self.s}, 8")
        a.I(f"v_and_b32 v{vtmp}, 63, v0")
        a.I(f"v_lshlrev_b32 v{vtmp}, 2, v{vtmp}")
        a.I(f"buffer_store_dword v{self.v}, v{vtmp}, s[{ssrd}:{ssrd + 3}], s{self.s} offen")
        print("stamps:", " ".join(self.names))


def scan(a, regs, op):
    for sh in (1, 2, 4, 8):
        for r in regs:
            a.I(f"{op}_dpp v{r}, v{r}, v{r} row_shr:{sh} row_mask:0xf bank_mask:0xf bound_ctrl:0")
    for r in regs:
        a.I(f"{op}_dpp v{r}, v{r}, v{r} row_bcast:15 row_mask:0xa bank_mask:0xf")
    for r in regs:
        a.I(f"{op}_dpp v{r}, v{r}, v{r} row_bcast:31 row_mask:0xc bank_mask:0xf")


def scan_add(a, regs):
    scan(a, regs, "v_add_u32")


def scan_max(a, regs):
    scan(a, regs, "v_max_u32")


def md_dots(a, m01, m23, W, t):
    for d in range(4):
        a.I(f"v_dot2_f32_bf16 v{t + d}, v{m23}, s{W + 2 * d + 1}, 0")
    for d in range(4):
        a.I(f"v_dot2_f32_bf16 v{t + d}, v{m01}, s{W + 2 * d}, v{t + d}")


def md_pack(a, t, out01, out23):
    a.I(f"v_cvt_pk_bf16_f32 v{out01}, v{t}, v{t + 1}")
    a.I(f"v_cvt_pk_bf16_f32 v{out23}, v{t + 2}, v{t + 3}")


def pack4(a, dst4, tmp):
    for t in range(4):
        a.I(f"s_mov_b32 s{tmp + t}, s{dst4[t]}")
    for d in range(4):
        pk = "s_pack_ll_b32_b16" if d % 2 == 0 else "s_pack_hh_b32_b16"
        a.I(f"{pk} s{dst4[d]}, s{tmp + d // 2}, s{tmp + 2 + d // 2}")


def code_prefetch(a, name, first, last, sP, sWid, vOff, vDst, nmax):
    a.I(f"s_getpc_b64 s[{sP}:{sP + 1}]")
    a.L(f"{name}_PC")
    a.I(f"s_sub_u32 s{sP}, s{sP}, {name}_PC-{first}")
    a.I(f"s_subb_u32 s{sP + 1}, s{sP + 1}, 0")
    a.I(f"v_lshlrev_b32 v{vOff}, 7, v0")
    a.I(f"s_cmp_eq_u32 s{sWid}, 0")
    for j in range(nmax):
        a.I(f"v_min_u32 v{vOff + 1}, {last}-{first}-4, v{vOff}")
        a.I("s_cselect_b64 exec, -1, 0")
        a.vmem(f"global_load_dword v{vDst}, v{vOff + 1}, s[{sP}:{sP + 1}]", "cpf")
        a.I("s_mov_b64 exec, -1")
        a.I(f"v_add_u32 v{vOff}, 0x2000, v{vOff}")


def gen_p1(c):
    a = Asm()
    NT, GPT, TPB, C, NC, CB, G1 = c.NT, c.GPT, c.TPB1, c.C, c.NC, c.CB, c.G1
    NWV = TPB // 64
    MT = c.MT
    CNT = CB
    WT = 4096
    lds = CB + 4096 + 32
    va = Alloc("v", 1, 256)
    vT8 = va.get(); vT16 = va.get(); vOne = va.get()
    vCnt16 = va.get()
    vOffA = va.get()
    vZ = va.get(4, 2)
    pII = va.get(4 * GPT, 2)
    pIO = va.get(4 * GPT, 2)
    pAN = va.get(2 * GPT, 2)
    pool0 = va.get(0, 2)
    vX = va.get(8 * GPT, 2)
    if not c.useG:
        ME = [vX + 2 * i + 1 for i in range(4 * GPT)]
    elif c.early:
        vME = va.get(4 * GPT, 2)
        ME = [vME + i for i in range(4 * GPT)]
    else:
        ME = [pIO + i for i in range(4 * GPT)]
    vKA = va.get(4 * GPT, 2)
    vRK = va.get(4 * GPT, 2)
    pool1 = va.get(0, 2)
    vT = va.get(12, 2)
    tt = pool0
    assert pool1 - pool0 >= 44
    sChunk, sWid, sMaskHi, sMagic, sNegS2, sO4, sO2, sPre, sRecOff = 3, 4, 5, 6, 7, 8, 9, 10, 11
    sTmp = 14
    sIN, sOUT, sANG, sM = 16, 20, 24, 28
    sW = 32
    sREC, sOFF = 40, 44
    sWt = 48
    sCen = 96
    sPT = 8
    a.I(f"s_cmp_ge_u32 s2, {G1}")
    a.I("s_cbranch_scc1 P1_END")
    st_ = Stamper(a, c.stamps, va.get() if c.stamps else 0, 100)
    if c.stamps:
        a.I(f"v_mov_b32 v{st_.v}, 0")
    st_("start")
    a.I("s_load_dwordx4 s[48:51], s[0:1], 0")
    a.I("s_load_dwordx2 s[52:53], s[0:1], 16")
    a.I("s_load_dwordx4 s[56:59], s[0:1], 32")
    a.I("s_load_dwordx4 s[60:63], s[0:1], 56")
    a.I("s_load_dwordx2 s[64:65], s[0:1], 72")
    a.I("s_load_dwordx2 s[12:13], s[0:1], 104")
    a.I(f"v_lshlrev_b32 v{vT8}, 3, v0")
    a.I(f"v_lshlrev_b32 v{vT16}, 4, v0")
    a.I(f"v_mov_b32 v{vZ}, 0")
    a.I(f"v_mov_b32 v{vZ + 1}, 0")
    a.I(f"v_mov_b32 v{vZ + 2}, 0")
    a.I(f"v_mov_b32 v{vZ + 3}, 0")
    a.I(f"v_mov_b32 v{vOne}, 1")
    a.I(f"v_add_u32 v{vCnt16}, {CNT}, v{vT16}")
    a.I(f"v_lshrrev_b32 v{vT}, 6, v0")
    a.I(f"v_readfirstlane_b32 s{sWid}, v{vT}")
    a.I(f"s_mov_b32 s{sChunk}, s2")
    a.I(f"s_mov_b32 s{sMaskHi}, 0xffff0000")
    if c.cpf:
        code_prefetch(a, "P1", "gp1_kernel", "TEXT_END", 66, sWid, vT + 2, vRK + 4 * GPT - 1, c.cpf)

    def zero_counters(lbl):
        if TPB > 256:
            a.I(f"s_cmp_ge_u32 s{sWid}, 4")
            a.I(f"s_cbranch_scc1 {lbl}")
        a.I(f"ds_write_b128 v{vCnt16}, {v(vZ, 4)}")
        a.L(lbl)
    zero_counters("P1_Z0")
    a.I(f"v_lshrrev_b32 v{vOffA}, 1, v0")
    a.I(f"s_mov_b32 s{sTmp}, {NC * 32}")
    a.I(f"v_mul_lo_u32 v{vOffA}, v{vOffA}, s{sTmp}")
    a.I(f"v_and_b32 v{vT}, 1, v0")
    a.I(f"v_lshl_add_u32 v{vOffA}, v{vT}, 4, v{vOffA}")
    a.I("s_waitcnt lgkmcnt(0)")
    srd(a, sIN, 50, 51, T * 4)
    srd(a, sOUT, 52, 53, T * 4)
    srd(a, sANG, 56, 57, T * 2)
    pol = (" " + c.ld_in) if c.ld_in else ""

    def issue_inputs(schunk):
        a.I(f"s_mul_i32 s{sO4}, s{schunk}, {C * 4}")
        a.I(f"s_mul_i32 s{sO2}, s{schunk}, {C * 2}")
        for g in range(GPT):
            a.vmem(f"buffer_load_dwordx4 {v(pII + 4 * g, 4)}, v{vT16}, {s(sIN, 4)}, s{sO4} offen{pol}", f"ii{g}")
            a.vmem(f"buffer_load_dwordx4 {v(pIO + 4 * g, 4)}, v{vT16}, {s(sOUT, 4)}, s{sO4} offen{pol}", f"io{g}")
            a.vmem(f"buffer_load_dwordx2 {v(pAN + 2 * g, 2)}, v{vT8}, {s(sANG, 4)}, s{sO2} offen{pol}", f"an{g}")
            if g + 1 < GPT:
                a.I(f"s_add_u32 s{sO4}, s{sO4}, {TPB * 16}")
                a.I(f"s_add_u32 s{sO2}, s{sO2}, {TPB * 8}")

    issue_inputs(sChunk)
    srd(a, sM, 48, 49, E * 8)
    RPW = (E + G1 - 1) // G1
    NR_ = (RPW + TPB - 1) // TPB
    assert NR_ <= 4
    vMRa = tt
    vMR = tt + 4
    vS = tt + 12
    a.I(f"s_mul_i32 s{sMagic}, s2, {RPW * 8}")
    for r in range(NR_):
        lim = RPW - r * TPB
        a.I(f"v_add_u32 v{vMRa + r}, {r * TPB * 8}, v{vT8}")
        if lim < TPB:
            a.I(f"v_cmp_gt_u32 vcc, {lim}, v0")
            a.I(f"v_mov_b32 v{vT}, 0x7ffffff0")
            a.I(f"v_cndmask_b32 v{vMRa + r}, v{vT}, v{vMRa + r}, vcc")
        a.vmem(f"buffer_load_dwordx2 {v(vMR + 2 * r, 2)}, v{vMRa + r}, {s(sM, 4)}, s{sMagic} offen", f"mr{r}")
    a.I(f"s_mov_b32 s{sTmp}, s60")
    a.I(f"s_mov_b32 s{sTmp + 1}, s61")
    a.I("s_mov_b32 s10, s62")
    a.I("s_mov_b32 s11, s63")
    a.I("s_load_dwordx8 s[40:47], s[64:65], 0")
    a.I(f"s_load_dwordx4 s[{sCen}:{sCen + 3}], s[58:59], 0")
    a.I(f"s_load_dwordx16 s[{sWt}:{sWt + 15}], s[10:11], 0")
    a.I(f"s_load_dwordx16 s[{sWt + 16}:{sWt + 31}], s[10:11], 64")
    a.I(f"s_load_dwordx16 s[{sWt + 32}:{sWt + 47}], s[10:11], 128")
    a.I("s_waitcnt lgkmcnt(0)")
    r = 40
    for d in range(4):
        pk = "s_pack_ll_b32_b16" if d % 2 == 0 else "s_pack_hh_b32_b16"
        a.I(f"{pk} s{sW + 2 * d}, s{r + d // 2}, s{r + 2 + d // 2}")
        a.I(f"{pk} s{sW + 2 * d + 1}, s{r + 4 + d // 2}, s{r + 6 + d // 2}")
    sMDT, sGT = 40, 44
    srd(a, sMDT, 12, 13, E * 8, WS_MDT)
    srd(a, sGT, 12, 13, GT_BYTES, WS_GT)
    NTW = (1024 + G1 - 1) // G1
    EPW = NTW * 64
    while 1024 % NTW:
        NTW += 1
    EPW = NTW * 64
    assert NTW <= NWV
    a.I(f"s_cmp_lt_u32 s{sWid}, {NWV - NTW}")
    a.I("s_cbranch_scc1 P1_TB1")
    a.I(f"s_cmp_ge_u32 s2, {(1024 + NTW - 1) // NTW}")
    a.I("s_cbranch_scc1 P1_TB1")

    def ws_reg(j, l, d):
        base = sWt + 12 * j
        return [base + 2 * l, base + 2 * l + 1, base + 6 + 2 * l, base + 6 + 2 * l + 1][d]
    for j in range(4):
        for l in range(3):
            pack4(a, [ws_reg(j, l, t) for t in range(4)], sPT)
    vIdx = tt + 14
    vFlag = tt + 13
    vDd = tt + 15
    vr = tt + 16
    vRBF = tt + 24
    vg = tt + 28
    vs_ = tt + 40
    a.I(f"s_mul_i32 s{sPT}, s2, {EPW}")
    a.I(f"v_subrev_u32 v{vIdx}, {(NWV - NTW) * 64}, v0")
    a.I(f"v_add_u32 v{vIdx}, s{sPT}, v{vIdx}")
    a.I(f"v_lshlrev_b32 v{vDd}, 16, v{vIdx}")
    for r in range(8):
        if r % 2 == 0:
            a.I(f"s_lshl_b32 s{sPT + r % 4}, s{sCen + r // 2}, 16")
        else:
            a.I(f"s_and_b32 s{sPT + r % 4}, s{sCen + r // 2}, 0xffff0000")
        a.I(f"v_subrev_f32 v{vr + r}, s{sPT + r % 4}, v{vDd}")
    for r in range(8):
        a.I(f"v_cvt_pk_bf16_f32 v{vr + r}, 0, v{vr + r}")
    for r in range(8):
        a.I(f"v_mul_f32 v{vr + r}, v{vr + r}, v{vr + r}")
    for r in range(8):
        a.I(f"v_cvt_pk_bf16_f32 v{vr + r}, 0, v{vr + r}")
    for r in range(8):
        a.I(f"v_mul_f32 v{vr + r}, 0xc1200000, v{vr + r}")
    for r in range(8):
        a.I(f"v_cvt_pk_bf16_f32 v{vr + r}, 0, v{vr + r}")
    for r in range(8):
        a.I(f"v_mul_f32 v{vr + r}, 0x3fb8aa3b, v{vr + r}")
    for r in range(8):
        a.I(f"v_exp_f32 v{vr + r}, v{vr + r}")
    for q in range(4):
        a.I(f"v_cvt_pk_bf16_f32 v{vRBF + q}, v{vr + 2 * q}, v{vr + 2 * q + 1}")
    for q in range(4):
        for l in range(3):
            for d in range(4):
                src2 = "0" if q == 0 else f"v{vg + 4 * l + d}"
                a.I(f"v_dot2_f32_bf16 v{vg + 4 * l + d}, v{vRBF + q}, s{ws_reg(q, l, d)}, {src2}")
    a.I(f"s_load_dwordx16 s[{sWt}:{sWt + 15}], s[{sTmp}:{sTmp + 1}], 0")
    for d in range(4):
        a.I(f"v_add_f32 v{vs_ + d}, |v{vg + d}|, |v{vg + 4 + d}|")
    for d in range(4):
        a.I(f"v_add_f32 v{vs_ + d}, v{vs_ + d}, |v{vg + 8 + d}|")
    a.I(f"v_add_f32 v{vr}, v{vs_}, v{vs_ + 1}")
    a.I(f"v_add_f32 v{vr + 1}, v{vs_ + 2}, v{vs_ + 3}")
    a.I(f"v_add_f32 v{vr}, v{vr}, v{vr + 1}")
    a.I(f"v_cmp_gt_u32 vcc, 0x7f000000, v{vr}")
    for d in range(4):
        a.I(f"v_frexp_exp_i32_f32 v{vs_ + d}, v{vs_ + d}")
    a.I(f"s_movk_i32 s{sPT}, -60")
    for d in range(4):
        a.I(f"v_med3_i32 v{vs_ + d}, v{vs_ + d}, s{sPT}, 60")
    vSH = vDd
    a.I(f"v_and_b32 v{vSH}, 0xff, v{vs_}")
    for d in range(1, 4):
        a.I(f"v_and_b32 v{vr + d}, 0xff, v{vs_ + d}")
        a.I(f"v_lshl_or_b32 v{vSH}, v{vr + d}, {8 * d}, v{vSH}")
    for d in range(4):
        a.I(f"v_sub_u32 v{vs_ + d}, 0, v{vs_ + d}")
    for l in range(3):
        for d in range(4):
            a.I(f"v_ldexp_f32 v{vg + 4 * l + d}, v{vg + 4 * l + d}, v{vs_ + d}")
    a.I(f"v_cndmask_b32 v{vr + 7}, 1, 0, vcc") if False else None
    a.I(f"v_mov_b32 v{vr + 7}, 1")
    a.I(f"v_cndmask_b32 v{vFlag}, v{vr + 7}, v{vZ}, vcc")
    for d in range(4):
        a.I(f"v_cvt_pk_bf16_f32 v{vr + d}, v{vg + d}, v{vg + 4 + d}")
    a.I(f"v_cvt_pk_bf16_f32 v{vr + 4}, v{vg + 8}, v{vg + 9}")
    a.I(f"v_cvt_pk_bf16_f32 v{vr + 5}, v{vg + 10}, v{vg + 11}")
    a.I("s_waitcnt lgkmcnt(0)")
    for q in range(4):
        pack4(a, [sWt + 4 * q + t for t in range(4)], sPT)
    for q in range(4):
        for d in range(4):
            src2 = "0" if q == 0 else f"v{vs_ + d}"
            a.I(f"v_dot2_f32_bf16 v{vs_ + d}, v{vRBF + q}, s{sWt + q * 4 + d}, {src2}")
    a.I(f"v_lshlrev_b32 v{vg}, 5, v{vIdx}")
    a.I(f"v_lshlrev_b32 v{vg + 1}, 3, v{vIdx}")
    a.I(f"s_mov_b32 s{sPT + 1}, 0x200000")
    a.I(f"v_mov_b32 v{vr + 6}, v{vSH}")
    a.I(f"v_mov_b32 v{vr + 7}, v{vFlag}")
    a.I(f"v_cvt_pk_bf16_f32 v{vg + 2}, v{vs_}, v{vs_ + 1}")
    a.I(f"v_cvt_pk_bf16_f32 v{vg + 3}, v{vs_ + 2}, v{vs_ + 3}")
    a.I(f"buffer_store_dwordx4 {v(vr, 4)}, v{vg}, {s(sGT, 4)}, 0 offen")
    a.I(f"buffer_store_dwordx4 {v(vr + 4, 4)}, v{vg}, {s(sGT, 4)}, 0 offen offset:16")
    a.I(f"buffer_store_dwordx2 {v(vg + 2, 2)}, v{vg + 1}, {s(sGT, 4)}, s{sPT + 1} offen")
    a.L("P1_TB1")
    a.vwait_all()
    vMx = tt + 12
    vSm = tt + 13
    a.I(f"v_mov_b32 v{vMx}, 0")
    a.I(f"v_mov_b32 v{vSm}, 0")
    a.I(f"s_mov_b32 s{sPT}, 0x7fff0000")
    for r in range(NR_):
        md_dots(a, vMR + 2 * r, vMR + 2 * r + 1, sW, vT + 4 * (r % 2))
        md_pack(a, vT + 4 * (r % 2), vMR + 2 * r, vMR + 2 * r + 1)
        a.I(f"buffer_store_dwordx2 {v(vMR + 2 * r, 2)}, v{vMRa + r}, {s(sMDT, 4)}, s{sMagic} offen")
        for h in range(2):
            a.I(f"v_lshlrev_b32 v{vT + 8}, 16, v{vMR + 2 * r + h}")
            a.I(f"v_and_b32 v{vT + 9}, s{sPT}, v{vMR + 2 * r + h}")
            a.I(f"v_and_b32 v{vT + 8}, s{sPT}, v{vT + 8}")
            a.I(f"v_max3_u32 v{vMx}, v{vMx}, v{vT + 8}, v{vT + 9}")
            a.I(f"v_add_f32 v{vSm}, v{vSm}, v{vT + 9}")
            a.I(f"v_add_f32 v{vSm}, v{vSm}, v{vT + 8}")
    scan_max(a, [vMx])
    scan(a, [vSm], "v_add_f32")
    srd(a, sGT, 12, 13, 0x10000, WS_MX)
    a.I(f"s_mul_i32 s{sPT}, s2, {NWV}")
    a.I(f"s_add_u32 s{sPT}, s{sPT}, s{sWid}")
    a.I(f"s_lshl_b32 s{sPT}, s{sPT}, 2")
    a.I(f"s_mov_b64 exec, 0x8000000000000000") if False else None
    a.I(f"v_readlane_b32 s{sPT + 1}, v{vMx}, 63")
    a.I(f"v_readlane_b32 s{sPT + 2}, v{vSm}, 63")
    a.I(f"s_add_u32 s{sPT + 3}, s{sPT}, 0x4000")
    a.I(f"v_mov_b32 v{vMx}, s{sPT + 1}")
    a.I(f"v_mov_b32 v{vSm}, s{sPT + 2}")
    a.I("s_mov_b64 exec, 1")
    a.I(f"buffer_store_dword v{vMx}, v{vZ}, {s(sGT, 4)}, s{sPT} offen")
    a.I(f"buffer_store_dword v{vSm}, v{vZ}, {s(sGT, 4)}, s{sPT + 3} offen")
    a.I("s_mov_b64 exec, -1")
    a.I("s_nop 4")
    srd(a, sREC, 12, 13, NC * CB)
    srd(a, sOFF, 12, 13, 128 * NC * 32, WS_OFFS)
    sMT = 13
    a.I(f"s_mov_b32 s{sMT}, {MT}")
    sCnt = 12
    a.I(f"s_mov_b32 s{sCnt}, {CNT}")
    a.I(f"s_mov_b32 s{sMagic}, {MAGIC}")
    a.I(f"s_mov_b32 s{sNegS2}, {-(S // 2)}")
    a.I("s_waitcnt vmcnt(0) lgkmcnt(0)")
    st_("tables")
    ncopy = (CB + TPB * 16 - 1) // (TPB * 16)
    a.vm = []
    for g in range(GPT):
        a.vm += [f"ii{g}", f"io{g}", f"an{g}"]
    a.vm += (["offst"] if c.early else []) + ["cp"] * ncopy
    a.L("P1_LOOP")
    a.I("s_barrier")
    st_("top")
    a.I(f"s_cmp_eq_u32 s{sChunk}, {NC - 1}")
    a.I(f"s_cselect_b32 s{sPre}, {c.LASTG}, {GPT}")
    G = c.useG
    for g in range(GPT):
        a.vwait(f"an{g}")
        for k in range(4):
            i = 4 * g + k
            a.I(f"v_mul_hi_u32_u24 v{vT + k}, s{sMagic}, v{pIO + i}")
            if c.TA:
                a.I(f"v_add_u32 v{vT + 4 + k}, {c.TA}, v{pII + i}")
                a.I(f"v_mul_hi_u32_u24 v{vT + 4 + k}, s{sMT}, v{vT + 4 + k}")
            else:
                a.I(f"v_mul_hi_u32_u24 v{vT + 4 + k}, s{sMT}, v{pII + i}")
        for k in range(4):
            i = 4 * g + k
            a.I(f"v_lshl_add_u32 v{vKA + i}, v{vT + k}, 4, s{sCnt}")
            a.I(f"v_lshlrev_b32 v{vX + 2 * i}, 3, v{pII + i}")
            a.I(f"v_lshlrev_b32 v{vT + k}, 3, v{vT + k}")
            a.I(f"v_lshlrev_b32 v{ME[i]}, 2, v{pIO + i}")
            a.I(f"v_lshl_add_u32 v{vKA + i}, v{vT + 4 + k}, 2, v{vKA + i}")
            a.I(f"v_mad_i32_i24 v{ME[i]}, v{vT + k}, s{sNegS2}, v{ME[i]}")
            an = pAN + 2 * g + k // 2
            if k % 2 == 0:
                a.I(f"v_lshl_or_b32 v{ME[i]}, v{an}, 16, v{ME[i]}")
            else:
                a.I(f"v_and_or_b32 v{ME[i]}, v{an}, s{sMaskHi}, v{ME[i]}")
            if c.useG:
                a.I(f"v_mov_b32 v{vX + 2 * i + 1}, v{ME[i]}")
        if G:
            for k in range(4):
                i = 4 * g + k
                a.I(f"v_cmp_eq_u32 vcc, 0, v{vT + 4 + k}")
                a.I(f"v_mov_b32 v{vT + 8 + k}, 8")
                a.I("s_mov_b64 exec, vcc")
                a.vmem(f"buffer_load_dwordx2 {v(vX + 2 * i, 2)}, v{vX + 2 * i}, {s(sM, 4)}, 0 offen", f"md{i}")
                a.I(f"v_mov_b32 v{vT + 8 + k}, 12")
                a.I("s_mov_b64 exec, -1")
        if g >= c.LASTG:
            a.I(f"s_cmp_le_u32 s{sPre}, {g}")
            a.I(f"s_cbranch_scc1 P1_HS{g}")
        for k in range(4):
            i = 4 * g + k
            a.I(f"ds_add_rtn_u32 v{vRK + i}, v{vKA + i}, v{(vT + 8 + k) if G else vOne}")
        if g >= c.LASTG:
            a.L(f"P1_HS{g}")
    st_("hist_issued")
    if c.early:
        a.I(f"s_add_u32 s{sTmp}, s{sChunk}, {G1}")
        issue_inputs(sTmp)
    a.I("s_waitcnt lgkmcnt(0)")
    a.I("s_barrier")
    st_("barB")
    n0 = vT
    pA, pB, iA, iB = vT + 4, vT + 5, vT + 6, vT + 7
    x = vT + 8
    sS = 48
    sTot = 64
    if TPB > 256:
        a.I(f"s_cmp_ge_u32 s{sWid}, 4")
        a.I("s_cbranch_scc1 P1_S1")
    a.I(f"ds_read_b128 {v(n0, 4)}, v{vCnt16}")
    a.I("s_waitcnt lgkmcnt(0)")
    a.I(f"v_lshl_or_b32 v{pA}, v{n0 + 1}, 16, v{n0}")
    a.I(f"v_lshl_or_b32 v{pB}, v{n0 + 3}, 16, v{n0 + 2}")
    a.I(f"v_mov_b32 v{iA}, v{pA}")
    a.I(f"v_mov_b32 v{iB}, v{pB}")
    scan_add(a, [iA, iB])
    a.I(f"v_readlane_b32 s{sS}, v{iA}, 63")
    a.I(f"v_readlane_b32 s{sS + 1}, v{iB}, 63")
    a.I(f"s_lshl_b32 s{sTmp + 1}, s{sWid}, 3")
    a.I(f"s_add_u32 s{sTmp + 1}, s{sTmp + 1}, s{sCnt}")
    a.I(f"v_mov_b32 v{x + 2}, s{sTmp + 1}")
    a.I(f"v_mov_b32 v{x}, s{sS}")
    a.I(f"v_mov_b32 v{x + 1}, s{sS + 1}")
    a.I(f"ds_write_b64 v{x + 2}, {v(x, 2)} offset:{WT}")
    a.I("s_waitcnt lgkmcnt(0)")
    a.L("P1_S1")
    a.I("s_barrier")
    if TPB > 256:
        a.I(f"s_cmp_ge_u32 s{sWid}, 4")
        a.I("s_cbranch_scc1 P1_S2")
    a.I(f"v_and_b32 v{x}, 7, v0")
    a.I(f"v_lshl_add_u32 v{x}, v{x}, 2, s{sCnt}")
    a.I(f"ds_read_b32 v{x}, v{x} offset:{WT}")
    a.I(f"v_sub_u32 v{iA}, v{iA}, v{pA}")
    a.I(f"v_sub_u32 v{iB}, v{iB}, v{pB}")
    a.I("s_waitcnt lgkmcnt(0)")
    for l in range(8):
        a.I(f"v_readlane_b32 s{sS + l}, v{x}, {l}")
    a.I(f"s_add_u32 s{sS + 8}, s{sS}, s{sS + 2}")
    a.I(f"s_add_u32 s{sS + 8}, s{sS + 8}, s{sS + 4}")
    a.I(f"s_add_u32 s{sS + 8}, s{sS + 8}, s{sS + 6}")
    a.I(f"s_add_u32 s{sS + 9}, s{sS + 1}, s{sS + 3}")
    a.I(f"s_add_u32 s{sS + 9}, s{sS + 9}, s{sS + 5}")
    a.I(f"s_add_u32 s{sS + 9}, s{sS + 9}, s{sS + 7}")
    a.I(f"s_mov_b32 s{sS + 10}, 0")
    a.I(f"s_mov_b32 s{sS + 11}, 0")
    for w in range(3):
        a.I(f"s_cmp_gt_u32 s{sWid}, {w}")
        a.I(f"s_cselect_b32 s{sS + 2 * w}, s{sS + 2 * w}, 0")
        a.I(f"s_cselect_b32 s{sS + 2 * w + 1}, s{sS + 2 * w + 1}, 0")
        a.I(f"s_add_u32 s{sS + 10}, s{sS + 10}, s{sS + 2 * w}")
        a.I(f"s_add_u32 s{sS + 11}, s{sS + 11}, s{sS + 2 * w + 1}")
    assert TPB == 256 or c.LASTG == GPT
    a.I(f"s_add_u32 s{sTot}, s{sS + 8}, s{sS + 9}")
    a.I(f"s_lshr_b32 s{sS + 12}, s{sTot}, 16")
    a.I(f"s_and_b32 s{sTot}, s{sTot}, 0xffff")
    a.I(f"s_add_u32 s{sTot}, s{sTot}, s{sS + 12}")
    a.I(f"s_lshl_b32 s{sTot}, s{sTot}, 3")
    a.I(f"s_and_b32 s{sS}, s{sS + 8}, 0xffff")
    a.I(f"s_lshr_b32 s{sS + 1}, s{sS + 8}, 16")
    a.I(f"s_add_u32 s{sS + 1}, s{sS + 1}, s{sS}")
    a.I(f"s_and_b32 s{sS + 2}, s{sS + 9}, 0xffff")
    a.I(f"s_add_u32 s{sS + 2}, s{sS + 2}, s{sS + 1}")
    a.I(f"s_lshl_b32 s{sS}, s{sS}, 16")
    a.I(f"s_add_u32 s{sS + 10}, s{sS + 10}, s{sS}")
    a.I(f"s_lshl_b32 s{sS + 2}, s{sS + 2}, 16")
    a.I(f"s_add_u32 s{sS + 11}, s{sS + 11}, s{sS + 1}")
    a.I(f"s_add_u32 s{sS + 11}, s{sS + 11}, s{sS + 2}")
    a.I(f"v_add_u32 v{iA}, s{sS + 10}, v{iA}")
    a.I(f"v_add_u32 v{iB}, s{sS + 11}, v{iB}")
    a.I(f"v_and_b32 v{x}, 0xffff, v{iA}")
    a.I(f"v_lshrrev_b32 v{x + 1}, 16, v{iA}")
    a.I(f"v_and_b32 v{x + 2}, 0xffff, v{iB}")
    a.I(f"v_lshrrev_b32 v{x + 3}, 16, v{iB}")
    for t in range(4):
        a.I(f"v_lshl_or_b32 v{n0 + t}, v{n0 + t}, 16, v{x + t}")
    a.I(f"ds_write_b128 v{vCnt16}, {v(x, 4)}")
    a.I("s_waitcnt lgkmcnt(0)")
    a.L("P1_S2")
    a.I(f"s_lshl_b32 s{sTmp + 1}, s{sChunk}, 5")
    a.vmem(f"buffer_store_dwordx4 {v(n0, 4)}, v{vOffA}, {s(sOFF, 4)}, s{sTmp + 1} offen", "offst")
    a.I("s_barrier")
    st_("scan")
    for g in range(GPT):
        if g >= c.LASTG:
            a.I(f"s_cmp_le_u32 s{sPre}, {g}")
            a.I("s_cbranch_scc1 P1_SCAT_DONE")
        for k in range(4):
            i = 4 * g + k
            if G:
                a.I(f"v_and_b32 v{vT + 8 + k}, 12, v{vKA + i}")
            a.I(f"ds_read_b32 v{vKA + i}, v{vKA + i}")
        if G:
            for k in range(4):
                i = 4 * g + k
                xx = vX + 2 * i
                a.I(f"v_cmp_eq_u32 s[{sS + 2 * k}:{sS + 2 * k + 1}], 0, v{vT + 8 + k}")
                a.vwait(f"md{i}", trim=(g < c.LASTG))
                md_dots(a, xx, xx + 1, sW, vT + 4 * (k % 2))
                a.I(f"s_mov_b64 exec, s[{sS + 2 * k}:{sS + 2 * k + 1}]")
                md_pack(a, vT + 4 * (k % 2), xx, xx + 1)
                a.I("s_mov_b64 exec, -1")
        a.I("s_waitcnt lgkmcnt(0)")
        for k in range(4):
            i = 4 * g + k
            a.I(f"v_add_lshl_u32 v{vKA + i}, v{vRK + i}, v{vKA + i}, 3")
            if G:
                a.I(f"ds_write2_b32 v{vKA + i}, v{vX + 2 * i}, v{vX + 2 * i + 1} offset0:0 offset1:1")
            else:
                a.I(f"ds_write_b64 v{vKA + i}, {v(vX + 2 * i, 2)}")
            if G:
                a.I(f"s_mov_b64 exec, s[{sS + 2 * k}:{sS + 2 * k + 1}]")
                a.I(f"ds_write_b32 v{vKA + i}, v{ME[i]} offset:8")
                a.I("s_mov_b64 exec, -1")
    a.L("P1_SCAT_DONE")
    if G:
        a.vwait(f"md{4 * GPT - 1}")
    a.I("s_waitcnt lgkmcnt(0)")
    st_("scat")
    a.I("s_barrier")
    st_("barE")
    if not c.early:
        a.I(f"s_add_u32 s{sTmp}, s{sChunk}, {G1}")
        issue_inputs(sTmp)
    st_("pref_issued")
    zero_counters("P1_Z1")
    a.I(f"s_mul_i32 s{sRecOff}, s{sChunk}, {CB}")
    bufs = list(range(pool0, pool1 - 3, 4))
    assert len(bufs) >= ncopy
    spol = (" " + c.st_rec) if c.st_rec else ""
    step = TPB * 16
    per = 65536 // step
    for q in range(1, (ncopy + per - 1) // per):
        a.I(f"v_add_u32 v{vT + q}, {q * per * step}, v{vT16}")
    for i in range(ncopy):
        q = i // per
        base, off = (vT16 if q == 0 else vT + q), (i % per) * step
        a.I(f"ds_read_b128 {v(bufs[i], 4)}, v{base} offset:{off}")
    for i in range(ncopy):
        n_out = ncopy - 1 - i
        a.I(f"s_waitcnt lgkmcnt({min(n_out, 15)})")
        guard = (i + 1) * step > C * 8 or c.LASTG < GPT
        if guard:
            a.I(f"s_sub_i32 s{sTmp}, s{sTot}, {i * step}")
            a.I(f"v_cmp_gt_i32 vcc, s{sTmp}, v{vT16}")
            a.I("s_mov_b64 exec, vcc")
        a.vmem(f"buffer_store_dwordx4 {v(bufs[i], 4)}, v{vT16}, {s(sREC, 4)}, s{sRecOff} offen{spol}", "cp")
        if guard:
            a.I("s_mov_b64 exec, -1")
        a.I(f"s_add_u32 s{sRecOff}, s{sRecOff}, {step}")
    st_("copy")
    a.I(f"s_add_u32 s{sChunk}, s{sChunk}, {G1}")
    a.I(f"s_cmp_lt_u32 s{sChunk}, {NC}")
    a.I("s_cbranch_scc1 P1_LOOP")
    st_.flush(sWid, NWV, 0x8000000, 92, vT)
    a.L("P1_END")
    a.I("s_endpgm")
    return a, lds


def merge(A, B):
    out = []
    la, lb = len(A), len(B)
    ia = ib = 0
    while ia < la or ib < lb:
        if ib >= lb or (ia < la and ia * lb <= ib * la):
            out.append(A[ia]); ia += 1
        else:
            out.append(B[ib]); ib += 1
    return out


def gen_p2(c):
    a = Asm()
    NT, NC, CB, EPL, CPW, nb = c.NT, c.NC, c.CB, c.EPL, c.CPW, c.nb
    SUB = c.sub
    BSH = c.bsh
    NMX = c.G1 * (c.TPB1 // 64)
    MT, TA = c.MT, c.TA
    NBT = [c.nb0 if t == 0 else nb for t in range(NT)]
    tlo = [0] + [next(i for i in range(max(0, -(-(t << 32) // MT) - TA - 2), E) if ((i + TA) * MT) >> 32 == t) for t in range(1, NT)]
    bin0 = [(tlo[t] * 8) >> BSH for t in range(NT)]
    binN = [(((tlo[t + 1] - 1) if t + 1 < NT else E - 1) * 8 >> BSH) - bin0[t] + 1 for t in range(NT)]
    NBIN = 512
    assert max(binN) <= NBIN
    ACC = 0
    GB = 4 * S * 4
    GA = GB + S * 8
    MISC = GA + S * 16
    CNT2 = MISC + 256
    BASE = CNT2 + 2 * NBIN * 4
    MARKS = BASE + (NBIN * 4 if c.rscan else 0)
    MW = SUB * 256
    assert MW % 512 == 0
    SORT = MARKS + 16 * MW
    lds = SORT + nb * 1024 * 8
    assert lds <= 163840, lds
    va = Alloc("v", 1, 128)
    vMk4 = va.get(); vMk8 = va.get()
    vLaneR = va.get()
    vP = [va.get(EPL) for _ in range(NT)]
    vDl = [va.get(EPL) for _ in range(NT)]
    vA = va.get()
    vSrt = va.get()
    vSH = va.get(2, 2)
    vD8 = va.get(2, 2)
    vZ = va.get(2, 2)
    rX = [va.get(2, 2) for _ in range(nb)]
    sX_ = [[va.get(2, 2) for _ in range(nb)] for _ in range(2)]
    rK = [va.get() for _ in range(nb)]
    sM_ = [[va.get() for _ in range(nb)] for _ in range(2)]
    vT = va.get(24, 2)
    sREC, sMDT, sXs, sY = 16, 20, 24, 28
    sB, sWid, sMode, sMkBase, sKB, sScale, sT, sOff, sMaskHi = 4, 5, 6, 7, 8, 9, 14, 15, 3
    sPtr = 32
    sSave = 42
    sOUT, sMS = 44, 48
    sWU = 56
    sN = [72 + t for t in range(4)]
    sP0 = [76 + t for t in range(4)]
    sCar = [80 + t for t in range(4)]
    sRem = [84 + t for t in range(4)]
    sSR = [88, 89]
    NW2 = (S - 1024 + 63) // 64

    a.I(f"s_cmp_ge_u32 s2, {NB}")
    a.I("s_cbranch_scc1 P2_END")
    st_ = Stamper(a, c.stamps, va.get() if c.stamps else 0, 100)
    if c.stamps:
        a.I(f"v_mov_b32 v{st_.v}, 0")
    st_("start")
    a.I(f"s_load_dwordx2 s[{sPtr}:{sPtr + 1}], s[0:1], 104")
    a.I(f"s_load_dwordx2 s[{sPtr + 2}:{sPtr + 3}], s[0:1], 24")
    a.I(f"s_load_dwordx4 s[{sPtr + 4}:{sPtr + 7}], s[0:1], 80")
    a.I(f"s_load_dwordx2 s[52:53], s[0:1], 0")
    a.I(f"s_and_b32 s{sB}, s2, 7")
    a.I(f"s_lshl_b32 s{sB}, s{sB}, 5")
    a.I(f"s_lshr_b32 s{sT}, s2, 3")
    a.I(f"s_add_u32 s{sB}, s{sB}, s{sT}")
    a.I(f"s_mov_b32 s{sMaskHi}, 0xffff0000")
    vLane = vT + 23
    a.I(f"v_and_b32 v{vLane}, 63, v0")
    a.I(f"v_lshrrev_b32 v{vT}, 6, v0")
    a.I(f"v_readfirstlane_b32 s{sWid}, v{vT}")
    if c.cpf2:
        code_prefetch(a, "P2", "gp2_kernel", "TEXT_END", 54, sWid, vT + 4, rK[0], c.cpf2)
    vC = vT + 2
    a.I(f"v_mul_u32_u24 v{vC}, {EPL}, v{vLane}")
    a.I(f"s_mul_i32 s{sT}, s{sWid}, {CPW}")
    a.I(f"v_add_u32 v{vC}, s{sT}, v{vC}")
    a.I(f"s_lshr_b32 s{sT}, s{sB}, 1")
    a.I(f"s_mul_i32 s{sT}, s{sT}, {NC * 32}")
    a.I(f"s_and_b32 s{sOff}, s{sB}, 1")
    a.I(f"s_lshl_b32 s{sOff}, s{sOff}, 4")
    a.I(f"s_add_u32 s{sT}, s{sT}, s{sOff}")
    a.I(f"v_lshlrev_b32 v{vT + 3}, 5, v{vC}")
    a.I(f"s_mul_i32 s{sOff}, s{sB}, {S * 2}")
    vE0 = vT + 1
    a.I(f"v_lshlrev_b32 v{vE0}, 1, v0")
    a.I(f"v_lshlrev_b32 v{vA}, 4, v0")
    a.I("s_waitcnt lgkmcnt(0)")
    srd(a, sXs, sPtr, sPtr + 1, 128 * NC * 32, WS_OFFS)
    vEnt = vT + 4
    for e in range(EPL):
        a.vmem(f"buffer_load_dwordx4 {v(vEnt + 4 * e, 4)}, v{vT + 3}, {s(sXs, 4)}, s{sT} offen offset:{32 * e}", f"ent{e}")
    srd(a, sY, sPtr + 2, sPtr + 3, E * 2)
    vD = vSH
    a.vmem(f"buffer_load_ushort v{vD}, v{vE0}, {s(sY, 4)}, s{sOff} offen", "d0")
    a.vmem(f"buffer_load_ushort v{vD + 1}, v{vE0}, {s(sY, 4)}, s{sOff} offen offset:2048", "d1")
    assert NMX <= 4096
    srd(a, sXs, sPtr, sPtr + 1, NMX * 4, WS_MX)
    vMxv = sX_[1][0]
    assert sX_[1][1] == vMxv + 2
    a.vmem(f"buffer_load_dwordx4 {v(vMxv, 4)}, v{vA}, {s(sXs, 4)}, 0 offen", "mx0")
    vSmv = sX_[1][2]
    assert sX_[1][3] == vSmv + 2
    srd(a, sXs, sPtr, sPtr + 1, NMX * 4, WS_MX + 0x4000)
    a.vmem(f"buffer_load_dwordx4 {v(vSmv, 4)}, v{vA}, {s(sXs, 4)}, 0 offen", "mx")
    a.I(f"s_load_dwordx8 s[64:71], s[{sPtr + 4}:{sPtr + 5}], 0")
    srd(a, sMDT, sPtr, sPtr + 1, E * 8, WS_MDT)
    srd(a, sREC, sPtr, sPtr + 1, NC * CB)
    srd(a, sOUT, sPtr + 6, sPtr + 7, E * 8)
    srd(a, sMS, 52, 53, E * 8)
    for i in range(4):
        a.I(f"v_mov_b32 v{vT + 16 + i}, 0")
    a.I(f"v_mov_b32 v{vZ}, 0")
    a.I(f"v_mov_b32 v{vZ + 1}, 0")
    nz = (4 * S * 4) // 16
    a.I(f"ds_write_b128 v{vA}, {v(vT + 16, 4)}")
    a.I(f"v_cmp_gt_u32 vcc, {nz - 1024}, v0")
    a.I(f"v_lshlrev_b32 v{vT}, 2, v0")
    a.I(f"v_add_u32 v{vT}, {CNT2}, v{vT}")
    a.I(f"ds_write_b32 v{vT}, v{vZ}")
    a.I("s_mov_b64 exec, vcc")
    a.I(f"ds_write_b128 v{vA}, {v(vT + 16, 4)} offset:16384")
    a.I("s_mov_b64 exec, -1")
    a.I(f"v_lshlrev_b32 v{vLaneR}, 3, v{vLane}")
    a.I(f"v_lshlrev_b32 v{vSrt}, 3, v0")
    a.I(f"v_add_u32 v{vSrt}, {SORT}, v{vSrt}")
    a.I(f"s_mul_i32 s{sMkBase}, s{sWid}, {MW}")
    a.I(f"s_add_u32 s{sMkBase}, s{sMkBase}, {MARKS}")
    a.I(f"v_lshl_add_u32 v{vMk4}, v{vLane}, 2, s{sMkBase}")
    a.I(f"v_lshl_add_u32 v{vMk8}, v{vLane}, 3, s{sMkBase}")
    srd(a, sY, sPtr, sPtr + 1, GT_BYTES, WS_GT)
    a.vwait(f"ent{EPL - 1}")
    st_("ent")
    vn = vT + 12
    vsum = vT + 20
    assert EPL <= 2
    for e in range(EPL):
        if e:
            a.I(f"v_add_u32 v{vC}, 1, v{vC}")
        a.I(f"v_cmp_gt_u32 vcc, {NC}, v{vC}")
        a.I(f"v_cmp_gt_u32 s[{sSave}:{sSave + 1}], {CPW // EPL}, v{vLane}")
        a.I(f"s_mov_b32 s{sT}, {CB}")
        a.I(f"s_and_b64 vcc, vcc, s[{sSave}:{sSave + 1}]")
        a.I(f"v_mul_lo_u32 v{vsum}, v{vC}, s{sT}")
        for t in range(NT):
            d = vEnt + 4 * e + t
            n_ = vn + t * EPL + e
            a.I(f"v_lshrrev_b32 v{n_}, 16, v{d}")
            a.I(f"v_and_b32 v{d}, 0xffff, v{d}")
            a.I(f"v_cndmask_b32 v{n_}, 0, v{n_}, vcc")
            a.I(f"v_lshl_add_u32 v{vDl[t] + e}, v{d}, 3, v{vsum}")
    for t in range(NT):
        if EPL == 2:
            a.I(f"v_add_u32 v{vEnt + t}, v{vn + 2 * t}, v{vn + 2 * t + 1}")
        else:
            a.I(f"v_mov_b32 v{vEnt + t}, v{vn + t}")
        a.I(f"v_mov_b32 v{vP[t]}, v{vEnt + t}")
    scan_add(a, [vP[t] for t in range(NT)])
    for t in range(NT):
        a.I(f"v_readlane_b32 s{sN[t]}, v{vP[t]}, 63")
    for t in range(NT):
        a.I(f"v_sub_u32 v{vP[t]}, v{vP[t]}, v{vEnt + t}")
        if EPL == 2:
            a.I(f"v_add_u32 v{vP[t] + 1}, v{vP[t]}, v{vn + 2 * t}")
    for t in range(NT):
        for e in range(EPL):
            a.I(f"v_lshlrev_b32 v{vsum}, 3, v{vP[t] + e}")
            a.I(f"v_cmp_ne_u32 vcc, 0, v{vn + t * EPL + e}")
            a.I(f"v_sub_u32 v{vDl[t] + e}, v{vDl[t] + e}, v{vsum}")
            a.I(f"v_cndmask_b32 v{vP[t] + e}, -1, v{vP[t] + e}, vcc")
    sTotN = sKB
    a.I(f"s_mov_b32 s{sTotN}, 0")
    for t in range(NT):
        a.I(f"s_mov_b32 s{sP0[t]}, 0")
        a.I(f"s_mov_b32 s{sCar[t]}, 0")
        a.I(f"s_mov_b32 s{sRem[t]}, s{sN[t]}")
        a.I(f"s_add_u32 s{sTotN}, s{sTotN}, s{sN[t]}")
    tA = [vT + 4, vT + 8]
    tB = [vT + 12, vT + 16]

    def table_loads():
        for j in range(2):
            a.vwait(f"d{j}")
            a.I(f"v_lshlrev_b32 v{vT + 20 + j}, 5, v{vD + j}")
            a.I(f"v_lshlrev_b32 v{vD8 + j}, 3, v{vD + j}")
            a.vmem(f"buffer_load_dwordx4 {v(tA[j], 4)}, v{vT + 20 + j}, {s(sY, 4)}, 0 offen", f"ta{j}")
            a.vmem(f"buffer_load_dwordx4 {v(tB[j], 4)}, v{vT + 20 + j}, {s(sY, 4)}, 0 offen offset:16", f"ts{j}")

    ldpol = (" " + c.ld_rec) if c.ld_rec else ""

    def set_exec_s(sreg, off):
        if off:
            a.I(f"s_sub_i32 s{sT}, s{sreg}, {off}")
            a.I(f"s_max_i32 s{sT}, s{sT}, 0")
        else:
            a.I(f"s_max_i32 s{sT}, s{sreg}, 0")
        a.I(f"s_bfm_b64 exec, s{sT}, 0")
        a.I(f"s_cmp_ge_i32 s{sT}, 64")
        a.I("s_cselect_b64 exec, -1, exec")

    def stageA_p(t, n_tot, regs, tagp):
        P = []
        k0 = 0
        while k0 < n_tot:
            n = min(SUB, n_tot - k0)

            def p(k0=k0, n=n):
                for i in range((n * 256 + 511) // 512):
                    a.I(f"ds_write_b64 v{vMk8}, {v(vZ, 2)} offset:{i * 512}")
                a.I(f"s_add_u32 s{sOff}, s{sP0[t]}, {k0 * 64}")
                for e in range(EPL):
                    a.I(f"v_subrev_u32 v{vA}, s{sOff}, v{vP[t] + e}")
                    a.I(f"v_cmp_gt_u32 vcc, {n * 64}, v{vA}")
                    a.I(f"v_lshl_add_u32 v{vA}, v{vA}, 2, s{sMkBase}")
                    a.I("s_mov_b64 exec, vcc")
                    a.I(f"ds_write_b32 v{vA}, v{vDl[t] + e}")
                    a.I("s_mov_b64 exec, -1")
                for k in range(n):
                    a.I(f"ds_read_b32 v{regs[k0 + k]}, v{vMk4} offset:{k * 256}")
                a.I(f"s_lshl_b32 s{sOff}, s{sOff}, 3")
                a.I("s_waitcnt lgkmcnt(0)")
                scan_max(a, [regs[k0 + k] for k in range(n)])
                for k in range(k0, k0 + n):
                    r = regs[k]
                    a.I(f"v_max_u32 v{r}, s{sCar[t]}, v{r}")
                    a.I(f"v_readlane_b32 s{sCar[t]}, v{r}, 63")
                    a.I(f"v_add3_u32 v{r}, v{r}, v{vLaneR}, s{sOff}")
                    a.I(f"s_add_u32 s{sOff}, s{sOff}, 512")
                    set_exec_s(sRem[t], 64 * k)
                    a.vmem(f"buffer_load_dwordx2 {v(r, 2)}, v{r}, {s(sREC, 4)}, 0 offen{ldpol}", f"{tagp}{k}")
                    a.I("s_mov_b64 exec, -1")
            P.append(p)
            k0 += n
        return P

    def stageA(t, n_tot, regs, tagp):
        for p in stageA_p(t, n_tot, regs, tagp):
            p()

    def gather(r, m, sreg, off, tag):
        set_exec_s(sreg, off)
        a.I(f"v_mov_b32 v{m}, v{r + 1}")
        a.vmem(f"buffer_load_dwordx2 {v(r, 2)}, v{r}, {s(sMDT, 4)}, 0 offen", tag)
        a.I("s_mov_b64 exec, -1")

    lblc = [0]

    def comp(r, meta, sreg, off, tag):
        n = lblc[0]; lblc[0] += 1
        m01, m23 = r, r + 1
        t = vT
        a16, a8, a4 = t, t + 1, t + 2
        af, r0, r2 = t + 3, t + 4, t + 5
        Gq = t + 8
        Gb = t + 12
        c01, c2l, c2h = t + 6, t + 7, t + 14
        md = t + 16
        g = t + 20
        set_exec_s(sreg, off)
        a.I(f"s_cbranch_execz P2_SK{n}")
        a.I(f"v_and_b32 v{a4}, 0xffff, v{meta}")
        a.I(f"v_add_u32 v{a8}, v{a4}, v{a4}")
        a.I(f"v_add_u32 v{a16}, v{a8}, v{a8}")
        a.I(f"ds_read_b64 {v(Gb, 2)}, v{a8} offset:{GB}")
        a.I(f"ds_read_b128 {v(Gq, 4)}, v{a16} offset:{GA}")
        a.I(f"v_and_b32 v{af}, s{sMaskHi}, v{meta}")
        a.I(f"v_mul_f32 v{r0}, 0.15915494, v{af}")
        a.I(f"v_mul_f32 v{r2}, 0x40400000, v{af}")
        a.I(f"v_cos_f32 v{r0}, v{r0}")
        a.I(f"v_cvt_pk_bf16_f32 v{r2}, 0, v{r2}")
        a.I(f"v_mul_f32 v{r2}, 0.15915494, v{r2}")
        a.I(f"v_mul_f32 v{af}, v{r0}, v{r0}")
        a.I(f"v_cos_f32 v{r2}, v{r2}")
        a.I(f"v_fma_f32 v{af}, v{af}, 2.0, -1.0")
        a.I(f"v_cvt_pk_bf16_f32 v{c01}, v{r0}, v{af}")
        a.I(f"v_cvt_pk_bf16_f32 v{c2l}, v{r2}, 0")
        a.I(f"v_cvt_pk_bf16_f32 v{c2h}, 0, v{r2}")
        a.I("s_waitcnt lgkmcnt(1)")
        for d in range(4):
            a.I(f"v_dot2_f32_bf16 v{g + d}, v{Gb + d // 2}, v{c2l if d % 2 == 0 else c2h}, 0")
        a.I("s_waitcnt lgkmcnt(0)")
        for d in range(4):
            a.I(f"v_dot2_f32_bf16 v{g + d}, v{Gq + d}, v{c01}, v{g + d}")
        a.vwait(tag, trim=False)
        a.I(f"v_lshlrev_b32 v{md}, 16, v{m01}")
        a.I(f"v_and_b32 v{md + 1}, s{sMaskHi}, v{m01}")
        a.I(f"v_lshlrev_b32 v{md + 2}, 16, v{m23}")
        a.I(f"v_and_b32 v{md + 3}, s{sMaskHi}, v{m23}")
        a.I(f"s_cmp_lg_u32 s{sMode}, 0")
        for d in range(4):
            a.I(f"v_mul_f32 v{md + d}, v{md + d}, v{g + d}")
        a.I(f"s_cbranch_scc1 P2_FL{n}")
        for d in range(4):
            a.I(f"v_cvt_rpi_i32_f32 v{g + d}, v{md + d}")
            a.I(f"ds_add_u32 v{a4}, v{g + d} offset:{ACC + d * S * 4}")
        a.I(f"s_branch P2_SK{n}")
        a.L(f"P2_FL{n}")
        for d in range(4):
            a.I(f"ds_add_f32 v{a4}, v{md + d} offset:{ACC + d * S * 4}")
        a.L(f"P2_SK{n}")
        a.I("s_mov_b64 exec, -1")
        a.vwait(tag)

    def misc_and_scale():
        a.vwait("mx")
        a.I(f"v_max3_u32 v{vMxv}, v{vMxv}, v{vMxv + 1}, v{vMxv + 2}")
        a.I(f"v_max_u32 v{vMxv}, v{vMxv}, v{vMxv + 3}")
        a.I(f"v_add_f32 v{vSmv}, v{vSmv}, v{vSmv + 1}")
        a.I(f"v_add_f32 v{vSmv + 2}, v{vSmv + 2}, v{vSmv + 3}")
        a.I(f"v_add_f32 v{vSmv}, v{vSmv}, v{vSmv + 2}")
        a.vwait("ts1")
        a.I(f"v_cmp_gt_u32 vcc, {S - 1024}, v0")
        a.I(f"v_cndmask_b32 v{tB[1] + 3}, 0, v{tB[1] + 3}, vcc")
        a.I(f"v_or_b32 v{vMxv + 1}, v{tB[0] + 3}, v{tB[1] + 3}")
        a.I(f"v_lshlrev_b32 v{vMxv + 1}, 31, v{vMxv + 1}")
        a.I(f"v_or_b32 v{vMxv}, v{vMxv}, v{vMxv + 1}")
        scan_max(a, [vMxv])
        scan(a, [vSmv], "v_add_f32")
        a.I(f"v_readlane_b32 s{sT}, v{vMxv}, 63")
        a.I(f"v_readlane_b32 s{sScale}, v{vSmv}, 63")
        a.I(f"s_lshl_b32 s{sOff}, s{sWid}, 3")
        a.I(f"s_add_u32 s{sOff}, s{sOff}, {MISC}")
        a.I(f"v_mov_b32 v{vMxv}, s{sTotN}")
        a.I(f"v_mov_b32 v{vMxv + 1}, s{sT}")
        a.I(f"v_mov_b32 v{vMxv + 2}, s{sOff}")
        a.I(f"v_mov_b32 v{vSmv}, s{sScale}")
        a.I(f"v_lshrrev_b32 v{vMxv + 3}, 1, v{vMxv + 2}")
        a.I("s_mov_b64 exec, 1")
        a.I(f"ds_write_b64 v{vMxv + 2}, {v(vMxv, 2)}")
        a.I(f"ds_write_b32 v{vMxv + 3}, v{vSmv} offset:{MISC + 192 - MISC // 2}")
        a.I("s_mov_b64 exec, -1")
        a.I("s_waitcnt lgkmcnt(0)")
        st_("pre")
        a.I("s_barrier")
        st_("bar")
        a.I(f"v_and_b32 v{vMxv + 2}, 15, v0")
        a.I(f"v_lshlrev_b32 v{vMxv + 3}, 2, v{vMxv + 2}")
        a.I(f"v_lshlrev_b32 v{vMxv + 2}, 3, v{vMxv + 2}")
        a.I(f"v_add_u32 v{vMxv + 2}, {MISC}, v{vMxv + 2}")
        a.I(f"ds_read_b32 v{vSmv}, v{vMxv + 3} offset:{MISC + 192}")
        a.I(f"ds_read_b64 {v(vMxv, 2)}, v{vMxv + 2}")
        for h in range(2):
            for d in range(4):
                pk = "s_pack_ll_b32_b16" if d % 2 == 0 else "s_pack_hh_b32_b16"
                a.I(f"{pk} s{sWU + h * 4 + d}, s{64 + 4 * h + d // 2}, s{64 + 4 * h + 2 + d // 2}")
        a.I("s_waitcnt lgkmcnt(0)")
        for sh in (1, 2, 4, 8):
            a.I(f"v_add_u32_dpp v{vMxv}, v{vMxv}, v{vMxv} row_shr:{sh} row_mask:0xf bank_mask:0xf bound_ctrl:0")
            a.I(f"v_max_u32_dpp v{vMxv + 1}, v{vMxv + 1}, v{vMxv + 1} row_shr:{sh} row_mask:0xf bank_mask:0xf bound_ctrl:0")
            a.I(f"v_add_f32_dpp v{vSmv}, v{vSmv}, v{vSmv} row_shr:{sh} row_mask:0xf bank_mask:0xf bound_ctrl:0")
        a.I(f"v_mul_f32 v{vSmv}, {hex(f32bits(128.0 / (4 * E)))}, v{vSmv}")
        a.I(f"v_readlane_b32 s{sT}, v{vMxv}, 15")
        a.I(f"v_readlane_b32 s{sOff}, v{vMxv + 1}, 15")
        a.I(f"v_readlane_b32 s{sScale}, v{vSmv}, 15")
        a.I(f"s_or_b32 s{sT}, s{sT}, 1")
        a.I(f"s_flbit_i32_b32 s{sT}, s{sT}")
        a.I(f"s_sub_u32 s{sT}, s{sT}, 2")
        a.I(f"s_min_u32 s{sT}, s{sT}, 22")
        a.I(f"s_cmp_ge_u32 s{sOff}, 0x7f000000")
        a.I(f"s_cselect_b32 s{sMode}, 1, 0")
        a.I(f"s_cmp_gt_u32 s{sOff}, s{sScale}")
        a.I(f"s_cselect_b32 s{sMode}, 1, s{sMode}")
        a.I(f"s_cmp_lt_u32 s{sT}, 12")
        a.I(f"s_cselect_b32 s{sMode}, 1, s{sMode}")
        a.I(f"s_lshr_b32 s{sOff}, s{sOff}, 23")
        a.I(f"s_max_u32 s{sOff}, s{sOff}, 70")
        a.I(f"s_min_u32 s{sOff}, s{sOff}, 190")
        a.I(f"s_add_u32 s{sKB}, s{sT}, 126")
        a.I(f"s_sub_i32 s{sKB}, s{sKB}, s{sOff}")
        a.I(f"s_cmp_lg_u32 s{sMode}, 0")
        a.I(f"s_cselect_b32 s{sKB}, 0, s{sKB}")
        a.I(f"s_add_u32 s{sScale}, s{sKB}, 127")
        a.I(f"s_lshl_b32 s{sScale}, s{sScale}, 23")
        x0, x1 = vT + 20, vT + 21
        for j in range(2):
            for r in [tA[j] + q for q in range(4)] + [tB[j], tB[j] + 1]:
                a.I(f"v_lshlrev_b32 v{x0}, 16, v{r}")
                a.I(f"v_and_b32 v{x1}, s{sMaskHi}, v{r}")
                a.I(f"v_mul_f32 v{x0}, s{sScale}, v{x0}")
                a.I(f"v_mul_f32 v{x1}, s{sScale}, v{x1}")
                a.I(f"v_cvt_pk_bf16_f32 v{r}, v{x0}, v{x1}")
            a.I(f"v_mov_b32 v{vSH + j}, v{tB[j] + 2}")
        a.I(f"v_lshlrev_b32 v{vT}, 4, v0")
        a.I(f"v_lshlrev_b32 v{vT + 1}, 3, v0")
        a.I(f"ds_write_b128 v{vT}, {v(tA[0], 4)} offset:{GA}")
        a.I(f"ds_write_b64 v{vT + 1}, {v(tB[0], 2)} offset:{GB}")
        a.I(f"v_cmp_gt_u32 vcc, {S - 1024}, v0")
        a.I("s_mov_b64 exec, vcc")
        a.I(f"ds_write_b128 v{vT}, {v(tA[1], 4)} offset:{GA + 16384}")
        a.I(f"ds_write_b64 v{vT + 1}, {v(tB[1], 2)} offset:{GB + 8192}")
        a.I("s_mov_b64 exec, -1")

    vOne = vT + 22

    def S1(t):
        cb = CNT2 + (t % 2) * NBIN * 4 - bin0[t] * 4
        a.I(f"v_mov_b32 v{vOne}, 1")
        a.I(f"s_mov_b32 s{sSave}, {cb}")
        for k in range(nb):
            a.vwait(f"R{t}_{k}")
            set_exec_s(sRem[t], 64 * k)
            a.I(f"v_lshrrev_b32 v{vA}, {BSH}, v{rX[k]}")
            a.I(f"v_lshl_add_u32 v{vA}, v{vA}, 2, s{sSave}")
            a.I(f"ds_add_rtn_u32 v{rK[k]}, v{vA}, v{vOne}")
            a.I("s_mov_b64 exec, -1")
        a.I("s_waitcnt lgkmcnt(0)")

    def S2(t):
        n = lblc[0]; lblc[0] += 1
        a.I(f"s_cmp_lg_u32 s{sWid}, {c.scanw}")
        a.I(f"s_cbranch_scc1 P2_NS{n}")
        x = vT
        a.I(f"v_lshlrev_b32 v{x + 10}, 2, v{vLaneR}")
        a.I(f"v_add_u32 v{x + 10}, {CNT2 + (t % 2) * NBIN * 4}, v{x + 10}")
        a.I(f"ds_read_b128 {v(x, 4)}, v{x + 10}")
        a.I(f"ds_read_b128 {v(x + 4, 4)}, v{x + 10} offset:16")
        a.I("s_waitcnt lgkmcnt(0)")
        for q in range(1, 8):
            a.I(f"v_add_u32 v{x + q}, v{x + q}, v{x + q - 1}")
        a.I(f"v_mov_b32 v{x + 8}, v{x + 7}")
        scan_add(a, [x + 8])
        a.I(f"v_readlane_b32 s{sT}, v{x + 8}, 63")
        a.I(f"v_sub_u32 v{x + 8}, v{x + 8}, v{x + 7}")
        for q in range(7, 0, -1):
            a.I(f"v_add_u32 v{x + q}, v{x + q - 1}, v{x + 8}")
        a.I(f"v_mov_b32 v{x}, v{x + 8}")
        a.I(f"ds_write_b128 v{x + 10}, {v(x, 4)}")
        a.I(f"ds_write_b128 v{x + 10}, {v(x + 4, 4)} offset:16")
        a.I(f"v_mov_b32 v{x + 9}, s{sT}")
        a.I(f"v_mov_b32 v{x + 11}, {MISC + 128 + 4 * (t % 2)}")
        a.I(f"ds_write_b32 v{x + 11}, v{x + 9}")
        a.I("s_waitcnt lgkmcnt(0)")
        a.L(f"P2_NS{n}")

    def S2r(t):
        x = vT
        a.I(f"v_lshlrev_b32 v{x + 10}, 2, v{vLaneR}")
        a.I(f"v_add_u32 v{x + 11}, {CNT2 + (t % 2) * NBIN * 4}, v{x + 10}")
        a.I(f"ds_read_b128 {v(x, 4)}, v{x + 11}")
        a.I(f"ds_read_b128 {v(x + 4, 4)}, v{x + 11} offset:16")
        a.I(f"v_add_u32 v{x + 10}, {BASE}, v{x + 10}")
        a.I("s_waitcnt lgkmcnt(0)")
        for q in range(1, 8):
            a.I(f"v_add_u32 v{x + q}, v{x + q}, v{x + q - 1}")
        a.I(f"v_mov_b32 v{x + 8}, v{x + 7}")
        scan_add(a, [x + 8])
        a.I(f"v_readlane_b32 s{sSR[t % 2]}, v{x + 8}, 63")
        a.I(f"v_sub_u32 v{x + 8}, v{x + 8}, v{x + 7}")
        for q in range(7, 0, -1):
            a.I(f"v_add_u32 v{x + q}, v{x + q - 1}, v{x + 8}")
        a.I(f"v_mov_b32 v{x}, v{x + 8}")
        a.I(f"ds_write_b128 v{x + 10}, {v(x, 4)}")
        a.I(f"ds_write_b128 v{x + 10}, {v(x + 4, 4)} offset:16")
        a.I(f"s_lshl_b32 s{sOff}, s{sWid}, 6")
        a.I(f"s_sub_i32 s{sSR[t % 2]}, s{sSR[t % 2]}, s{sOff}")

    def S3r(t):
        a.I(f"s_mov_b32 s{sSave}, {BASE - bin0[t] * 4}")
        a.I(f"s_mov_b32 s{sSave + 1}, {SORT}")
        for k in range(nb):
            a.I(f"v_lshrrev_b32 v{vT + 10 + k}, {BSH}, v{rX[k]}")
            a.I(f"v_lshl_add_u32 v{vT + 10 + k}, v{vT + 10 + k}, 2, s{sSave}")
            set_exec_s(sRem[t], 64 * k)
            a.I(f"ds_read_b32 v{vT + 10 + k}, v{vT + 10 + k}")
            a.I("s_mov_b64 exec, -1")
        for k in range(nb):
            a.I(f"s_waitcnt lgkmcnt({nb - 1})")
            a.I(f"v_add_u32 v{vT + 10 + k}, v{vT + 10 + k}, v{rK[k]}")
            a.I(f"v_lshl_add_u32 v{vT + 10 + k}, v{vT + 10 + k}, 3, s{sSave + 1}")
            set_exec_s(sRem[t], 64 * k)
            a.I(f"ds_write_b64 v{vT + 10 + k}, {v(rX[k], 2)}")
            a.I("s_mov_b64 exec, -1")

    def S3(t):
        cb = CNT2 + (t % 2) * NBIN * 4 - bin0[t] * 4
        a.I(f"s_mov_b32 s{sSave}, {cb}")
        a.I(f"s_mov_b32 s{sSave + 1}, {SORT}")
        a.I(f"v_mov_b32 v{vT + 8}, {MISC + 128 + 4 * (t % 2)}")
        a.I(f"ds_read_b32 v{vT + 8}, v{vT + 8}")
        for k in range(nb):
            a.I(f"v_lshrrev_b32 v{vT + 10 + k}, {BSH}, v{rX[k]}")
            a.I(f"v_lshl_add_u32 v{vT + 10 + k}, v{vT + 10 + k}, 2, s{sSave}")
            set_exec_s(sRem[t], 64 * k)
            a.I(f"ds_read_b32 v{vT + 10 + k}, v{vT + 10 + k}")
            a.I("s_mov_b64 exec, -1")
        a.I(f"s_waitcnt lgkmcnt({nb})")
        a.I(f"v_readfirstlane_b32 s{sSR[t % 2]}, v{vT + 8}")
        a.I(f"s_lshl_b32 s{sOff}, s{sWid}, 6")
        a.I(f"s_sub_i32 s{sSR[t % 2]}, s{sSR[t % 2]}, s{sOff}")
        for k in range(nb):
            a.I(f"s_waitcnt lgkmcnt({nb - 1})")
            a.I(f"v_add_u32 v{vT + 10 + k}, v{vT + 10 + k}, v{rK[k]}")
            a.I(f"v_lshl_add_u32 v{vT + 10 + k}, v{vT + 10 + k}, 3, s{sSave + 1}")
            set_exec_s(sRem[t], 64 * k)
            a.I(f"ds_write_b64 v{vT + 10 + k}, {v(rX[k], 2)}")
            a.I("s_mov_b64 exec, -1")

    def S4(t):
        p = t % 2
        a.I(f"v_lshlrev_b32 v{vA}, 2, v0")
        a.I(f"v_cmp_gt_u32 vcc, {NBIN}, v0")
        a.I(f"v_add_u32 v{vA}, {CNT2 + p * NBIN * 4}, v{vA}")
        a.I("s_mov_b64 exec, vcc")
        a.I(f"ds_write_b32 v{vA}, v{vZ}")
        a.I("s_mov_b64 exec, -1")
        for k in range(nb):
            a.I(f"ds_read_b64 {v(sX_[p][k], 2)}, v{vSrt} offset:{k * 8192}")
        a.I("s_waitcnt lgkmcnt(0)")

    def cnt_of(t, k):
        return (sRem[0], 64 * k) if t == 0 else (sSR[t % 2], 1024 * k)

    def G_(t, k):
        p = t % 2
        if t == 0:
            a.vwait(f"R0_{k}")
        gather(sX_[p][k], sM_[p][k], *cnt_of(t, k), f"B{t}_{k}")

    def C_(t, k):
        p = t % 2
        comp(sX_[p][k], sM_[p][k], *cnt_of(t, k), f"B{t}_{k}")

    def bar():
        a.I("s_waitcnt lgkmcnt(0)")
        a.I("s_barrier")

    assert nb * 8192 <= 65536
    assert vT + 10 + nb <= vT + 22
    L = c.lead
    if c.order == 0:
        stageA(0, NBT[0], sX_[0], "R0_")
        st_("A0")
        table_loads()
        st_("tl")
        if NT > 1:
            stageA(1, nb, rX, "R1_")
        st_("A1")
    else:
        table_loads()
        stageA(0, NBT[0], sX_[0], "R0_")
        if c.order == 2 and NT > 1:
            stageA(1, nb, rX, "R1_")
        misc_and_scale()
        if c.order == 1 and NT > 1:
            stageA(1, nb, rX, "R1_")
    compQ = []
    step = 0
    gstep = {}
    for t in range(NT):
        W = []
        if t == 0 and c.order == 0:
            W.append(misc_and_scale)
        if t + 1 < NT:
            def s3w(t=t):
                while compQ and compQ[0][0] < t:
                    C_(*compQ.pop(0))
                S3(t + 1)
            if c.aorder and t > 0:
                W += stageA_p(t + 1, nb, rX, f"R{t + 1}_") + [None] * c.agap
            def s23r(t=t):
                while compQ and compQ[0][0] < t:
                    C_(*compQ.pop(0))
                S2r(t + 1)
                S3r(t + 1)
            if c.rscan:
                W += [lambda t=t: S1(t + 1), bar, s23r]
            else:
                W += [lambda t=t: S1(t + 1), bar, lambda t=t: S2(t + 1), None, bar, s3w]
            if t + 2 < NT and not c.aorder:
                W += [lambda: a.I("s_waitcnt lgkmcnt(0)")] + stageA_p(t + 2, nb, rX, f"R{t + 2}_")
        elif t == 0:
            W.append(bar)
        if t > 0:
            S4(t)
        ready = t > 0
        nbar = 0
        wi = 0
        for k in range(NBT[t]):
            G_(t, k)
            gstep[(t, k)] = step
            compQ.append((t, k))
            step += 1
            tgt = min(len(W), -(-len(W) * (k + 1) // min(c.wspread, NBT[t])))
            while wi < tgt:
                f = W[wi]; wi += 1
                if f is not None:
                    f()
                    if t <= 1:
                        st_(f"w{t}_{wi}")
                if f is bar:
                    ready = True
            n = 0
            while ready and compQ and n < c.cps and gstep[compQ[0]] + L <= step:
                C_(*compQ.pop(0)); n += 1
        while wi < len(W):
            f = W[wi]; wi += 1
            if f is not None:
                f()
        while compQ and compQ[0][0] < t:
            C_(*compQ.pop(0))
        if t + 1 < NT:
            bar()
        st_(f"T{t}")
    while compQ:
        C_(*compQ.pop(0))
    st_("comps")
    a.vwait_all()
    for t in range(NT):
        a.I(f"s_add_u32 s{sP0[t]}, s{sP0[t]}, {NBT[t] * 64}")
        a.L(f"P2_LOOP{t}")
        a.I(f"s_sub_i32 s{sRem[t]}, s{sN[t]}, s{sP0[t]}")
        a.I(f"s_cmp_le_i32 s{sRem[t]}, 0")
        a.I(f"s_cbranch_scc1 P2_LOOP_END{t}")
        lr = min(nb, 4)
        stageA(t, lr, rX, "L")
        for k in range(lr):
            a.vwait(f"L{k}")
            gather(rX[k], rK[k], sRem[t], 64 * k, f"LB{k}")
        for k in range(lr):
            comp(rX[k], rK[k], sRem[t], 64 * k, f"LB{k}")
        a.vwait_all()
        a.I(f"s_add_u32 s{sP0[t]}, s{sP0[t]}, {lr * 64}")
        a.I(f"s_branch P2_LOOP{t}")
        a.L(f"P2_LOOP_END{t}")
    st_("loop")
    a.I(f"v_lshlrev_b32 v{vT}, 3, v0")
    a.I(f"s_mul_i32 s{sT}, s{sB}, {S * 8}")
    a.I(f"s_add_u32 s{sT + 1}, s{sT}, 8192")
    vMrow = rX[0]
    vRW = rX[2]
    assert rX[1] == vMrow + 2 and rX[3] == vRW + 2
    a.I(f"buffer_load_dwordx2 {v(vMrow, 2)}, v{vT}, {s(sMS, 4)}, s{sT} offen")
    a.I(f"buffer_load_dwordx2 {v(vMrow + 2, 2)}, v{vT}, {s(sMS, 4)}, s{sT + 1} offen")
    a.I(f"s_mov_b32 s{sSave}, 0x200000")
    a.I(f"buffer_load_dwordx2 {v(vRW, 2)}, v{vD8}, {s(sY, 4)}, s{sSave} offen")
    a.I(f"buffer_load_dwordx2 {v(vRW + 2, 2)}, v{vD8 + 1}, {s(sY, 4)}, s{sSave} offen")
    a.I("s_waitcnt lgkmcnt(0)")
    a.I("s_barrier")
    st_("bar3")
    for j in range(2):
        if j == 1:
            a.I(f"s_cmp_ge_u32 s{sWid}, {NW2}")
            a.I("s_cbranch_scc1 P2_FIN")
            a.I(f"v_cmp_gt_u32 vcc, {S - 1024}, v0")
            a.I("s_mov_b64 exec, vcc")
        q = vT + 4; f = vT + 8; up = vT + 12; rw = vT + 16; pk = vT + 20
        a.I(f"v_lshlrev_b32 v{vT + 1}, 2, v0")
        for d in range(4):
            a.I(f"ds_read_b32 v{q + d}, v{vT + 1} offset:{ACC + d * S * 4 + j * 4096}")
        for d in range(4):
            a.I(f"v_bfe_i32 v{up + d}, v{vSH + j}, {8 * d}, 8")
        for d in range(4):
            a.I(f"v_subrev_u32 v{up + d}, s{sKB}, v{up + d}")
        a.I(f"s_cmp_lg_u32 s{sMode}, 0")
        a.I("s_waitcnt lgkmcnt(0)")
        a.I(f"s_cbranch_scc1 P2_EF{j}")
        for d in range(4):
            a.I(f"v_cvt_f32_i32 v{q + d}, v{q + d}")
        a.L(f"P2_EF{j}")
        for d in range(4):
            a.I(f"v_ldexp_f32 v{q + d}, v{q + d}, v{up + d}")
        a.I(f"v_cvt_pk_bf16_f32 v{pk}, v{q}, v{q + 1}")
        a.I(f"v_cvt_pk_bf16_f32 v{pk + 1}, v{q + 2}, v{q + 3}")
        for d in range(4):
            a.I(f"v_dot2_f32_bf16 v{up + d}, v{pk}, s{sWU + d}, 0")
        for d in range(4):
            a.I(f"v_dot2_f32_bf16 v{up + d}, v{pk + 1}, s{sWU + 4 + d}, v{up + d}")
        m01, m23 = vMrow + 2 * j, vMrow + 2 * j + 1
        if j == 0:
            a.I("s_waitcnt vmcnt(0)")
        a.I(f"v_lshlrev_b32 v{rw}, 16, v{vRW + 2 * j}")
        a.I(f"v_and_b32 v{rw + 1}, s{sMaskHi}, v{vRW + 2 * j}")
        a.I(f"v_lshlrev_b32 v{rw + 2}, 16, v{vRW + 2 * j + 1}")
        a.I(f"v_and_b32 v{rw + 3}, s{sMaskHi}, v{vRW + 2 * j + 1}")
        a.I(f"v_lshlrev_b32 v{f}, 16, v{m01}")
        a.I(f"v_and_b32 v{f + 1}, s{sMaskHi}, v{m01}")
        a.I(f"v_lshlrev_b32 v{f + 2}, 16, v{m23}")
        a.I(f"v_and_b32 v{f + 3}, s{sMaskHi}, v{m23}")
        for d in range(4):
            a.I(f"v_cvt_pk_bf16_f32 v{up + d}, 0, v{up + d}")
        for d in range(4):
            a.I(f"v_mul_f32 v{up + d}, v{up + d}, v{rw + d}")
        for d in range(4):
            a.I(f"v_cvt_pk_bf16_f32 v{up + d}, 0, v{up + d}")
        for d in range(4):
            a.I(f"v_add_f32 v{up + d}, v{up + d}, v{f + d}")
        a.I(f"v_cvt_pk_bf16_f32 v{pk}, v{up}, v{up + 1}")
        a.I(f"v_cvt_pk_bf16_f32 v{pk + 1}, v{up + 2}, v{up + 3}")
        a.I(f"buffer_store_dwordx2 {v(pk, 2)}, v{vT}, {s(sOUT, 4)}, s{sT + j} offen")
    a.L("P2_FIN")
    st_("end")
    st_.flush(sWid, 16, 0x9000000, sY, vT + 1)
    a.L("P2_END")
    a.I("s_endpgm")
    return a, lds


HEADER = """; gemnet triplet message passing: two launches (generated by gen/gen5.py)
"""


def kd(name, nv, ns):
    acc = (nv + 3) // 4 * 4
    return f""".amdhsa_kernel {name}
  .amdhsa_next_free_vgpr {nv}
  .amdhsa_next_free_sgpr {ns}
  .amdhsa_accum_offset {acc}
  .amdhsa_group_segment_fixed_size 0
  .amdhsa_kernarg_size 112
  .amdhsa_user_sgpr_count 2
  .amdhsa_user_sgpr_kernarg_segment_ptr 1
  .amdhsa_system_sgpr_workgroup_id_x 1
  .amdhsa_float_denorm_mode_32 3
  .amdhsa_float_denorm_mode_16_64 3
.end_amdhsa_kernel
"""


def build(c):
    p1, lds1 = gen_p1(c)
    p2, lds2 = gen_p2(c)
    n1 = p1.fix_hazards()
    n2 = p2.fix_hazards()
    v1, s1 = p1.max_regs()
    v2, s2 = p2.max_regs()
    out = HEADER
    out += f"; @launch kernel=gp1_kernel grid=({c.G1},1,1) block=({c.TPB1},1,1) lds={lds1}\n"
    out += f"; @launch kernel=gp2_kernel grid=({NB},1,1) block=(1024,1,1) lds={lds2}\n"
    out += '.amdgcn_target "amdgcn-amd-amdhsa--gfx950"\n.text\n'
    for name, k in (("gp1_kernel", p1), ("gp2_kernel", p2)):
        out += f".globl {name}\n.p2align 8\n.type {name},@function\n{name}:\n" + k.text()
    out += "TEXT_END:\n"
    out += '.section .rodata,"a"\n.p2align 6\n'
    out += kd("gp1_kernel", v1, s1)
    out += ".p2align 6\n"
    out += kd("gp2_kernel", v2, s2)
    info = f"p1: vgpr {v1} sgpr {s1} lds {lds1} nops {n1}; p2: vgpr {v2} sgpr {s2} lds {lds2} nops {n2}; NC {c.NC} CB {c.CB} CPW {c.CPW} EPL {c.EPL}"
    return out, info


if __name__ == "__main__":
    kw = {}
    outp = "standalone__molecular_angular_gemnet__graph.s"
    for arg in sys.argv[1:]:
        k, val = arg.split("=", 1)
        if k == "out":
            outp = val
            continue
        try:
            val = int(val)
        except ValueError:
            pass
        kw[k] = val
    c = Cfg(**kw)
    txt, info = build(c)
    open(outp, "w").write(txt)
    print(info)
```

```python
import sys, os
sys.path.insert(0, os.path.dirname(__file__))
from asmlib import Asm, Alloc, v, s

E = 400000
T = 6400000
NB = 256
S = 1568
MAGIC = 2739138
KFIX = 16

WS_OFFS = 0x6000000
WS_MDT = 0x7000000
WS_GT = 0x7800000
GT_BYTES = 0x280000


class Cfg:
    def __init__(self, **kw):
        self.NT = 3
        self.nb = 10
        self.GPT = 5
        self.TPB1 = 256
        self.G1 = 768
        self.ld_in = "nt"
        self.st_rec = ""
        self.ld_rec = ""
        self.nbG = 14
        self.nbR = 14
        self.sub = 10
        self.lead = 4
        self.g0 = 0
        self.lag = 3
        self.cpb = 1
        self.nset = 2
        self.npf = 0
        self.tbar = 1
        self.aspread = 5
        self.early = 1
        self.kbit = 3
        self.lead2 = 4
        self.stamps = 0
        self.nogather = 0
        self.nocomp = 0
        self.__dict__.update(kw)
        self.C = self.TPB1 * self.GPT * 4
        self.NC = (T + self.C - 1) // self.C
        rem = T - (self.NC - 1) * self.C
        assert rem % (self.TPB1 * 4) == 0
        self.LASTG = rem // (self.TPB1 * 4)
        self.CB = self.C * 8
        assert self.CB % 16 == 0
        assert self.NC * self.CB <= WS_OFFS
        self.CPW = (self.NC + 15) // 16
        self.EPL = (self.CPW + 63) // 64
        self.CPW = (self.CPW + self.EPL - 1) // self.EPL * self.EPL


def srd(a, d, base_lo, base_hi, nbytes, add=0):
    if add:
        a.I(f"s_add_u32 s{d}, s{base_lo}, {hex(add)}")
        a.I(f"s_addc_u32 s{d + 1}, s{base_hi}, 0")
    else:
        a.I(f"s_mov_b32 s{d}, s{base_lo}")
        a.I(f"s_mov_b32 s{d + 1}, s{base_hi}")
    a.I(f"s_mov_b32 s{d + 2}, {hex(nbytes)}")
    a.I(f"s_mov_b32 s{d + 3}, 0x20000")


class Stamper:
    def __init__(self, a, on, vreg, sreg):
        self.a, self.on, self.v, self.s, self.n = a, on, vreg, sreg, 0
        self.names = []

    def __call__(self, name):
        if not self.on:
            return
        a = self.a
        a.I(f"s_memtime s[{self.s}:{self.s + 1}]")
        a.I("s_waitcnt lgkmcnt(0)")
        a.I(f"v_writelane_b32 v{self.v}, s{self.s}, {self.n}")
        self.names.append(name)
        self.n += 1

    def flush(self, sWid, nwaves, wsoff, ssrd, vtmp):
        if not self.on:
            return
        a = self.a
        a.I("s_mov_b64 exec, -1")
        a.I(f"s_load_dwordx2 s[{self.s}:{self.s + 1}], s[0:1], 104")
        a.I("s_waitcnt lgkmcnt(0)")
        srd(a, ssrd, self.s, self.s + 1, 0x1000000, wsoff)
        a.I(f"s_mul_i32 s{self.s}, s2, {nwaves}")
        a.I(f"s_add_u32 s{self.s}, s{self.s}, s{sWid}")
        a.I(f"s_lshl_b32 s{self.s}, s{self.s}, 8")
        a.I(f"v_and_b32 v{vtmp}, 63, v0")
        a.I(f"v_lshlrev_b32 v{vtmp}, 2, v{vtmp}")
        a.I(f"buffer_store_dword v{self.v}, v{vtmp}, s[{ssrd}:{ssrd + 3}], s{self.s} offen")
        print("stamps:", " ".join(self.names))


def scan(a, regs, op):
    for sh in (1, 2, 4, 8):
        for r in regs:
            a.I(f"{op}_dpp v{r}, v{r}, v{r} row_shr:{sh} row_mask:0xf bank_mask:0xf bound_ctrl:0")
    for r in regs:
        a.I(f"{op}_dpp v{r}, v{r}, v{r} row_bcast:15 row_mask:0xa bank_mask:0xf")
    for r in regs:
        a.I(f"{op}_dpp v{r}, v{r}, v{r} row_bcast:31 row_mask:0xc bank_mask:0xf")


def scan_add(a, regs):
    scan(a, regs, "v_add_u32")


def scan_max(a, regs):
    scan(a, regs, "v_max_u32")


def md_dots(a, m01, m23, W, t):
    for d in range(4):
        a.I(f"v_dot2_f32_bf16 v{t + d}, v{m23}, s{W + 2 * d + 1}, 0")
    for d in range(4):
        a.I(f"v_dot2_f32_bf16 v{t + d}, v{m01}, s{W + 2 * d}, v{t + d}")


def md_pack(a, t, out01, out23):
    a.I(f"v_cvt_pk_bf16_f32 v{out01}, v{t}, v{t + 1}")
    a.I(f"v_cvt_pk_bf16_f32 v{out23}, v{t + 2}, v{t + 3}")


def pack4(a, dst4, tmp):
    for t in range(4):
        a.I(f"s_mov_b32 s{tmp + t}, s{dst4[t]}")
    for d in range(4):
        pk = "s_pack_ll_b32_b16" if d % 2 == 0 else "s_pack_hh_b32_b16"
        a.I(f"{pk} s{dst4[d]}, s{tmp + d // 2}, s{tmp + 2 + d // 2}")


def gen_p1(c):
    a = Asm()
    NT, GPT, TPB, C, NC, CB, G1 = c.NT, c.GPT, c.TPB1, c.C, c.NC, c.CB, c.G1
    NWV = TPB // 64
    MT = (NT << 32) // E
    CNT = CB
    WT = 4096
    lds = CB + 4096 + 32
    va = Alloc("v", 1, 256)
    vT8 = va.get(); vT16 = va.get(); vOne = va.get()
    vCnt16 = va.get()
    vOffA = va.get()
    vZ = va.get(4, 2)
    pII = va.get(4 * GPT, 2)
    pIO = va.get(4 * GPT, 2)
    pAN = va.get(2 * GPT, 2)
    pool0 = va.get(0, 2)
    if c.early:
        vII = va.get(4 * GPT, 2)
        vME = va.get(4 * GPT, 2)
    else:
        vII, vME = pII, pIO
    vPad = va.get(max(44 - (16 if c.early else 8) * GPT, 0), 2)
    vKA = va.get(4 * GPT, 2)
    vRK = va.get(4 * GPT, 2)
    pool1 = va.get(0, 2)
    vT = va.get(12, 2)
    tt = pool0
    assert pool1 - pool0 >= 44
    sChunk, sWid, sMaskHi, sMagic, sNegS2, sO4, sO2, sPre, sRecOff = 3, 4, 5, 6, 7, 8, 9, 10, 11
    sTmp = 14
    sIN, sOUT, sANG, sM = 16, 20, 24, 28
    sW = 32
    sREC, sOFF = 40, 44
    sWt = 48
    sCen = 96
    sPT = 8
    a.I(f"s_cmp_ge_u32 s2, {G1}")
    a.I("s_cbranch_scc1 P1_END")
    st_ = Stamper(a, c.stamps, va.get() if c.stamps else 0, 100)
    if c.stamps:
        a.I(f"v_mov_b32 v{st_.v}, 0")
    st_("start")
    a.I("s_load_dwordx4 s[48:51], s[0:1], 0")
    a.I("s_load_dwordx2 s[52:53], s[0:1], 16")
    a.I("s_load_dwordx4 s[56:59], s[0:1], 32")
    a.I("s_load_dwordx4 s[60:63], s[0:1], 56")
    a.I("s_load_dwordx2 s[64:65], s[0:1], 72")
    a.I("s_load_dwordx2 s[12:13], s[0:1], 104")
    a.I(f"v_lshlrev_b32 v{vT8}, 3, v0")
    a.I(f"v_lshlrev_b32 v{vT16}, 4, v0")
    a.I(f"v_mov_b32 v{vZ}, 0")
    a.I(f"v_mov_b32 v{vZ + 1}, 0")
    a.I(f"v_mov_b32 v{vZ + 2}, 0")
    a.I(f"v_mov_b32 v{vZ + 3}, 0")
    a.I(f"v_mov_b32 v{vOne}, 1")
    a.I(f"v_add_u32 v{vCnt16}, {CNT}, v{vT16}")
    a.I(f"v_lshrrev_b32 v{vT}, 6, v0")
    a.I(f"v_readfirstlane_b32 s{sWid}, v{vT}")
    a.I(f"s_mov_b32 s{sChunk}, s2")
    a.I(f"s_mov_b32 s{sMaskHi}, 0xffff0000")

    def zero_counters(lbl):
        if TPB > 256:
            a.I(f"s_cmp_ge_u32 s{sWid}, 4")
            a.I(f"s_cbranch_scc1 {lbl}")
        a.I(f"ds_write_b128 v{vCnt16}, {v(vZ, 4)}")
        a.L(lbl)
    zero_counters("P1_Z0")
    a.I(f"v_lshrrev_b32 v{vOffA}, 1, v0")
    a.I(f"s_mov_b32 s{sTmp}, {NC * 32}")
    a.I(f"v_mul_lo_u32 v{vOffA}, v{vOffA}, s{sTmp}")
    a.I(f"v_and_b32 v{vT}, 1, v0")
    a.I(f"v_lshl_add_u32 v{vOffA}, v{vT}, 4, v{vOffA}")
    a.I("s_waitcnt lgkmcnt(0)")
    srd(a, sIN, 50, 51, T * 4)
    srd(a, sOUT, 52, 53, T * 4)
    srd(a, sANG, 56, 57, T * 2)
    pol = (" " + c.ld_in) if c.ld_in else ""

    def issue_inputs(schunk):
        a.I(f"s_mul_i32 s{sO4}, s{schunk}, {C * 4}")
        a.I(f"s_mul_i32 s{sO2}, s{schunk}, {C * 2}")
        for g in range(GPT):
            a.vmem(f"buffer_load_dwordx4 {v(pII + 4 * g, 4)}, v{vT16}, {s(sIN, 4)}, s{sO4} offen{pol}", f"ii{g}")
            a.vmem(f"buffer_load_dwordx4 {v(pIO + 4 * g, 4)}, v{vT16}, {s(sOUT, 4)}, s{sO4} offen{pol}", f"io{g}")
            a.vmem(f"buffer_load_dwordx2 {v(pAN + 2 * g, 2)}, v{vT8}, {s(sANG, 4)}, s{sO2} offen{pol}", f"an{g}")
            if g + 1 < GPT:
                a.I(f"s_add_u32 s{sO4}, s{sO4}, {TPB * 16}")
                a.I(f"s_add_u32 s{sO2}, s{sO2}, {TPB * 8}")

    issue_inputs(sChunk)
    srd(a, sM, 48, 49, E * 8)
    RPW = (E + G1 - 1) // G1
    NR_ = (RPW + TPB - 1) // TPB
    assert NR_ <= 4
    vMRa = tt
    vMR = tt + 4
    vS = tt + 12
    a.I(f"s_mul_i32 s{sMagic}, s2, {RPW * 8}")
    for r in range(NR_):
        lim = RPW - r * TPB
        a.I(f"v_add_u32 v{vMRa + r}, {r * TPB * 8}, v{vT8}")
        if lim < TPB:
            a.I(f"v_cmp_gt_u32 vcc, {lim}, v0")
            a.I(f"v_mov_b32 v{vT}, 0x7ffffff0")
            a.I(f"v_cndmask_b32 v{vMRa + r}, v{vT}, v{vMRa + r}, vcc")
        a.vmem(f"buffer_load_dwordx2 {v(vMR + 2 * r, 2)}, v{vMRa + r}, {s(sM, 4)}, s{sMagic} offen", f"mr{r}")
    a.I(f"v_and_b32 v{vT}, 0x1f8, v{vT8}")
    a.vmem(f"buffer_load_dwordx2 {v(vS, 2)}, v{vT}, {s(sM, 4)}, 0 offen", "smp")
    a.I(f"s_mov_b32 s{sTmp}, s60")
    a.I(f"s_mov_b32 s{sTmp + 1}, s61")
    a.I("s_mov_b32 s10, s62")
    a.I("s_mov_b32 s11, s63")
    a.I("s_load_dwordx8 s[40:47], s[64:65], 0")
    a.I(f"s_load_dwordx4 s[{sCen}:{sCen + 3}], s[58:59], 0")
    a.I(f"s_load_dwordx16 s[{sWt}:{sWt + 15}], s[10:11], 0")
    a.I(f"s_load_dwordx16 s[{sWt + 16}:{sWt + 31}], s[10:11], 64")
    a.I(f"s_load_dwordx16 s[{sWt + 32}:{sWt + 47}], s[10:11], 128")
    a.I("s_waitcnt lgkmcnt(0)")
    r = 40
    for d in range(4):
        pk = "s_pack_ll_b32_b16" if d % 2 == 0 else "s_pack_hh_b32_b16"
        a.I(f"{pk} s{sW + 2 * d}, s{r + d // 2}, s{r + 2 + d // 2}")
        a.I(f"{pk} s{sW + 2 * d + 1}, s{r + 4 + d // 2}, s{r + 6 + d // 2}")
    sMDT, sGT = 40, 44
    srd(a, sMDT, 12, 13, E * 8, WS_MDT)
    srd(a, sGT, 12, 13, GT_BYTES, WS_GT)
    NTW = (1024 + G1 - 1) // G1
    EPW = NTW * 64
    assert NTW <= NWV and 1024 % NTW == 0
    a.I(f"s_cmp_lt_u32 s{sWid}, {NWV - NTW}")
    a.I("s_cbranch_scc1 P1_TB1")
    a.I(f"s_cmp_ge_u32 s2, {(1024 + NTW - 1) // NTW}")
    a.I("s_cbranch_scc1 P1_TB1")

    def ws_reg(j, l, d):
        base = sWt + 12 * j
        return [base + 2 * l, base + 2 * l + 1, base + 6 + 2 * l, base + 6 + 2 * l + 1][d]
    for j in range(4):
        for l in range(3):
            pack4(a, [ws_reg(j, l, t) for t in range(4)], sPT)
    vIdx = tt + 14
    vDd = tt + 15
    vr = tt + 16
    vRBF = tt + 24
    vg = tt + 28
    vs_ = tt + 40
    a.I(f"s_mul_i32 s{sPT}, s2, {EPW}")
    a.I(f"v_subrev_u32 v{vIdx}, {(NWV - NTW) * 64}, v0")
    a.I(f"v_add_u32 v{vIdx}, s{sPT}, v{vIdx}")
    a.I(f"v_lshlrev_b32 v{vDd}, 16, v{vIdx}")
    for r in range(8):
        if r % 2 == 0:
            a.I(f"s_lshl_b32 s{sPT + r % 4}, s{sCen + r // 2}, 16")
        else:
            a.I(f"s_and_b32 s{sPT + r % 4}, s{sCen + r // 2}, 0xffff0000")
        a.I(f"v_subrev_f32 v{vr + r}, s{sPT + r % 4}, v{vDd}")
    for r in range(8):
        a.I(f"v_cvt_pk_bf16_f32 v{vr + r}, 0, v{vr + r}")
    for r in range(8):
        a.I(f"v_mul_f32 v{vr + r}, v{vr + r}, v{vr + r}")
    for r in range(8):
        a.I(f"v_cvt_pk_bf16_f32 v{vr + r}, 0, v{vr + r}")
    for r in range(8):
        a.I(f"v_mul_f32 v{vr + r}, 0xc1200000, v{vr + r}")
    for r in range(8):
        a.I(f"v_cvt_pk_bf16_f32 v{vr + r}, 0, v{vr + r}")
    for r in range(8):
        a.I(f"v_mul_f32 v{vr + r}, 0x3fb8aa3b, v{vr + r}")
    for r in range(8):
        a.I(f"v_exp_f32 v{vr + r}, v{vr + r}")
    for q in range(4):
        a.I(f"v_cvt_pk_bf16_f32 v{vRBF + q}, v{vr + 2 * q}, v{vr + 2 * q + 1}")
    for q in range(4):
        for l in range(3):
            for d in range(4):
                src2 = "0" if q == 0 else f"v{vg + 4 * l + d}"
                a.I(f"v_dot2_f32_bf16 v{vg + 4 * l + d}, v{vRBF + q}, s{ws_reg(q, l, d)}, {src2}")
    a.I(f"s_load_dwordx16 s[{sWt}:{sWt + 15}], s[{sTmp}:{sTmp + 1}], 0")
    for d in range(4):
        a.I(f"v_add_f32 v{vs_ + d}, |v{vg + d}|, |v{vg + 4 + d}|")
    for d in range(4):
        a.I(f"v_add_f32 v{vs_ + d}, v{vs_ + d}, |v{vg + 8 + d}|")
    for d in range(4):
        a.I(f"v_frexp_exp_i32_f32 v{vs_ + d}, v{vs_ + d}")
    a.I(f"s_movk_i32 s{sPT}, -60")
    for d in range(4):
        a.I(f"v_med3_i32 v{vs_ + d}, v{vs_ + d}, s{sPT}, 60")
    a.vwait("smp", trim=False)
    md_dots(a, vS, vS + 1, sW, vr)
    md_pack(a, vr, vS, vS + 1)
    a.I(f"v_lshlrev_b32 v{vr}, 16, v{vS}")
    a.I(f"v_and_b32 v{vr + 1}, s{sMaskHi}, v{vS}")
    a.I(f"v_lshlrev_b32 v{vr + 2}, 16, v{vS + 1}")
    a.I(f"v_and_b32 v{vr + 3}, s{sMaskHi}, v{vS + 1}")
    a.I(f"v_add_f32 v{vr}, |v{vr}|, |v{vr + 1}|")
    a.I(f"v_add_f32 v{vr + 2}, |v{vr + 2}|, |v{vr + 3}|")
    a.I(f"v_add_f32 v{vr}, v{vr}, v{vr + 2}")
    scan_max(a, [vr])
    a.I(f"v_readlane_b32 s{sPT}, v{vr}, 63")
    a.I(f"s_lshr_b32 s{sPT}, s{sPT}, 23")
    a.I(f"s_add_u32 s{sPT}, s{sPT}, 1")
    a.I(f"s_max_u32 s{sPT}, s{sPT}, 90")
    a.I(f"s_min_u32 s{sPT}, s{sPT}, 190")
    a.I(f"s_sub_i32 s{sPT}, {KFIX + 127}, s{sPT}")
    for d in range(4):
        a.I(f"v_sub_u32 v{vs_ + d}, s{sPT}, v{vs_ + d}")
    for l in range(3):
        for d in range(4):
            a.I(f"v_ldexp_f32 v{vg + 4 * l + d}, v{vg + 4 * l + d}, v{vs_ + d}")
    vSH = vDd
    a.I(f"v_and_b32 v{vSH}, 0xff, v{vs_}")
    for d in range(1, 4):
        a.I(f"v_and_b32 v{vs_ + d}, 0xff, v{vs_ + d}")
        a.I(f"v_lshl_or_b32 v{vSH}, v{vs_ + d}, {8 * d}, v{vSH}")
    for d in range(4):
        a.I(f"v_cvt_pk_bf16_f32 v{vr + d}, v{vg + d}, v{vg + 4 + d}")
    a.I(f"v_cvt_pk_bf16_f32 v{vr + 4}, v{vg + 8}, v{vg + 9}")
    a.I(f"v_cvt_pk_bf16_f32 v{vr + 5}, v{vg + 10}, v{vg + 11}")
    a.I("s_waitcnt lgkmcnt(0)")
    for q in range(4):
        pack4(a, [sWt + 4 * q + t for t in range(4)], sPT)
    for q in range(4):
        for d in range(4):
            src2 = "0" if q == 0 else f"v{vs_ + d}"
            a.I(f"v_dot2_f32_bf16 v{vs_ + d}, v{vRBF + q}, s{sWt + q * 4 + d}, {src2}")
    a.I(f"v_lshlrev_b32 v{vg}, 5, v{vIdx}")
    a.I(f"v_lshlrev_b32 v{vg + 1}, 3, v{vIdx}")
    a.I(f"s_mov_b32 s{sPT + 1}, 0x200000")
    a.I(f"v_mov_b32 v{vr + 6}, v{vSH}")
    a.I(f"v_mov_b32 v{vr + 7}, 0")
    a.I(f"v_cvt_pk_bf16_f32 v{vg + 2}, v{vs_}, v{vs_ + 1}")
    a.I(f"v_cvt_pk_bf16_f32 v{vg + 3}, v{vs_ + 2}, v{vs_ + 3}")
    a.I(f"buffer_store_dwordx4 {v(vr, 4)}, v{vg}, {s(sGT, 4)}, 0 offen")
    a.I(f"buffer_store_dwordx4 {v(vr + 4, 4)}, v{vg}, {s(sGT, 4)}, 0 offen offset:16")
    a.I(f"buffer_store_dwordx2 {v(vg + 2, 2)}, v{vg + 1}, {s(sGT, 4)}, s{sPT + 1} offen")
    a.L("P1_TB1")
    a.vwait_all()
    for r in range(NR_):
        md_dots(a, vMR + 2 * r, vMR + 2 * r + 1, sW, vT + 4 * (r % 2))
        md_pack(a, vT + 4 * (r % 2), vMR + 2 * r, vMR + 2 * r + 1)
        a.I(f"buffer_store_dwordx2 {v(vMR + 2 * r, 2)}, v{vMRa + r}, {s(sMDT, 4)}, s{sMagic} offen")
    a.I("s_nop 4")
    srd(a, sREC, 12, 13, NC * CB)
    srd(a, sOFF, 12, 13, 128 * NC * 32, WS_OFFS)
    sMT = 13
    a.I(f"s_mov_b32 s{sMT}, {MT}")
    sCnt = 12
    a.I(f"s_mov_b32 s{sCnt}, {CNT}")
    a.I(f"s_mov_b32 s{sMagic}, {MAGIC}")
    a.I(f"s_mov_b32 s{sNegS2}, {-(S // 2)}")
    a.I("s_waitcnt vmcnt(0) lgkmcnt(0)")
    st_("tables")
    ncopy = (CB + TPB * 16 - 1) // (TPB * 16)
    a.vm = []
    for g in range(GPT):
        a.vm += [f"ii{g}", f"io{g}", f"an{g}"]
    a.vm += (["offst"] if c.early else []) + ["cp"] * ncopy
    a.L("P1_LOOP")
    a.I("s_barrier")
    st_("top")
    a.I(f"s_cmp_eq_u32 s{sChunk}, {NC - 1}")
    a.I(f"s_cselect_b32 s{sPre}, {c.LASTG}, {GPT}")
    for g in range(GPT):
        a.vwait(f"an{g}")
        if g >= c.LASTG:
            a.I(f"s_cmp_le_u32 s{sPre}, {g}")
            a.I(f"s_cbranch_scc1 P1_HS{g}")
        for k in range(4):
            i = 4 * g + k
            a.I(f"v_mul_hi_u32_u24 v{vT + k}, s{sMagic}, v{pIO + i}")
            a.I(f"v_mul_hi_u32_u24 v{vT + 4 + k}, s{sMT}, v{pII + i}")
        for k in range(4):
            i = 4 * g + k
            a.I(f"v_lshl_add_u32 v{vKA + i}, v{vT + k}, 4, s{sCnt}")
            a.I(f"v_lshl_add_u32 v{vKA + i}, v{vT + 4 + k}, 2, v{vKA + i}")
            a.I(f"ds_add_rtn_u32 v{vRK + i}, v{vKA + i}, v{vOne}")
        for k in range(4):
            i = 4 * g + k
            a.I(f"v_lshlrev_b32 v{vII + i}, 3, v{pII + i}")
            a.I(f"v_lshlrev_b32 v{vT + k}, 3, v{vT + k}")
            a.I(f"v_lshlrev_b32 v{vME + i}, 2, v{pIO + i}")
            a.I(f"v_mad_i32_i24 v{vME + i}, v{vT + k}, s{sNegS2}, v{vME + i}")
            an = pAN + 2 * g + k // 2
            if k % 2 == 0:
                a.I(f"v_lshl_or_b32 v{vME + i}, v{an}, 16, v{vME + i}")
            else:
                a.I(f"v_and_or_b32 v{vME + i}, v{an}, s{sMaskHi}, v{vME + i}")
        if g >= c.LASTG:
            a.L(f"P1_HS{g}")
    st_("hist_issued")
    if c.early:
        a.I(f"s_add_u32 s{sTmp}, s{sChunk}, {G1}")
        issue_inputs(sTmp)
    a.I("s_waitcnt lgkmcnt(0)")
    a.I("s_barrier")
    st_("barB")
    n0 = vT
    pA, pB, iA, iB = vT + 4, vT + 5, vT + 6, vT + 7
    x = vT + 8
    sS = 48
    if TPB > 256:
        a.I(f"s_cmp_ge_u32 s{sWid}, 4")
        a.I("s_cbranch_scc1 P1_S1")
    a.I(f"ds_read_b128 {v(n0, 4)}, v{vCnt16}")
    a.I("s_waitcnt lgkmcnt(0)")
    a.I(f"v_lshl_or_b32 v{pA}, v{n0 + 1}, 16, v{n0}")
    a.I(f"v_lshl_or_b32 v{pB}, v{n0 + 3}, 16, v{n0 + 2}")
    a.I(f"v_mov_b32 v{iA}, v{pA}")
    a.I(f"v_mov_b32 v{iB}, v{pB}")
    scan_add(a, [iA, iB])
    a.I(f"v_readlane_b32 s{sS}, v{iA}, 63")
    a.I(f"v_readlane_b32 s{sS + 1}, v{iB}, 63")
    a.I(f"s_lshl_b32 s{sTmp + 1}, s{sWid}, 3")
    a.I(f"s_add_u32 s{sTmp + 1}, s{sTmp + 1}, s{sCnt}")
    a.I(f"v_mov_b32 v{x + 2}, s{sTmp + 1}")
    a.I(f"v_mov_b32 v{x}, s{sS}")
    a.I(f"v_mov_b32 v{x + 1}, s{sS + 1}")
    a.I(f"ds_write_b64 v{x + 2}, {v(x, 2)} offset:{WT}")
    a.I("s_waitcnt lgkmcnt(0)")
    a.L("P1_S1")
    a.I("s_barrier")
    if TPB > 256:
        a.I(f"s_cmp_ge_u32 s{sWid}, 4")
        a.I("s_cbranch_scc1 P1_S2")
    a.I(f"v_and_b32 v{x}, 7, v0")
    a.I(f"v_lshl_add_u32 v{x}, v{x}, 2, s{sCnt}")
    a.I(f"ds_read_b32 v{x}, v{x} offset:{WT}")
    a.I(f"v_sub_u32 v{iA}, v{iA}, v{pA}")
    a.I(f"v_sub_u32 v{iB}, v{iB}, v{pB}")
    a.I("s_waitcnt lgkmcnt(0)")
    for l in range(8):
        a.I(f"v_readlane_b32 s{sS + l}, v{x}, {l}")
    a.I(f"s_add_u32 s{sS + 8}, s{sS}, s{sS + 2}")
    a.I(f"s_add_u32 s{sS + 8}, s{sS + 8}, s{sS + 4}")
    a.I(f"s_add_u32 s{sS + 8}, s{sS + 8}, s{sS + 6}")
    a.I(f"s_add_u32 s{sS + 9}, s{sS + 1}, s{sS + 3}")
    a.I(f"s_add_u32 s{sS + 9}, s{sS + 9}, s{sS + 5}")
    a.I(f"s_add_u32 s{sS + 9}, s{sS + 9}, s{sS + 7}")
    a.I(f"s_mov_b32 s{sS + 10}, 0")
    a.I(f"s_mov_b32 s{sS + 11}, 0")
    for w in range(3):
        a.I(f"s_cmp_gt_u32 s{sWid}, {w}")
        a.I(f"s_cselect_b32 s{sS + 2 * w}, s{sS + 2 * w}, 0")
        a.I(f"s_cselect_b32 s{sS + 2 * w + 1}, s{sS + 2 * w + 1}, 0")
        a.I(f"s_add_u32 s{sS + 10}, s{sS + 10}, s{sS + 2 * w}")
        a.I(f"s_add_u32 s{sS + 11}, s{sS + 11}, s{sS + 2 * w + 1}")
    a.I(f"s_and_b32 s{sS}, s{sS + 8}, 0xffff")
    a.I(f"s_lshr_b32 s{sS + 1}, s{sS + 8}, 16")
    a.I(f"s_add_u32 s{sS + 1}, s{sS + 1}, s{sS}")
    a.I(f"s_and_b32 s{sS + 2}, s{sS + 9}, 0xffff")
    a.I(f"s_add_u32 s{sS + 2}, s{sS + 2}, s{sS + 1}")
    a.I(f"s_lshl_b32 s{sS}, s{sS}, 16")
    a.I(f"s_add_u32 s{sS + 10}, s{sS + 10}, s{sS}")
    a.I(f"s_lshl_b32 s{sS + 2}, s{sS + 2}, 16")
    a.I(f"s_add_u32 s{sS + 11}, s{sS + 11}, s{sS + 1}")
    a.I(f"s_add_u32 s{sS + 11}, s{sS + 11}, s{sS + 2}")
    a.I(f"v_add_u32 v{iA}, s{sS + 10}, v{iA}")
    a.I(f"v_add_u32 v{iB}, s{sS + 11}, v{iB}")
    a.I(f"v_and_b32 v{x}, 0xffff, v{iA}")
    a.I(f"v_lshrrev_b32 v{x + 1}, 16, v{iA}")
    a.I(f"v_and_b32 v{x + 2}, 0xffff, v{iB}")
    a.I(f"v_lshrrev_b32 v{x + 3}, 16, v{iB}")
    for t in range(4):
        a.I(f"v_lshl_or_b32 v{n0 + t}, v{n0 + t}, 16, v{x + t}")
    for t in range(4):
        a.I(f"v_lshlrev_b32 v{x + t}, 3, v{x + t}")
    a.I(f"ds_write_b128 v{vCnt16}, {v(x, 4)}")
    a.I("s_waitcnt lgkmcnt(0)")
    a.L("P1_S2")
    a.I(f"s_lshl_b32 s{sTmp + 1}, s{sChunk}, 5")
    a.vmem(f"buffer_store_dwordx4 {v(n0, 4)}, v{vOffA}, {s(sOFF, 4)}, s{sTmp + 1} offen", "offst")
    a.I("s_barrier")
    st_("scan")
    for g in range(GPT):
        if g >= c.LASTG:
            a.I(f"s_cmp_le_u32 s{sPre}, {g}")
            a.I("s_cbranch_scc1 P1_SC1")
        for k in range(4):
            i = 4 * g + k
            a.I(f"ds_read_b32 v{vKA + i}, v{vKA + i}")
    a.L("P1_SC1")
    for g in range(GPT):
        if g >= c.LASTG:
            a.I(f"s_cmp_le_u32 s{sPre}, {g}")
            a.I("s_cbranch_scc1 P1_SCAT_DONE")
        a.I("s_waitcnt lgkmcnt(0)") if g == 0 else None
        for k in range(4):
            i = 4 * g + k
            a.I(f"v_lshl_add_u32 v{vKA + i}, v{vRK + i}, 3, v{vKA + i}")
            a.I(f"ds_write2_b32 v{vKA + i}, v{vII + i}, v{vME + i} offset0:0 offset1:1")
    a.L("P1_SCAT_DONE")
    a.I("s_waitcnt lgkmcnt(0)")
    st_("scat")
    a.I("s_barrier")
    st_("barE")
    if not c.early:
        a.I(f"s_add_u32 s{sTmp}, s{sChunk}, {G1}")
        issue_inputs(sTmp)
    st_("pref_issued")
    zero_counters("P1_Z1")
    a.I(f"s_mul_i32 s{sRecOff}, s{sChunk}, {CB}")
    bufs = list(range(pool0, pool1 - 3, 4))
    assert len(bufs) >= ncopy
    spol = (" " + c.st_rec) if c.st_rec else ""
    step = TPB * 16
    a.I(f"v_add_u32 v{vT}, {8 * step}, v{vT16}")
    for i in range(ncopy):
        base, off = (vT16, i * step) if i < 8 else (vT, (i - 8) * step)
        assert off < 65536
        a.I(f"ds_read_b128 {v(bufs[i], 4)}, v{base} offset:{off}")
    for i in range(ncopy):
        n_out = ncopy - 1 - i
        a.I(f"s_waitcnt lgkmcnt({min(n_out, 15)})")
        part = CB - i * step
        if part < step:
            a.I(f"v_cmp_gt_u32 vcc, {part // 16}, v0")
            a.I("s_mov_b64 exec, vcc")
        a.vmem(f"buffer_store_dwordx4 {v(bufs[i], 4)}, v{vT16}, {s(sREC, 4)}, s{sRecOff} offen{spol}", "cp")
        if part < step:
            a.I("s_mov_b64 exec, -1")
        else:
            a.I(f"s_add_u32 s{sRecOff}, s{sRecOff}, {step}")
    st_("copy")
    a.I(f"s_add_u32 s{sChunk}, s{sChunk}, {G1}")
    a.I(f"s_cmp_lt_u32 s{sChunk}, {NC}")
    a.I("s_cbranch_scc1 P1_LOOP")
    st_.flush(sWid, NWV, 0x8000000, 92, vT)
    a.L("P1_END")
    a.I("s_endpgm")
    return a, lds


def merge(A, B):
    out = []
    la, lb = len(A), len(B)
    ia = ib = 0
    while ia < la or ib < lb:
        if ib >= lb or (ia < la and ia * lb <= ib * la):
            out.append(A[ia]); ia += 1
        else:
            out.append(B[ib]); ib += 1
    return out


def gen_p2(c):
    a = Asm()
    NT, NC, CB, EPL, CPW, nb = c.NT, c.NC, c.CB, c.EPL, c.CPW, c.nb
    SUB = c.sub
    ACC = 0
    ACCF = 4 * S * 4
    GB = 2 * 4 * S * 4
    GA = GB + S * 8
    MISC = GA + S * 16
    MARKS = MISC + 64
    MW = SUB * 256
    assert MW % 512 == 0
    lds = MARKS + 16 * MW
    assert GA < 65536 and lds <= 163840
    va = Alloc("v", 1, 128)
    vMk4 = va.get(); vMk8 = va.get()
    vLaneR = va.get()
    vP = [va.get(EPL) for _ in range(NT)]
    vDl = [va.get(EPL) for _ in range(NT)]
    vA = va.get()
    vSH = va.get(2, 2)
    vD8 = va.get(2, 2)
    vZ = va.get(2, 2)
    NSET = min(NT, c.nset)
    vRs = [[va.get(2, 2) for _ in range(nb)] for _ in range(NSET)]
    vMs = [[va.get() for _ in range(nb)] for _ in range(NSET)]
    vT = va.get(24, 2)
    sREC, sMDT, sX, sY = 16, 20, 24, 28
    sB, sWid, sLim, sMkBase, sT, sOff, sMaskHi = 4, 5, 6, 7, 14, 15, 3
    sPtr = 32
    sSave = 42
    sOUT, sMS = 44, 48
    sWU = 56
    sN = [72 + t for t in range(4)]
    sP0 = [76 + t for t in range(4)]
    sCar = [80 + t for t in range(4)]
    sRem = [84 + t for t in range(4)]
    NW2 = (S - 1024 + 63) // 64

    a.I(f"s_cmp_ge_u32 s2, {NB}")
    a.I("s_cbranch_scc1 P2_END")
    st_ = Stamper(a, c.stamps, va.get() if c.stamps else 0, 100)
    if c.stamps:
        a.I(f"v_mov_b32 v{st_.v}, 0")
    st_("start")
    a.I(f"s_load_dwordx2 s[{sPtr}:{sPtr + 1}], s[0:1], 104")
    a.I(f"s_load_dwordx2 s[{sPtr + 2}:{sPtr + 3}], s[0:1], 24")
    a.I(f"s_load_dwordx4 s[{sPtr + 4}:{sPtr + 7}], s[0:1], 80")
    a.I(f"s_load_dwordx2 s[52:53], s[0:1], 0")
    a.I(f"s_and_b32 s{sB}, s2, 7")
    a.I(f"s_lshl_b32 s{sB}, s{sB}, 5")
    a.I(f"s_lshr_b32 s{sT}, s2, 3")
    a.I(f"s_add_u32 s{sB}, s{sB}, s{sT}")
    a.I(f"s_mov_b32 s{sMaskHi}, 0xffff0000")
    vLane = vT + 23
    a.I(f"v_and_b32 v{vLane}, 63, v0")
    a.I(f"v_lshrrev_b32 v{vT}, 6, v0")
    a.I(f"v_readfirstlane_b32 s{sWid}, v{vT}")
    vC = vT + 2
    a.I(f"v_mul_u32_u24 v{vC}, {EPL}, v{vLane}")
    a.I(f"s_mul_i32 s{sT}, s{sWid}, {CPW}")
    a.I(f"v_add_u32 v{vC}, s{sT}, v{vC}")
    a.I(f"s_lshr_b32 s{sT}, s{sB}, 1")
    a.I(f"s_mul_i32 s{sT}, s{sT}, {NC * 32}")
    a.I(f"s_and_b32 s{sOff}, s{sB}, 1")
    a.I(f"s_lshl_b32 s{sOff}, s{sOff}, 4")
    a.I(f"s_add_u32 s{sT}, s{sT}, s{sOff}")
    a.I(f"v_lshlrev_b32 v{vT + 3}, 5, v{vC}")
    a.I(f"s_mul_i32 s{sOff}, s{sB}, {S * 2}")
    vE0 = vT + 1
    a.I(f"v_lshlrev_b32 v{vE0}, 1, v0")
    a.I("s_waitcnt lgkmcnt(0)")
    srd(a, sX, sPtr, sPtr + 1, 128 * NC * 32, WS_OFFS)
    vEnt = vT + 4
    for e in range(EPL):
        a.vmem(f"buffer_load_dwordx4 {v(vEnt + 4 * e, 4)}, v{vT + 3}, {s(sX, 4)}, s{sT} offen offset:{32 * e}", f"ent{e}")
    srd(a, sY, sPtr + 2, sPtr + 3, E * 2)
    vD = vSH
    a.vmem(f"buffer_load_ushort v{vD}, v{vE0}, {s(sY, 4)}, s{sOff} offen", "d0")
    a.vmem(f"buffer_load_ushort v{vD + 1}, v{vE0}, {s(sY, 4)}, s{sOff} offen offset:2048", "d1")
    a.I(f"s_load_dwordx8 s[64:71], s[{sPtr + 4}:{sPtr + 5}], 0")
    srd(a, sMDT, sPtr, sPtr + 1, E * 8, WS_MDT)
    if c.npf:
        a.I(f"s_lshr_b32 s{sSave}, s2, 3")
        a.I(f"s_lshl_b32 s{sSave}, s{sSave}, 14")
        a.I(f"v_lshlrev_b32 v{vA}, 4, v0")
        pf = vRs[NSET - 1][0]
        for j in range(c.npf):
            a.vmem(f"buffer_load_dwordx4 {v(pf + 4 * (j % 4), 4)}, v{vA}, {s(sMDT, 4)}, s{sSave} offen", "pf")
            a.I(f"s_add_u32 s{sSave}, s{sSave}, 0x80000")
    srd(a, sREC, sPtr, sPtr + 1, NC * CB)
    srd(a, sOUT, sPtr + 6, sPtr + 7, E * 8)
    srd(a, sMS, 52, 53, E * 8)
    for i in range(4):
        a.I(f"v_mov_b32 v{vT + 16 + i}, 0")
    a.I(f"v_mov_b32 v{vZ}, 0")
    a.I(f"v_mov_b32 v{vZ + 1}, 0")
    a.I(f"v_lshlrev_b32 v{vT}, 4, v0")
    nz = (2 * 4 * S * 4) // 16
    for i in range(nz // 1024):
        a.I(f"ds_write_b128 v{vT}, {v(vT + 16, 4)} offset:{i * 16384}")
    assert nz % 1024 == 64
    a.I(f"s_cmp_lg_u32 s{sWid}, 0")
    a.I("s_cbranch_scc1 P2_Z1")
    a.I(f"ds_write_b128 v{vT}, {v(vT + 16, 4)} offset:{(nz // 1024) * 16384}")
    a.L("P2_Z1")
    a.I(f"v_lshlrev_b32 v{vLaneR}, 3, v{vLane}")
    a.I(f"s_mul_i32 s{sMkBase}, s{sWid}, {MW}")
    a.I(f"s_add_u32 s{sMkBase}, s{sMkBase}, {MARKS}")
    a.I(f"v_lshl_add_u32 v{vMk4}, v{vLane}, 2, s{sMkBase}")
    a.I(f"v_lshl_add_u32 v{vMk8}, v{vLane}, 3, s{sMkBase}")
    srd(a, sY, sPtr, sPtr + 1, GT_BYTES, WS_GT)
    a.vwait(f"ent{EPL - 1}")
    st_("ent")
    vn = vT + 12
    vsum = vT + 20
    assert EPL <= 2
    for e in range(EPL):
        if e:
            a.I(f"v_add_u32 v{vC}, 1, v{vC}")
        a.I(f"v_cmp_gt_u32 vcc, {NC}, v{vC}")
        a.I(f"v_cmp_gt_u32 s[{sSave}:{sSave + 1}], {CPW // EPL}, v{vLane}")
        a.I(f"s_mov_b32 s{sT}, {CB}")
        a.I(f"s_and_b64 vcc, vcc, s[{sSave}:{sSave + 1}]")
        a.I(f"v_mul_lo_u32 v{vsum}, v{vC}, s{sT}")
        for t in range(NT):
            d = vEnt + 4 * e + t
            a.I(f"v_lshrrev_b32 v{vn + t * EPL + e}, 16, v{d}")
            a.I(f"v_and_b32 v{d}, 0xffff, v{d}")
            a.I(f"v_cndmask_b32 v{vn + t * EPL + e}, 0, v{vn + t * EPL + e}, vcc")
            a.I(f"v_lshl_add_u32 v{vDl[t] + e}, v{d}, 3, v{vsum}")
    for t in range(NT):
        if EPL == 2:
            a.I(f"v_add_u32 v{vEnt + t}, v{vn + 2 * t}, v{vn + 2 * t + 1}")
        else:
            a.I(f"v_mov_b32 v{vEnt + t}, v{vn + t}")
        a.I(f"v_mov_b32 v{vP[t]}, v{vEnt + t}")
    scan_add(a, [vP[t] for t in range(NT)])
    for t in range(NT):
        a.I(f"v_readlane_b32 s{sN[t]}, v{vP[t]}, 63")
    for t in range(NT):
        a.I(f"v_sub_u32 v{vP[t]}, v{vP[t]}, v{vEnt + t}")
        if EPL == 2:
            a.I(f"v_add_u32 v{vP[t] + 1}, v{vP[t]}, v{vn + 2 * t}")
    for t in range(NT):
        for e in range(EPL):
            a.I(f"v_lshlrev_b32 v{vsum}, 3, v{vP[t] + e}")
            a.I(f"v_cmp_ne_u32 vcc, 0, v{vn + t * EPL + e}")
            a.I(f"v_sub_u32 v{vDl[t] + e}, v{vDl[t] + e}, v{vsum}")
            a.I(f"v_cndmask_b32 v{vP[t] + e}, -1, v{vP[t] + e}, vcc")
    a.I(f"s_mov_b32 s{sT}, 0")
    for t in range(NT):
        a.I(f"s_mov_b32 s{sP0[t]}, 0")
        a.I(f"s_mov_b32 s{sCar[t]}, 0")
        a.I(f"s_mov_b32 s{sRem[t]}, s{sN[t]}")
        a.I(f"s_add_u32 s{sT}, s{sT}, s{sN[t]}")
    a.I(f"v_mov_b32 v{vsum}, s{sT}")
    a.I(f"s_lshl_b32 s{sT}, s{sWid}, 2")
    a.I(f"s_add_u32 s{sT}, s{sT}, {MISC}")
    a.I(f"v_mov_b32 v{vsum + 1}, s{sT}")
    a.I("s_mov_b64 exec, 1")
    a.I(f"ds_write_b32 v{vsum + 1}, v{vsum}")
    a.I("s_mov_b64 exec, -1")
    tA = [vT + 4, vT + 8]
    tB = [vT + 12, vT + 16]

    def table_loads():
        for j in range(2):
            a.vwait(f"d{j}")
            a.I(f"v_lshlrev_b32 v{vT + 20 + j}, 5, v{vD + j}")
            a.I(f"v_lshlrev_b32 v{vD8 + j}, 3, v{vD + j}")
            a.vmem(f"buffer_load_dwordx4 {v(tA[j], 4)}, v{vT + 20 + j}, {s(sY, 4)}, 0 offen", f"ta{j}")
            a.vmem(f"buffer_load_dwordx3 {v(tB[j], 3)}, v{vT + 20 + j}, {s(sY, 4)}, 0 offen offset:16", f"ts{j}")

    ldpol = (" " + c.ld_rec) if c.ld_rec else ""

    def set_exec(t, k):
        if k:
            a.I(f"s_sub_i32 s{sT}, s{sRem[t]}, {64 * k}")
            a.I(f"s_max_i32 s{sT}, s{sT}, 0")
        else:
            a.I(f"s_max_i32 s{sT}, s{sRem[t]}, 0")
        a.I(f"s_bfm_b64 exec, s{sT}, 0")
        a.I(f"s_cmp_ge_i32 s{sT}, 64")
        a.I("s_cselect_b64 exec, -1, exec")

    def stageA_steps(t, n_tot, kstart=0):
        regs = vRs[t % NSET]
        steps = []
        k0 = kstart
        while k0 < n_tot:
            n = min(SUB, n_tot - k0)

            def s1(k0=k0, n=n):
                for i in range((n * 256 + 511) // 512):
                    a.I(f"ds_write_b64 v{vMk8}, {v(vZ, 2)} offset:{i * 512}")
                a.I(f"s_add_u32 s{sOff}, s{sP0[t]}, {k0 * 64}")
                for e in range(EPL):
                    a.I(f"v_subrev_u32 v{vA}, s{sOff}, v{vP[t] + e}")
                    a.I(f"v_cmp_gt_u32 vcc, {n * 64}, v{vA}")
                    a.I(f"v_lshl_add_u32 v{vA}, v{vA}, 2, s{sMkBase}")
                    a.I("s_mov_b64 exec, vcc")
                    a.I(f"ds_write_b32 v{vA}, v{vDl[t] + e}")
                    a.I("s_mov_b64 exec, -1")
                for k in range(n):
                    a.I(f"ds_read_b32 v{regs[k0 + k]}, v{vMk4} offset:{k * 256}")
                a.I(f"s_lshl_b32 s{sOff}, s{sOff}, 3")

            def s2(k0=k0, n=n):
                a.I("s_waitcnt lgkmcnt(0)")
                scan_max(a, [regs[k0 + k] for k in range(n)])
            steps += [s1, s2]
            for k in range(n):
                def s3(k=k0 + k):
                    r = regs[k]
                    a.I(f"v_max_u32 v{r}, s{sCar[t]}, v{r}")
                    a.I(f"v_readlane_b32 s{sCar[t]}, v{r}, 63")
                    a.I(f"v_add3_u32 v{r}, v{r}, v{vLaneR}, s{sOff}")
                    a.I(f"s_add_u32 s{sOff}, s{sOff}, 512")
                    set_exec(t, k)
                    a.vmem(f"buffer_load_dwordx2 {v(r, 2)}, v{r}, {s(sREC, 4)}, 0 offen{ldpol}", f"R{t}_{k}")
                    a.I("s_mov_b64 exec, -1")
                steps.append(s3)
            k0 += n
        return steps

    def stageB(t, k):
        r, m = vRs[t % NSET][k], vMs[t % NSET][k]
        a.vwait(f"R{t}_{k}")
        set_exec(t, k)
        a.I(f"v_mov_b32 v{m}, v{r + 1}")
        if c.nogather:
            a.I("s_mov_b64 exec, 0")
        a.vmem(f"buffer_load_dwordx2 {v(r, 2)}, v{r}, {s(sMDT, 4)}, 0 offen", f"B{t}_{k}")
        a.I("s_mov_b64 exec, -1")

    lblc = [0]

    def comp(ty, k):
        n = lblc[0]; lblc[0] += 1
        m01, m23, meta = vRs[ty % NSET][k], vRs[ty % NSET][k] + 1, vMs[ty % NSET][k]
        tag = f"B{ty}_{k}"
        t = vT
        a16, a8, a4 = t, t + 1, t + 2
        af, r0, r2 = t + 3, t + 4, t + 5
        Gq = t + 8
        Gb = t + 12
        c01, c2l, c2h = t + 6, t + 7, t + 14
        md = t + 16
        g = t + 20
        sm = t + 15
        set_exec(ty, k)
        if c.nocomp:
            a.I("s_mov_b64 exec, 0")
        a.I(f"s_cbranch_execz P2_SK{n}")
        a.I(f"v_and_b32 v{a4}, 0xffff, v{meta}")
        a.I(f"v_add_u32 v{a8}, v{a4}, v{a4}")
        a.I(f"v_add_u32 v{a16}, v{a8}, v{a8}")
        a.I(f"ds_read_b64 {v(Gb, 2)}, v{a8} offset:{GB}")
        a.I(f"ds_read_b128 {v(Gq, 4)}, v{a16} offset:{GA}")
        a.I(f"v_and_b32 v{af}, s{sMaskHi}, v{meta}")
        a.I(f"v_mul_f32 v{r0}, 0.15915494, v{af}")
        a.I(f"v_mul_f32 v{r2}, 0x40400000, v{af}")
        a.I(f"v_cos_f32 v{r0}, v{r0}")
        a.I(f"v_cvt_pk_bf16_f32 v{r2}, 0, v{r2}")
        a.I(f"v_mul_f32 v{r2}, 0.15915494, v{r2}")
        a.I(f"v_mul_f32 v{af}, v{r0}, v{r0}")
        a.I(f"v_cos_f32 v{r2}, v{r2}")
        a.I(f"v_fma_f32 v{af}, v{af}, 2.0, -1.0")
        a.I(f"v_cvt_pk_bf16_f32 v{c01}, v{r0}, v{af}")
        a.I(f"v_cvt_pk_bf16_f32 v{c2l}, v{r2}, 0")
        a.I(f"v_cvt_pk_bf16_f32 v{c2h}, 0, v{r2}")
        a.I("s_waitcnt lgkmcnt(1)")
        for d in range(4):
            a.I(f"v_dot2_f32_bf16 v{g + d}, v{Gb + d // 2}, v{c2l if d % 2 == 0 else c2h}, 0")
        a.I("s_waitcnt lgkmcnt(0)")
        for d in range(4):
            a.I(f"v_dot2_f32_bf16 v{g + d}, v{Gq + d}, v{c01}, v{g + d}")
        a.vwait(tag, trim=False)
        a.I(f"v_lshlrev_b32 v{md}, 16, v{m01}")
        a.I(f"v_and_b32 v{md + 1}, s{sMaskHi}, v{m01}")
        a.I(f"v_lshlrev_b32 v{md + 2}, 16, v{m23}")
        a.I(f"v_and_b32 v{md + 3}, s{sMaskHi}, v{m23}")
        for d in range(4):
            a.I(f"v_mul_f32 v{md + d}, v{md + d}, v{g + d}")
        a.I(f"v_add_f32 v{sm}, |v{md}|, |v{md + 1}|")
        a.I(f"v_add_f32 v{g}, |v{md + 2}|, |v{md + 3}|")
        a.I(f"v_add_f32 v{sm}, v{sm}, v{g}")
        a.I(f"v_cmp_ngt_f32 vcc, s{sLim}, v{sm}")
        for d in range(4):
            a.I(f"v_cvt_rpi_i32_f32 v{g + d}, v{md + d}")
        a.I(f"s_cbranch_vccz P2_FAST{n}")
        a.I(f"s_mov_b64 s[{sSave}:{sSave + 1}], exec")
        a.I("s_mov_b64 exec, vcc")
        for d in range(4):
            a.I(f"ds_add_f32 v{a4}, v{md + d} offset:{ACCF + d * S * 4}")
        a.I(f"s_andn2_b64 exec, s[{sSave}:{sSave + 1}], vcc")
        a.L(f"P2_FAST{n}")
        for d in range(4):
            a.I(f"ds_add_u32 v{a4}, v{g + d} offset:{ACC + d * S * 4}")
        a.L(f"P2_SK{n}")
        a.I("s_mov_b64 exec, -1")
        a.vwait(tag)

    def table_to_lds():
        a.I(f"v_lshlrev_b32 v{vT}, 4, v0")
        a.I(f"v_lshlrev_b32 v{vT + 1}, 3, v0")
        a.vwait("ts0")
        a.I(f"ds_write_b128 v{vT}, {v(tA[0], 4)} offset:{GA}")
        a.I(f"ds_write_b64 v{vT + 1}, {v(tB[0], 2)} offset:{GB}")
        a.I(f"v_mov_b32 v{vSH}, v{tB[0] + 2}")
        a.I(f"v_cmp_gt_u32 vcc, {S - 1024}, v0")
        a.I(f"v_add_u32 v{vT}, 0x4000, v{vT}")
        a.vwait("ts1")
        a.I(f"v_mov_b32 v{vSH + 1}, v{tB[1] + 2}")
        a.I("s_mov_b64 exec, vcc")
        a.I(f"ds_write_b128 v{vT}, {v(tA[1], 4)} offset:{GA}")
        a.I(f"ds_write_b64 v{vT + 1}, {v(tB[1], 2)} offset:{GB + 8192}")
        a.I("s_mov_b64 exec, -1")

    def barrier_and_lim():
        a.I("s_waitcnt lgkmcnt(0)")
        st_("pre")
        a.I("s_barrier")
        st_("bar")
        a.I(f"v_and_b32 v{vT}, 15, v0")
        a.I(f"v_lshlrev_b32 v{vT}, 2, v{vT}")
        a.I(f"v_add_u32 v{vT}, {MISC}, v{vT}")
        a.I(f"ds_read_b32 v{vT + 1}, v{vT}")
        for h in range(2):
            for d in range(4):
                pk = "s_pack_ll_b32_b16" if d % 2 == 0 else "s_pack_hh_b32_b16"
                a.I(f"{pk} s{sWU + h * 4 + d}, s{64 + 4 * h + d // 2}, s{64 + 4 * h + 2 + d // 2}")
        a.I("s_waitcnt lgkmcnt(0)")
        for sh in (1, 2, 4, 8):
            a.I(f"v_add_u32_dpp v{vT + 1}, v{vT + 1}, v{vT + 1} row_shr:{sh} row_mask:0xf bank_mask:0xf bound_ctrl:0")
        a.I(f"v_readlane_b32 s{sLim}, v{vT + 1}, 15")
        a.I(f"s_or_b32 s{sLim}, s{sLim}, 1")
        a.I(f"s_flbit_i32_b32 s{sLim}, s{sLim}")
        a.I(f"s_sub_u32 s{sLim}, s{sLim}, 1")
        a.I(f"s_min_u32 s{sLim}, s{sLim}, {KFIX}")
        a.I(f"s_add_u32 s{sLim}, s{sLim}, 127")
        a.I(f"s_lshl_b32 s{sLim}, s{sLim}, 23")

    for f in stageA_steps(0, nb):
        f()
    table_loads()
    seq = [(t, k) for t in range(NT) for k in range(nb)]
    L = c.lead
    pend = []
    per = 0
    for i in range(len(seq) + L):
        if i < len(seq):
            t, k = seq[i]
            if k == 0:
                while pend:
                    pend.pop(0)()
                if t > 0:
                    st_(f"T{t - 1}")
                    if c.tbar:
                        a.I("s_barrier")
            kfree = 0 if t + 1 < NSET else L
            if k == kfree and t + 1 < NT:
                pend = stageA_steps(t + 1, nb)
                per = -(-len(pend) // max(1, min(c.aspread, nb - kfree)))
            stageB(t, k)
            for _ in range(min(per, len(pend))):
                pend.pop(0)()
        if i == L - 1:
            table_to_lds()
            barrier_and_lim()
        if i >= L - 1 and i - (L - 1) < len(seq):
            comp(*seq[i - (L - 1)])
    st_("comps")
    a.vwait_all()
    for t in range(NT):
        a.I(f"s_add_u32 s{sP0[t]}, s{sP0[t]}, {nb * 64}")
        a.L(f"P2_LOOP{t}")
        a.I(f"s_sub_i32 s{sRem[t]}, s{sN[t]}, s{sP0[t]}")
        a.I(f"s_cmp_le_i32 s{sRem[t]}, 0")
        a.I(f"s_cbranch_scc1 P2_LOOP_END{t}")
        lr = min(nb, 4)
        for f in stageA_steps(t, lr):
            f()
        for k in range(lr):
            stageB(t, k)
        for k in range(lr):
            comp(t, k)
        a.vwait_all()
        a.I(f"s_add_u32 s{sP0[t]}, s{sP0[t]}, {lr * 64}")
        a.I(f"s_branch P2_LOOP{t}")
        a.L(f"P2_LOOP_END{t}")
    st_("loop")
    a.I(f"v_lshlrev_b32 v{vT}, 3, v0")
    a.I(f"s_mul_i32 s{sT}, s{sB}, {S * 8}")
    a.I(f"s_add_u32 s{sT + 1}, s{sT}, 8192")
    vMrow = vRs[0][0]
    assert vRs[0][1] == vMrow + 2
    a.I(f"buffer_load_dwordx2 {v(vMrow, 2)}, v{vT}, {s(sMS, 4)}, s{sT} offen")
    a.I(f"buffer_load_dwordx2 {v(vMrow + 2, 2)}, v{vT}, {s(sMS, 4)}, s{sT + 1} offen")
    vRW = vRs[0][2]
    assert vRs[0][3] == vRW + 2
    a.I(f"s_mov_b32 s{sSave}, 0x200000")
    a.I(f"buffer_load_dwordx2 {v(vRW, 2)}, v{vD8}, {s(sY, 4)}, s{sSave} offen")
    a.I(f"buffer_load_dwordx2 {v(vRW + 2, 2)}, v{vD8 + 1}, {s(sY, 4)}, s{sSave} offen")
    a.I("s_waitcnt lgkmcnt(0)")
    a.I("s_barrier")
    st_("bar3")
    for j in range(2):
        if j == 1:
            a.I(f"s_cmp_ge_u32 s{sWid}, {NW2}")
            a.I("s_cbranch_scc1 P2_FIN")
            a.I(f"v_cmp_gt_u32 vcc, {S - 1024}, v0")
            a.I("s_mov_b64 exec, vcc")
        q = vT + 4; f = vT + 8; up = vT + 12; rw = vT + 16; pk = vT + 20
        a.I(f"v_lshlrev_b32 v{vT + 1}, 2, v0")
        for d in range(4):
            a.I(f"ds_read_b32 v{q + d}, v{vT + 1} offset:{ACC + d * S * 4 + j * 4096}")
        for d in range(4):
            a.I(f"ds_read_b32 v{f + d}, v{vT + 1} offset:{ACCF + d * S * 4 + j * 4096}")
        for d in range(4):
            a.I(f"v_bfe_i32 v{up + d}, v{vSH + j}, {8 * d}, 8")
        for d in range(4):
            a.I(f"v_sub_u32 v{up + d}, 0, v{up + d}")
        a.I("s_waitcnt lgkmcnt(0)")
        for d in range(4):
            a.I(f"v_cvt_f32_i32 v{q + d}, v{q + d}")
        for d in range(4):
            a.I(f"v_add_f32 v{q + d}, v{q + d}, v{f + d}")
        for d in range(4):
            a.I(f"v_ldexp_f32 v{q + d}, v{q + d}, v{up + d}")
        a.I(f"v_cvt_pk_bf16_f32 v{pk}, v{q}, v{q + 1}")
        a.I(f"v_cvt_pk_bf16_f32 v{pk + 1}, v{q + 2}, v{q + 3}")
        for d in range(4):
            a.I(f"v_dot2_f32_bf16 v{up + d}, v{pk}, s{sWU + d}, 0")
        for d in range(4):
            a.I(f"v_dot2_f32_bf16 v{up + d}, v{pk + 1}, s{sWU + 4 + d}, v{up + d}")
        m01, m23 = vMrow + 2 * j, vMrow + 2 * j + 1
        if j == 0:
            a.I("s_waitcnt vmcnt(0)")
        a.I(f"v_lshlrev_b32 v{rw}, 16, v{vRW + 2 * j}")
        a.I(f"v_and_b32 v{rw + 1}, s{sMaskHi}, v{vRW + 2 * j}")
        a.I(f"v_lshlrev_b32 v{rw + 2}, 16, v{vRW + 2 * j + 1}")
        a.I(f"v_and_b32 v{rw + 3}, s{sMaskHi}, v{vRW + 2 * j + 1}")
        a.I(f"v_lshlrev_b32 v{f}, 16, v{m01}")
        a.I(f"v_and_b32 v{f + 1}, s{sMaskHi}, v{m01}")
        a.I(f"v_lshlrev_b32 v{f + 2}, 16, v{m23}")
        a.I(f"v_and_b32 v{f + 3}, s{sMaskHi}, v{m23}")
        for d in range(4):
            a.I(f"v_cvt_pk_bf16_f32 v{up + d}, 0, v{up + d}")
        for d in range(4):
            a.I(f"v_mul_f32 v{up + d}, v{up + d}, v{rw + d}")
        for d in range(4):
            a.I(f"v_cvt_pk_bf16_f32 v{up + d}, 0, v{up + d}")
        for d in range(4):
            a.I(f"v_add_f32 v{up + d}, v{up + d}, v{f + d}")
        a.I(f"v_cvt_pk_bf16_f32 v{pk}, v{up}, v{up + 1}")
        a.I(f"v_cvt_pk_bf16_f32 v{pk + 1}, v{up + 2}, v{up + 3}")
        a.I(f"buffer_store_dwordx2 {v(pk, 2)}, v{vT}, {s(sOUT, 4)}, s{sT + j} offen")
    a.L("P2_FIN")
    st_("end")
    st_.flush(sWid, 16, 0x9000000, sY, vT + 1)
    a.L("P2_END")
    a.I("s_endpgm")
    return a, lds


HEADER = """; gemnet triplet message passing: two launches
;  gp2: one workgroup per bucket: accumulates its triplets in LDS and writes the output rows
"""


def kd(name, nv, ns):
    acc = (nv + 3) // 4 * 4
    return f""".amdhsa_kernel {name}
  .amdhsa_next_free_vgpr {nv}
  .amdhsa_next_free_sgpr {ns}
  .amdhsa_accum_offset {acc}
  .amdhsa_group_segment_fixed_size 0
  .amdhsa_kernarg_size 112
  .amdhsa_user_sgpr_count 2
  .amdhsa_user_sgpr_kernarg_segment_ptr 1
  .amdhsa_system_sgpr_workgroup_id_x 1
  .amdhsa_float_denorm_mode_32 3
  .amdhsa_float_denorm_mode_16_64 3
.end_amdhsa_kernel
"""


def build(c):
    p1, lds1 = gen_p1(c)
    p2, lds2 = gen_p2(c)
    n1 = p1.fix_hazards()
    n2 = p2.fix_hazards()
    v1, s1 = p1.max_regs()
    v2, s2 = p2.max_regs()
    out = HEADER
    out += f"; @launch kernel=gp1_kernel grid=({c.G1},1,1) block=({c.TPB1},1,1) lds={lds1}\n"
    out += f"; @launch kernel=gp2_kernel grid=({NB},1,1) block=(1024,1,1) lds={lds2}\n"
    out += '.amdgcn_target "amdgcn-amd-amdhsa--gfx950"\n.text\n'
    for name, k in (("gp1_kernel", p1), ("gp2_kernel", p2)):
        out += f".globl {name}\n.p2align 8\n.type {name},@function\n{name}:\n" + k.text()
    out += '.section .rodata,"a"\n.p2align 6\n'
    out += kd("gp1_kernel", v1, s1)
    out += ".p2align 6\n"
    out += kd("gp2_kernel", v2, s2)
    info = f"p1: vgpr {v1} sgpr {s1} lds {lds1} nops {n1}; p2: vgpr {v2} sgpr {s2} lds {lds2} nops {n2}; NC {c.NC} CB {c.CB} CPW {c.CPW} EPL {c.EPL}"
    return out, info


if __name__ == "__main__":
    kw = {}
    outp = "standalone__molecular_angular_gemnet__graph.s"
    for arg in sys.argv[1:]:
        k, val = arg.split("=", 1)
        if k == "out":
            outp = val
            continue
        try:
            val = int(val)
        except ValueError:
            pass
        kw[k] = val
    c = Cfg(**kw)
    txt, info = build(c)
    open(outp, "w").write(txt)
    print(info)
```
